```python
import torch

def _softmax(x, axis=-1):
    return torch.softmax(x, dim=axis)
def _gelu(x):
    return torch.nn.functional.gelu(x, approximate="tanh")
def _silu(x):
    return torch.nn.functional.silu(x)
def _sigmoid(x):
    return torch.sigmoid(x)
def _layernorm(x, axis=-1, eps=1e-5):
    m = x.mean(dim=axis, keepdim=True)
    v = x.var(dim=axis, keepdim=True, unbiased=False)
    return (x - m) / torch.sqrt(v + eps)
def _scatter_add(tgt, idx, src, axis=0):
    return tgt.clone().index_add_(axis, idx, src)
def _segment_sum(src, seg, n):
    out = torch.zeros((n,) + src.shape[1:], dtype=src.dtype)
    return out.index_add_(0, seg, src)
def _pad(x, pw):
    flat = tuple(v for pair in reversed(pw) for v in pair)
    return torch.nn.functional.pad(x, flat)

kernel_name = 'gated_mix__mha_block__geglu_ffn__prompt'

def setup_inputs():

    _w = (lambda a: (lambda t: t.to(torch.bfloat16) if t.is_floating_point() else t)(torch.as_tensor(a)))
    def _A_setup():
        B, S, D, H = 1, 2048, 640, 32
        return {
            "x": _w((lambda *s: torch.randn(*s, dtype=torch.bfloat16) * 0.05)(B, S, D)),
            "wqkv": _w((lambda *s: torch.randn(*s, dtype=torch.bfloat16) * 0.8)(D, 3 * D)),
            "wo": _w((lambda *s: torch.randn(*s, dtype=torch.bfloat16) * 0.05)(D, D)),
        }
    _A_in = _A_setup()

    def _B_setup():
        B, S, D, F = 1, 2048, 640, 1536
        return {
            "x": _w((lambda *s: torch.randn(*s, dtype=torch.bfloat16) * 0.05)(B, S, D)),
            "w_gate": _w((lambda *s: torch.randn(*s, dtype=torch.bfloat16) * 0.1)(D, F)),
            "w_up": _w((lambda *s: torch.randn(*s, dtype=torch.bfloat16) * 0.1)(D, F)),
            "w_down": _w((lambda *s: torch.randn(*s, dtype=torch.bfloat16) * 0.1)(F, D)),
        }
    _B_in = _B_setup()

    return {
        "A_x": _A_in["x"],
        "A_wqkv": _A_in["wqkv"],
        "A_wo": _A_in["wo"],
        "B_x": _B_in["x"],
        "B_w_gate": _B_in["w_gate"],
        "B_w_up": _B_in["w_up"],
        "B_w_down": _B_in["w_down"],
        "gate_w": _w((lambda *s: torch.randn(*s, dtype=torch.bfloat16) * 0.05)(640) * 16.0),
    }

def reference(A_x, A_wqkv, A_wo, B_x, B_w_gate, B_w_up, B_w_down, gate_w):
    def _A_ref(x, wqkv, wo):
        B, S, D = x.shape
        H = 32
        Dh = D // H
        qkv = (lambda x, *d: x.permute(*d))((x @ wqkv).reshape(B, S, 3, H, Dh), 2, 0, 3, 1, 4)
        q, k, v = qkv[0], qkv[1], qkv[2]
        scores = torch.einsum("bhqd,bhkd->bhqk", q, k) * (Dh ** -0.5)
        p = _softmax(scores, axis=-1)
        o = torch.einsum("bhqk,bhkd->bhqd", p, v)
        return (lambda x, *d: x.permute(*d))(o, 0, 2, 1, 3).reshape(B, S, D) @ wo

    def _B_ref(x, w_gate, w_up, w_down):
        return (_gelu(x @ w_gate) * (x @ w_up)) @ w_down

    x = A_x
    g = _sigmoid((x * gate_w).sum(-1, keepdims=True))
    a = _A_ref(x, A_wqkv, A_wo)
    b = _B_ref(x, B_w_gate, B_w_up, B_w_down)
    return g * a + (1 - g) * b
```

```python
import re

TRANS = ("v_exp_f32", "v_log_f32", "v_rcp_f32", "v_rsq_f32", "v_sqrt_f32", "v_sin_f32", "v_cos_f32",
         "v_exp_f16", "v_rcp_f16", "v_rcp_iflag_f32")

_REG = re.compile(r"^(-|\|)?(abs\()?([vas])(?:(\d+)|\[(\d+):(\d+)\])\)?\|?$")


def regs_of(tok):
    tok = tok.strip()
    if tok in ("vcc", "vcc_lo", "vcc_hi"):
        return {("s", 106), ("s", 107)}
    if tok in ("exec", "exec_lo", "exec_hi"):
        return {("s", 126), ("s", 127)}
    if tok == "m0":
        return {("s", 124)}
    m = _REG.match(tok)
    if not m:
        return set()
    f = m.group(3)
    if m.group(4) is not None:
        return {(f, int(m.group(4)))}
    return {(f, i) for i in range(int(m.group(5)), int(m.group(6)) + 1)}


def split_ops(s):
    out, depth, cur = [], 0, ""
    for ch in s:
        if ch in "[(":
            depth += 1
        if ch in "])":
            depth -= 1
        if ch == "," and depth == 0:
            out.append(cur.strip())
            cur = ""
        else:
            cur += ch
    if cur.strip():
        out.append(cur.strip())
    return out


class Ins:
    __slots__ = ("text", "mn", "ops", "mods", "defs", "uses", "cls", "passes", "a", "b", "c", "ws", "label",
                 "target", "data", "dpp", "sdwa", "lds")

    def __init__(self, text):
        self.text = text
        self.label = None
        self.target = None
        code = text.split(";")[0].strip()
        self.defs, self.uses = set(), set()
        self.cls = None
        self.passes = 0
        self.a = self.b = self.c = set()
        self.data = set()
        self.ws = 1
        self.dpp = self.sdwa = self.lds = False
        if not code or code.startswith("."):
            self.cls = "none"
            self.ws = 0
            self.mn = ""
            return
        if code.endswith(":"):
            self.cls = "label"
            self.label = code[:-1]
            self.ws = 0
            self.mn = ""
            return
        parts = code.split(None, 1)
        mn = parts[0]
        self.mn = mn
        rest = parts[1] if len(parts) > 1 else ""
        ops = split_ops(rest)
        mods = []
        if ops:
            last = ops[-1].split()
            ops[-1] = last[0]
            mods = last[1:]
        self.ops, self.mods = ops, mods
        R = [regs_of(o) for o in ops]
        allr = lambda rs: set().union(*rs) if rs else set()
        if mn.startswith("v_mfma"):
            self.cls = "mfma"
            self.passes = 8 if "32x32" in mn else 4
            self.defs = R[0]
            self.a, self.b, self.c = R[1], R[2], R[3]
            self.uses = R[1] | R[2] | R[3]
        elif mn.startswith("v_"):
            self.cls = "valu"
            base = mn.replace("_e32", "").replace("_e64", "")
            self.dpp = "_dpp" in mn or any(m.startswith(("row_", "quad_perm", "wave_")) for m in mods)
            self.sdwa = "_sdwa" in mn or any(m.startswith("op_sel:") for m in mods)
            if base.startswith(("v_permlane", "v_swap")):
                self.defs = R[0] | R[1]
                self.uses = R[0] | R[1]
            elif base.startswith(("v_add_co", "v_sub_co", "v_subrev_co", "v_addc_co", "v_subb_co", "v_div_scale",
                                  "v_mad_u64_u32")):
                self.defs = R[0] | R[1]
                self.uses = allr(R[2:])
            else:
                self.defs = R[0]
                self.uses = allr(R[1:])
                if base.startswith(("v_fmac", "v_pk_fmac", "v_dot2c", "v_writelane")) or self.sdwa or self.dpp:
                    self.uses |= R[0]
                if base.startswith("v_cmpx"):
                    self.defs |= regs_of("exec")
            if base.split("_dpp")[0].split("_sdwa")[0] in TRANS:
                self.cls = "trans"
        elif mn.startswith("ds_"):
            self.cls = "ds"
            if mn.startswith(("ds_read", "ds_bpermute", "ds_permute", "ds_swizzle")) or "_rtn" in mn:
                self.defs = R[0]
                self.uses = allr(R[1:])
            else:
                self.uses = allr(R)
        elif mn.startswith(("buffer_", "global_", "flat_")):
            self.cls = "vmem"
            self.lds = "lds" in mods or "_lds_" in mn
            if self.lds:
                self.uses = allr(R) | regs_of("m0")
            elif "_load" in mn:
                self.defs = R[0]
                self.uses = allr(R[1:])
            elif "_store" in mn or "atomic" in mn:
                self.uses = allr(R)
                d = R[0] if mn.startswith("buffer_") else R[1]
                if "x3" in mn or "x4" in mn:
                    self.data = d
                if "atomic" in mn and "sc0" in mods:
                    self.defs = R[0]
            else:
                self.uses = allr(R)
        elif mn.startswith("s_"):
            self.cls = "salu"
            if mn == "s_nop":
                self.ws = int(ops[0], 0) + 1
            elif mn.startswith(("s_branch", "s_cbranch")):
                self.cls = "branch"
                self.target = ops[0]
            elif mn.startswith(("s_cmp", "s_waitcnt", "s_barrier", "s_endpgm", "s_setprio", "s_sleep", "s_bitcmp")):
                self.uses = allr(R)
            else:
                self.defs = R[0] if R else set()
                self.uses = allr(R[1:])
                if "saveexec" in mn:
                    self.defs |= regs_of("exec")
        else:
            raise ValueError("unknown instruction: " + text)


def vg(s):
    return {r for r in s if r[0] in "va"}


def sg(s):
    return {r for r in s if r[0] == "s"}


def need(p, c):
    n = 0
    pv = p.cls in ("valu", "trans")
    cv = c.cls in ("valu", "trans")
    if pv:
        d = vg(p.defs)
        if c.cls == "mfma" and d & c.uses:
            n = max(n, 2)
        if p.cls == "trans" and c.cls == "valu" and d & c.uses:
            n = max(n, 1)
        if cv and c.dpp and d & c.uses:
            n = max(n, 2)
        if cv and c.mn.startswith("v_permlane") and d & c.uses:
            n = max(n, 2)
        if cv and c.mn.startswith(("v_readlane", "v_readfirstlane")) and d & c.uses:
            n = max(n, 1)
        if p.sdwa and cv and d & (c.uses | c.defs):
            n = max(n, 1)
        if p.mn.startswith("v_dot") and (cv or c.cls in ("mfma", "vmem", "ds")) and d & (c.uses | c.defs):
            if not (c.mn == p.mn and not (d & (c.uses - c.defs))):
                n = max(n, 3)
        ds_ = sg(p.defs)
        if ds_:
            if cv and ds_ & c.uses:
                n = max(n, 4 if c.mn.startswith(("v_readlane", "v_writelane")) else 2)
            if c.cls == "vmem" and ds_ & c.uses:
                n = max(n, 5)
            if c.cls in ("salu", "branch") and ds_ & c.uses:
                n = max(n, 1)
            if ds_ & regs_of("exec"):
                if c.cls == "mfma" or (cv and (c.dpp or c.mn.startswith(("v_readlane", "v_readfirst", "v_permlane")))):
                    n = max(n, 5)
            if ds_ & regs_of("vcc") and c.mn.startswith("v_div_fmas"):
                n = max(n, 4)
            if ds_ & regs_of("vcc") and c.mn.startswith("s_cbranch_vcc"):
                n = max(n, 1)
    if p.cls == "mfma":
        big = {4: 8, 8: 12}[p.passes]
        d = p.defs
        if c.cls == "mfma":
            if d & (c.a | c.b):
                n = max(n, big)
            if d & c.c:
                if not (c.c == d and c.passes == p.passes):
                    n = max(n, p.passes + 2)
            if d & c.defs and not (c.c == d):
                n = max(n, p.passes + 2)
        elif cv or c.cls in ("vmem", "ds"):
            if d & (c.uses | c.defs):
                n = max(n, big)
        if cv and p.c & c.defs:
            n = max(n, {4: 3, 8: 7}[p.passes])
        if c.cls in ("ds", "vmem") and (p.c & c.defs):
            n = max(n, {4: 3, 8: 7}[p.passes])
    if p.cls == "salu" and regs_of("m0") & p.defs and c.cls == "vmem" and c.lds:
        n = max(n, 1)
    if p.cls == "vmem" and p.data:
        if cv and p.data & c.defs:
            n = max(n, 2)
        elif p.data & c.defs:
            n = max(n, 1)
    return n


WINDOW = 14


class Asm:
    def __init__(self):
        self.lines = []

    def __call__(self, text):
        for t in text.split("\n"):
            t = t.strip()
            if t:
                self.lines.append(t)

    def label(self, name):
        self.lines.append(name + ":")

    def comment(self, s):
        self.lines.append("; " + s)

    def finalize(self):
        ins = [Ins(t) for t in self.lines]
        for _ in range(20):
            changed = False
            labels = {x.label: i for i, x in enumerate(ins) if x.cls == "label"}
            preds = {}
            for i, x in enumerate(ins):
                if x.cls == "branch" and x.target in labels:
                    preds.setdefault(labels[x.target], []).append(i)

            def back(i, dist, acc, seen):
                j = i - 1
                while j >= 0 and dist <= WINDOW:
                    x = ins[j]
                    if x.cls == "label":
                        for b in preds.get(j, []):
                            if (b, dist) not in seen:
                                seen.add((b, dist))
                                acc.append((ins[b], dist))
                                back(b, dist + 1, acc, seen)
                    elif x.cls == "none":
                        pass
                    else:
                        if x.mn in ("s_branch", "s_endpgm", "s_setpc_b64"):
                            return
                        acc.append((x, dist))
                        dist += x.ws
                    j -= 1

            i = 0
            while i < len(ins):
                c = ins[i]
                if c.cls in ("none", "label"):
                    i += 1
                    continue
                acc = []
                back(i, 0, acc, set())
                pad = 0
                for p, dist in acc:
                    n = need(p, c)
                    if n > dist:
                        pad = max(pad, n - dist)
                if pad:
                    ins.insert(i, Ins(f"s_nop {pad - 1} ; hz"))
                    changed = True
                    labels = {x.label: k for k, x in enumerate(ins) if x.cls == "label"}
                    preds = {}
                    for k, x in enumerate(ins):
                        if x.cls == "branch" and x.target in labels:
                            preds.setdefault(labels[x.target], []).append(k)
                    i += 1
                i += 1
            if not changed:
                break
        out = []
        for x in ins:
            if x.cls == "label" or x.text.startswith("."):
                out.append(x.text)
            else:
                out.append("    " + x.text)
        return "\n".join(out) + "\n"


def v(i, n=1):
    return f"v{i}" if n == 1 else f"v[{i}:{i + n - 1}]"


def a(i, n=1):
    return f"a{i}" if n == 1 else f"a[{i}:{i + n - 1}]"


def s(i, n=1):
    return f"s{i}" if n == 1 else f"s[{i}:{i + n - 1}]"


class Alloc:
    def __init__(self, start, limit):
        self.cur, self.limit = start, limit
        self.hi = start

    def __call__(self, n=1, align=None):
        if align is None:
            align = 1 if n == 1 else (2 if n < 4 else 4)
        self.cur = (self.cur + align - 1) // align * align
        r = self.cur
        self.cur += n
        assert self.cur <= self.limit, f"register overflow {self.cur} > {self.limit}"
        self.hi = max(self.hi, self.cur)
        return r
```

```python
import sys, struct, math, os
sys.path.insert(0, "gen")
from asmgen import Asm, Alloc, v, s, a

NAME = "gated_mix__mha_block__geglu_ffn__prompt"
S_, D_, H_, DH, F_ = 2048, 640, 32, 20, 1536
KA_X, KA_WQKV, KA_WO, KA_BX, KA_WG, KA_WU, KA_WD, KA_GW, KA_OUT, KA_DBG, KA_WS = [8 * i for i in range(11)]
DIAG = int(os.environ.get("DIAG", "0"))
DIAG_BASE = 0x2000000
NST = 12
LOG2E = math.log2(math.e)
QSCALE = LOG2E / math.sqrt(DH)
OOB = 0x40000000


def f32(x):
    return "0x%08x" % struct.unpack("<I", struct.pack("<f", x))[0]


class Q:
    def __init__(self, k, cnt, cap):
        self.k, self.cnt, self.cap = k, cnt, cap
        self.q = []

    def issue(self, tag, text):
        self.k(text)
        self.q.append(tag)

    def need(self, *tags):
        idx = -1
        for i, t in enumerate(self.q):
            if t in tags:
                idx = i
        if idx < 0:
            return None
        n = len(self.q) - 1 - idx
        if n > self.cap:
            idx += n - self.cap
            n = self.cap
        self.q = self.q[idx + 1:]
        return n

    def wait(self, *tags):
        n = self.need(*tags)
        if n is not None:
            self.k(f"s_waitcnt {self.cnt}({n})")

    def all(self):
        n = 0 if self.q else None
        self.q = []
        return n


def waits(k, lg=None, vm=None):
    parts = []
    if vm is not None:
        parts.append(f"vmcnt({vm})")
    if lg is not None:
        parts.append(f"lgkmcnt({lg})")
    if parts:
        k("s_waitcnt " + " ".join(parts))


def srd(k, d, base, size):
    k(f"s_mov_b32 {s(d)}, {s(base)}")
    k(f"s_and_b32 {s(d + 1)}, {s(base + 1)}, 0xffff")
    k(f"s_mov_b32 {s(d + 2)}, {size}")
    k(f"s_mov_b32 {s(d + 3)}, 0x00020000")


def diag_begin(k):
    if not DIAG:
        return
    k(f"s_load_dwordx2 s[88:89], s[0:1], {KA_WS}")
    k("s_memrealtime s[86:87]")
    k("s_memtime s[60:61]")
    for i in range(1, NST):
        k(f"s_mov_b32 s{60 + 2 * i}, 0")
    k("s_waitcnt lgkmcnt(0)")
    k("s_memtime s[80:81]")
    k("s_mov_b32 s92, s88")
    k("s_and_b32 s93, s89, 0xffff")
    k("s_mov_b32 s94, 0x4000000")
    k("s_mov_b32 s95, 0x00020000")
    k("v_lshrrev_b32 v1, 6, v0")
    k("s_nop 1")
    k("v_readfirstlane_b32 s85, v1")


def stamp(k, i, lq=None):
    if not DIAG:
        return
    k(f"s_memtime s[{60 + 2 * i}:{61 + 2 * i}]")
    k("s_waitcnt lgkmcnt(0)")
    if lq is not None:
        lq.q = []


def endpgm(k, kid, wpw):
    if DIAG:
        k("s_waitcnt vmcnt(0)")
        k(f"s_memtime s[{60 + 2 * (NST - 1)}:{61 + 2 * (NST - 1)}]")
        k("s_memrealtime s[88:89]")
        k("s_getreg_b32 s90, hwreg(HW_REG_HW_ID)")
        k("s_getreg_b32 s91, hwreg(HW_REG_XCC_ID)")
        k("s_waitcnt lgkmcnt(0)")
        k("s_mov_b64 exec, 1")
        k(f"s_mul_i32 s84, s2, {wpw}")
        k("s_add_u32 s84, s84, s85")
        k("s_lshl_b32 s84, s84, 6")
        k(f"s_add_u32 s84, s84, {DIAG_BASE + kid * 0x80000}")
        k("v_mov_b32 v1, 0")
        for i in range(NST):
            k(f"v_mov_b32 v{4 + i}, s{60 + 2 * i}")
        k("v_mov_b32 v16, s86")
        k("v_mov_b32 v17, s88")
        k("v_mov_b32 v18, s90")
        k("v_mov_b32 v19, s91")
        for j in range(4):
            k(f"buffer_store_dwordx4 v[{4 + 4 * j}:{7 + 4 * j}], v1, s[92:95], s84 offen offset:{16 * j}")
    k("s_endpgm")


def kernel_head(k, name):
    k(".text")
    k(f".globl {name}")
    k(".p2align 8")
    k(f".type {name},@function")
    k.label(name)


def kernel_desc(name, nv, ns, accum=None):
    if accum is None:
        accum = (nv + 3) // 4 * 4
    if DIAG:
        ns = 100
    return f""".section .rodata,"a"
.p2align 6
.amdhsa_kernel {name}
  .amdhsa_next_free_vgpr {nv}
  .amdhsa_next_free_sgpr {ns}
  .amdhsa_accum_offset {accum}
  .amdhsa_group_segment_fixed_size 0
  .amdhsa_kernarg_size 88
  .amdhsa_user_sgpr_count 2
  .amdhsa_user_sgpr_kernarg_segment_ptr 1
  .amdhsa_system_sgpr_workgroup_id_x 1
.end_amdhsa_kernel
"""


def write(out, launches, gens):
    hdr = open(f"cdna_kernels/{NAME}.s.ref").read().split("\n")
    hdr = [l for l in hdr if l.startswith(";") and "@launch" not in l and "Override launch" not in l
           and "grid=ceil" not in l]
    text = "\n".join(hdr + launches) + "\n" + '.amdgcn_target "amdgcn-amd-amdhsa--gfx950"\n'
    descs = ""
    for g in gens:
        k = Asm()
        name, nv, ns = g(k)
        t = k.finalize()
        text += t
        descs += kernel_desc(name, nv, ns)
        print(name, "vgprs", nv, "lines", t.count("\n"), "nops", t.count("; hz"))
    open(out, "w").write(text + descs)
```

```python
from common import *

WS_QKV, TT_QKV = 0, 122880
WS_H, TT_H = 0x780000, 98304
WS_O, TT_O = 0xD80000, 40960
WS_WT, KP = 0x1000000, 10240
WS_B = 0x12B0000
WS_G = 0x1530000
WS_SIZE = 0x1532000
MF32 = "v_mfma_f32_32x32x16_bf16"
GK1 = -2.0 * LOG2E * math.sqrt(2.0 / math.pi)
GK2 = GK1 * 0.044715


def gelu_ops(G, U, Z, n, sK2, vK1):
    ops = []
    for b in range(0, n, 4):
        R = range(b, b + 4)
        ops += [f"v_mul_f32 {v(Z + r)}, {v(G + r)}, {v(G + r)}" for r in R]
        ops += [f"v_fma_f32 {v(Z + r)}, {v(Z + r)}, {s(sK2)}, {v(vK1)}" for r in R]
        ops += [f"v_mul_f32 {v(Z + r)}, {v(Z + r)}, {v(G + r)}" for r in R]
        ops += [f"v_exp_f32 {v(Z + r)}, {v(Z + r)}" for r in R]
        ops += [f"v_mul_f32 {v(G + r)}, {v(G + r)}, {v(U + r)}" for r in R]
        ops += [f"v_add_f32 {v(Z + r)}, 1.0, {v(Z + r)}" for r in R]
        ops += [f"v_rcp_f32 {v(Z + r)}, {v(Z + r)}" for r in R]
        ops += [f"v_mul_f32 {v(G + r)}, {v(G + r)}, {v(Z + r)}" for r in R]
    return ops


def gen_k1(k):
    name = "k1_kernel"
    NSL, SL = 9, 16384
    SIDE = NSL * SL
    SX, SW0, SW1, SO, SJ = 8, 12, 16, 20, 24
    sW, sRG, sCH, sRB, sCG, sW2K, sSO = 28, 29, 30, 31, 32, 33, 34
    pA, pB, pWO, pWS = 4, 36, 44, 46
    t0, t1, t2, t3 = 48, 49, 50, 51
    sQO, sQO2, sSC, sHO1, sHO2, sJS, sJD, sK2 = 52, 53, 54, 55, 56, 57, 58, 59
    vL16 = 1
    vW = [2, 3, 4]
    vW2 = [5, 6, 7]
    oW1 = [8, 9]
    oW2 = [10, 11]
    oJ = [12, 13]
    vJR = 14
    vK1 = 15
    WF = [[16, 20], [24, 28]]
    ACC = [32, 48, 64, 80]
    X = 96
    oX = [64, 65]
    oW0 = [66, 67]
    vXA = [[68 + 4 * b + ks for ks in range(4)] for b in range(3)]
    vt = [80 + i for i in range(8)]
    vL, vI, vH = 88, 89, 90
    vGW = 91

    kernel_head(k, name)
    k("s_cmp_ge_u32 s2, 256")
    k("s_cbranch_scc1 L_k1_end")
    diag_begin(k)
    k(f"s_load_dwordx4 {s(pA, 4)}, s[0:1], {KA_X}")
    k(f"s_load_dwordx8 {s(pB, 8)}, s[0:1], {KA_WG}")
    k(f"s_load_dwordx2 {s(pWO, 2)}, s[0:1], {KA_WO}")
    k(f"s_load_dwordx2 {s(pWS, 2)}, s[0:1], {KA_WS}")
    k(f"v_lshrrev_b32 {v(vt[0])}, 6, v0")
    k(f"v_and_b32 {v(vL)}, 63, v0")
    k(f"v_readfirstlane_b32 {s(sW)}, {v(vt[0])}")
    k(f"s_bfe_u32 {s(t0)}, s2, 0x10002")
    k(f"s_lshl_b32 {s(t0)}, {s(t0)}, 3")
    k(f"s_bfe_u32 {s(t1)}, s2, 0x30003")
    k(f"s_add_u32 {s(sRB)}, {s(t0)}, {s(t1)}")
    k(f"s_and_b32 {s(t0)}, s2, 3")
    k(f"s_lshl_b32 {s(t0)}, {s(t0)}, 2")
    k(f"s_lshr_b32 {s(t1)}, s2, 6")
    k(f"s_add_u32 {s(sCG)}, {s(t0)}, {s(t1)}")
    k(f"s_and_b32 {s(sRG)}, {s(sW)}, 3")
    k(f"s_lshr_b32 {s(sCH)}, {s(sW)}, 2")
    k(f"s_lshl_b32 {s(sW2K)}, {s(sW)}, 11")
    k(f"v_lshrrev_b32 {v(vt[0])}, 3, {v(vL)}")
    k(f"v_and_b32 {v(vt[1])}, 7, {v(vL)}")
    k(f"v_lshrrev_b32 {v(vt[2])}, 4, {v(vL)}")
    k(f"s_lshl_b32 {s(t0)}, {s(sRB)}, 7")
    k(f"s_lshl_b32 {s(t1)}, {s(sW)}, 4")
    k(f"s_add_u32 {s(t0)}, {s(t0)}, {s(t1)}")
    k(f"v_add_u32 {v(vt[3])}, {s(t0)}, {v(vt[0])}")
    k(f"v_mul_u32_u24 {v(vt[3])}, 1280, {v(vt[3])}")
    k(f"v_xor_b32 {v(vt[4])}, {v(vt[1])}, {v(vt[2])}")
    k(f"v_lshl_add_u32 {v(oX[0])}, {v(vt[4])}, 4, {v(vt[3])}")
    k(f"v_xor_b32 {v(oX[1])}, 64, {v(oX[0])}")
    k(f"v_add_u32 {v(oX[1])}, {8 * 1280 - 1024}, {v(oX[1])}")
    k(f"v_and_b32 {v(vt[2])}, 1, {v(vt[2])}")
    k(f"v_lshlrev_b32 {v(vt[2])}, 2, {v(vt[2])}")
    k(f"v_xor_b32 {v(vt[2])}, {v(vt[2])}, {v(vt[1])}")
    k(f"v_lshlrev_b32 {v(vt[2])}, 4, {v(vt[2])}")
    k(f"s_lshl_b32 {s(t0)}, {s(sRG)}, 4")
    k(f"v_add_u32 {v(vt[3])}, {s(t0)}, {v(vt[0])}")
    k(f"s_lshl_b32 {s(t0)}, {s(sCG)}, 8")
    k(f"s_lshl_b32 {s(t1)}, {s(sCH)}, 7")
    k(f"s_add_u32 {s(t0)}, {s(t0)}, {s(t1)}")
    k(f"v_mul_u32_u24 {v(vt[4])}, 3840, {v(vt[3])}")
    k(f"v_add3_u32 {v(oW0[0])}, {v(vt[4])}, {v(vt[2])}, {s(t0)}")
    k(f"v_add_u32 {v(oW0[1])}, {8 * 3840 - 1024}, {v(oW0[0])}")
    k("s_waitcnt lgkmcnt(0)")
    srd(k, SX, pA, S_ * D_ * 2)
    srd(k, SW0, pA + 2, D_ * 3 * D_ * 2)

    lq = Q(k, "lgkmcnt", 15)
    vq = Q(k, "vmcnt", 63)

    def fill(n, gpath=False):
        slot = (n % NSL) * SL
        if n < 20:
            c = n // 2
            if n % 2 == 0:
                off, sr, so = oX, SX, c * 128
            else:
                if gpath:
                    return []
                off, sr, so = oW0, SW0, c * 64 * 3840
        elif n < 30:
            off, sr, so = oW1, SW1, (n - 20) * 64 * 3072
        elif n < 35:
            off, sr, so = oW2, SW1, (n - 30) * 128 * 3072
        else:
            return []

        def a():
            k(f"s_add_u32 m0, {s(sW2K)}, {slot}")
            k(f"s_mov_b32 {s(sSO)}, {so}")
            vq.issue(f"f{n}", f"buffer_load_dwordx4 {v(off[0])}, {s(sr, 4)}, {s(sSO)} offen lds")

        def b():
            vq.issue(f"f{n}", f"buffer_load_dwordx4 {v(off[1])}, {s(sr, 4)}, {s(sSO)} offen offset:1024 lds")
        return [a, b]

    def setup2():
        k(f"v_and_b32 {v(vI)}, 31, v0")
        k(f"v_bfe_u32 {v(vH)}, v0, 5, 1")
        k(f"v_lshlrev_b32 {v(vL16)}, 4, {v(vL)}")
        srd(k, SO, pWS, WS_SIZE)
        k(f"s_cmp_eq_u32 {s(sCH)}, 1")
        k(f"s_cselect_b32 {s(t0)}, {s(pB + 2)}, {s(pB)}")
        k(f"s_cselect_b32 {s(t1)}, {s(pB + 3)}, {s(pB + 1)}")
        srd(k, SW1, t0, D_ * F_ * 2)
        k(f"s_mul_i32 {s(t0)}, {s(sCG)}, 192")
        k(f"s_bitcmp1_b32 {s(sCG)}, 0")
        k(f"s_cselect_b32 {s(t2)}, 64, 0")
        k(f"s_cselect_b32 {s(t3)}, 0, 128")
        k(f"s_add_u32 {s(t2)}, {s(t2)}, {s(t0)}")
        k(f"s_add_u32 {s(t3)}, {s(t3)}, {s(t0)}")
        k(f"v_mul_u32_u24 {v(vt[4])}, 3072, {v(vt[3])}")
        k(f"v_add3_u32 {v(oW1[0])}, {v(vt[4])}, {v(vt[2])}, {s(t2)}")
        k(f"v_add_u32 {v(oW1[1])}, {8 * 3072 - 1024}, {v(oW1[0])}")
        k(f"v_lshrrev_b32 {v(vt[4])}, 2, {v(vL)}")
        k(f"s_lshl_b32 {s(t0)}, {s(sRG)}, 5")
        k(f"v_add_u32 {v(vt[4])}, {s(t0)}, {v(vt[4])}")
        k(f"v_mul_u32_u24 {v(vt[4])}, 3072, {v(vt[4])}")
        k(f"v_and_b32 {v(vt[5])}, 3, {v(vL)}")
        k(f"s_lshl_b32 {s(t0)}, {s(sCH)}, 1")
        k(f"v_xor_b32 {v(vt[5])}, {s(t0)}, {v(vt[5])}")
        k(f"v_lshlrev_b32 {v(vt[5])}, 4, {v(vt[5])}")
        k(f"v_add3_u32 {v(oW2[0])}, {v(vt[4])}, {v(vt[5])}, {s(t3)}")
        k(f"v_add_u32 {v(oW2[1])}, {16 * 3072 - 1024}, {v(oW2[0])}")
        k(f"s_lshl_b32 {s(t0)}, {s(sRB)}, 2")
        k(f"s_add_u32 {s(t0)}, {s(t0)}, {s(sRG)}")
        k(f"s_mul_i32 {s(sQO)}, {s(t0)}, {TT_QKV}")
        k(f"s_lshl_b32 {s(t1)}, {s(sCG)}, 13")
        k(f"s_add_u32 {s(sQO)}, {s(sQO)}, {s(t1)}")
        k(f"s_lshl_b32 {s(t1)}, {s(sCH)}, 11")
        k(f"s_add_u32 {s(sQO)}, {s(sQO)}, {s(t1)}")
        k(f"s_cmp_eq_u32 {s(sCG)}, 15")
        k(f"s_cselect_b32 {s(sQO)}, {OOB}, {s(sQO)}")
        k(f"s_add_u32 {s(sQO2)}, {s(sQO)}, 4096")
        k(f"s_cmp_lt_u32 {s(sCG)}, 5")
        k(f"s_cselect_b32 {s(sSC)}, {f32(QSCALE)}, 1.0")
        k(f"s_mul_i32 {s(t0)}, {s(t0)}, {TT_H}")
        k(f"s_add_u32 {s(t0)}, {s(t0)}, {WS_H}")
        k(f"s_lshl_b32 {s(t2)}, {s(t2)}, 5")
        k(f"s_add_u32 {s(sHO1)}, {s(t0)}, {s(t2)}")
        k(f"s_add_u32 {s(sHO1)}, {s(sHO1)}, {s(t1)}")
        k(f"s_lshl_b32 {s(t3)}, {s(t3)}, 5")
        k(f"s_add_u32 {s(sHO2)}, {s(t0)}, {s(t3)}")
        k(f"s_lshr_b32 {s(t1)}, {s(t1)}, 1")
        k(f"s_add_u32 {s(sHO2)}, {s(sHO2)}, {s(t1)}")
        k(f"s_mov_b32 {s(sK2)}, {f32(GK2)}")
        k(f"v_mov_b32 {v(vK1)}, {f32(GK1)}")
        k(f"s_lshl_b32 {s(t0)}, {s(sRG)}, 12")
        k(f"v_lshlrev_b32 {v(vt[4])}, 7, {v(vI)}")
        k(f"v_bfe_u32 {v(vt[5])}, {v(vI)}, 1, 3")
        k(f"v_xor_b32 {v(vt[5])}, {v(vt[5])}, {v(vH)}")
        k(f"v_lshlrev_b32 {v(vt[5])}, 4, {v(vt[5])}")
        k(f"v_add3_u32 {v(vXA[0][0])}, {v(vt[4])}, {v(vt[5])}, {s(t0)}")
        for ks in range(1, 4):
            k(f"v_xor_b32 {v(vXA[0][ks])}, {32 * ks}, {v(vXA[0][0])}")
        for b in range(1, 3):
            for ks in range(4):
                k(f"v_add_u32 {v(vXA[b][ks])}, {65536 * b}, {v(vXA[0][ks])}")
        k(f"v_bfe_u32 {v(vt[0])}, {v(vL)}, 2, 2")
        k(f"v_lshl_add_u32 {v(vt[1])}, {v(vH)}, 3, {v(vt[0])}")
        k(f"v_bfe_u32 {v(vt[2])}, {v(vL)}, 4, 1")
        k(f"v_and_b32 {v(vt[3])}, 1, {v(vL)}")
        k(f"v_bfe_u32 {v(vt[4])}, {v(vL)}, 1, 1")
        k(f"v_lshlrev_b32 {v(vt[4])}, 3, {v(vt[4])}")
        k(f"v_lshl_add_u32 {v(vt[5])}, {v(vt[2])}, 1, {v(vt[3])}")
        k(f"v_bfe_u32 {v(vt[6])}, {v(vL)}, 3, 1")
        k(f"v_xor_b32 {v(vt[6])}, {s(sCH)}, {v(vt[6])}")
        k(f"v_lshl_add_u32 {v(vt[6])}, {v(vt[6])}, 2, {v(vt[5])}")
        k(f"v_lshl_add_u32 {v(vt[6])}, {v(vt[6])}, 4, {v(vt[4])}")
        k(f"v_lshl_add_u32 {v(vW[0])}, {v(vt[1])}, 7, {v(vt[6])}")
        k(f"s_lshl_b32 {s(t0)}, {s(sCH)}, 1")
        k(f"v_xor_b32 {v(vt[6])}, {s(t0)}, {v(vt[5])}")
        k(f"v_lshl_add_u32 {v(vt[6])}, {v(vt[6])}, 4, {v(vt[4])}")
        k(f"v_lshl_add_u32 {v(vt[6])}, {v(vt[1])}, 6, {v(vt[6])}")
        k(f"v_lshl_add_u32 {v(vW2[0])}, {v(vt[2])}, 13, {v(vt[6])}")
        for b in range(1, 3):
            k(f"v_add_u32 {v(vW[b])}, {65536 * b}, {v(vW[0])}")
            k(f"v_add_u32 {v(vW2[b])}, {65536 * b}, {v(vW2[0])}")
        k(f"s_lshl_b32 {s(t0)}, {s(sW)}, 8")
        k(f"s_add_u32 {s(t0)}, {s(t0)}, s2")
        k(f"s_mul_i32 {s(t1)}, {s(t0)}, 52429")
        k(f"s_lshr_b32 {s(t1)}, {s(t1)}, 19")
        k(f"s_mul_i32 {s(t2)}, {s(t1)}, 10")
        k(f"s_sub_u32 {s(t2)}, {s(t0)}, {s(t2)}")
        k(f"s_mul_i32 {s(sJD)}, {s(t1)}, {2 * KP}")
        k(f"s_lshl_b32 {s(t3)}, {s(t2)}, 10")
        k(f"s_add_u32 {s(sJD)}, {s(sJD)}, {s(t3)}")
        k(f"s_add_u32 {s(sJD)}, {s(sJD)}, {WS_WT}")
        k(f"s_cmp_ge_u32 {s(t1)}, 40")
        k(f"s_cselect_b32 {s(SJ)}, {s(pB + 4)}, {s(pWO)}")
        k(f"s_cselect_b32 {s(t3)}, {s(pB + 5)}, {s(pWO + 1)}")
        k(f"s_cselect_b32 {s(SJ + 2)}, {(F_ - D_) * D_ * 2}, 0")
        k(f"s_cselect_b32 {s(sJS)}, 40, 0")
        k(f"s_and_b32 {s(SJ + 1)}, {s(t3)}, 0xffff")
        k(f"s_add_u32 {s(SJ + 2)}, {s(SJ + 2)}, {D_ * D_ * 2}")
        k(f"s_mov_b32 {s(SJ + 3)}, 0x00020000")
        k(f"s_sub_u32 {s(t1)}, {s(t1)}, {s(sJS)}")
        k(f"s_mul_i32 {s(sJS)}, {s(t1)}, {16 * 1280}")
        k(f"s_lshl_b32 {s(t2)}, {s(t2)}, 7")
        k(f"s_add_u32 {s(sJS)}, {s(sJS)}, {s(t2)}")
        k(f"s_cmp_ge_u32 {s(t0)}, 1360")
        k(f"s_cselect_b32 {s(sJS)}, {OOB}, {s(sJS)}")
        k(f"s_cselect_b32 {s(sJD)}, {OOB}, {s(sJD)}")
        k(f"v_lshrrev_b32 {v(vt[5])}, 3, {v(vL)}")
        k(f"v_mul_u32_u24 {v(vt[5])}, 1280, {v(vt[5])}")
        k(f"v_and_b32 {v(vt[6])}, 7, {v(vL)}")
        k(f"v_lshl_add_u32 {v(oJ[0])}, {v(vt[6])}, 4, {v(vt[5])}")
        k(f"v_add_u32 {v(oJ[1])}, {8 * 1280 - 1024}, {v(oJ[0])}")
        k(f"v_lshrrev_b32 {v(vt[5])}, 4, {v(vL)}")
        k(f"v_lshlrev_b32 {v(vt[5])}, 5, {v(vt[5])}")
        k(f"v_lshl_add_u32 {v(vt[5])}, {v(vt[0])}, 7, {v(vt[5])}")
        k(f"v_and_b32 {v(vt[6])}, 3, {v(vL)}")
        k(f"v_lshl_add_u32 {v(vt[5])}, {v(vt[6])}, 3, {v(vt[5])}")
        k(f"s_add_u32 {s(t0)}, {s(sW2K)}, {SIDE}")
        k(f"v_add_u32 {v(vJR)}, {s(t0)}, {v(vt[5])}")

    def lds(regs, n, off):
        a = (n % NSL) * SL + off
        return regs[a >> 16], a & 0xffff

    class Step:
        pass

    def wreads(st, n, ks):
        out = []
        for sub in range(2):
            for e in range(2):
                r, o = lds(vW, n, ks * 2048 + e * 512 + sub * 8192)
                out.append((f"w{st}{sub}", f"ds_read_b64_tr_b16 {v(WF[st][sub] + 2 * e, 2)}, {v(r)} offset:{o}"))
        return out

    def xread(c, ks):
        r, o = lds([vXA[b][ks] for b in range(3)], 2 * c, 0)
        return (f"x{c}_{ks}", f"ds_read_b128 {v(X + 16 * c + 4 * ks, 4)}, {v(r)} offset:{o}")

    def p0_steps(gpath):
        out = []
        for c in range(10):
            for ks in range(4):
                p = Step()
                st = ks % 2
                xr = X + 16 * c + 4 * ks
                first = c == 0 and ks == 0
                if not gpath:
                    w = wreads(st, 2 * c + 1, ks)
                    p.reads = w[:2] + [xread(c, ks)] + w[2:]
                    p.mf = [(f"{MF32} {v(ACC[t], 16)}, {v(WF[st][t], 4)}, {v(xr, 4)}, " + ("0" if first else v(ACC[t], 16)),
                             (f"w{st}{t}", f"x{c}_{ks}")) for t in range(2)]
                    p.need = (f"f{2 * c}", f"f{2 * c + 1}") if ks == 0 else None
                else:
                    p.reads = [(f"w{st}0", f"ds_read_b128 {v(WF[st][0], 4)}, {v(vGW)} offset:{(4 * c + ks) * 32}"), xread(c, ks)]
                    p.mf = [(f"{MF32} {v(ACC[0], 16)}, {v(WF[st][0], 4)}, {v(xr, 4)}, " + ("0" if first else v(ACC[0], 16)),
                             (f"w{st}0", f"x{c}_{ks}"))]
                    p.need = (f"f{2 * c}", "gw") if ks == 0 else None
                p.fills = [2 * c + 7, 2 * c + 8] if ks == 0 else []
                out.append(p)
        return out

    def p12_steps():
        out = []
        for c in range(10):
            for ks in range(4):
                p = Step()
                st = ks % 2
                xr = X + 16 * c + 4 * ks
                first = c == 0 and ks == 0
                p.reads = wreads(st, 20 + c, ks)
                p.mf = [(f"{MF32} {v(ACC[2 + t], 16)}, {v(WF[st][t], 4)}, {v(xr, 4)}, " + ("0" if first else v(ACC[2 + t], 16)),
                         (f"w{st}{t}",)) for t in range(2)]
                p.need = (f"f{20 + c}",) if ks == 0 else None
                p.fills = ([27, 28] if c == 0 else [28 + c]) if ks == 0 else []
                out.append(p)
        for c in range(5):
            for d in range(4):
                p = Step()
                st = d % 2
                p.reads, p.mf = [], []
                for t in range(2):
                    ks = 2 * d + t
                    for e in range(2):
                        r, o = lds(vW2, 30 + c, ks * 1024 + e * 256)
                        p.reads.append((f"w{st}{t}", f"ds_read_b64_tr_b16 {v(WF[st][t] + 2 * e, 2)}, {v(r)} offset:{o}"))
                    xr = X + 32 * c + 4 * ks
                    first = c == 0 and ks == 0
                    p.mf.append((f"{MF32} {v(ACC[0], 16)}, {v(WF[st][t], 4)}, {v(xr, 4)}, " + ("0" if first else v(ACC[0], 16)),
                                 (f"w{st}{t}",)))
                p.need = (f"f{30 + c}",) if d == 0 else None
                p.fills = []
                out.append(p)
        return out

    def emit(steps, after, fillers, gpath=False):
        fq = []
        for i, p in enumerate(steps):
            nx = steps[i + 1] if i + 1 < len(steps) else after
            fq += fillers.get(i, [])
            rate = fillers.get(("rate", i), fillers.get("rate", 3))
            rd = list(nx.reads) if nx else []
            dm = []
            for mi, (txt, tags) in enumerate(p.mf):
                bar = nx is not None and nx.need is not None and mi == 0
                if bar:
                    waits(k, lg=lq.all(), vm=vq.need(*nx.need))
                else:
                    lq.wait(*tags)
                k(txt)
                if bar:
                    k("s_barrier")
                    for n in nx.fills:
                        dm += fill(n, gpath)
                nr = len(rd) if mi == len(p.mf) - 1 else (len(rd) + 1) // 2
                for _ in range(nr):
                    lq.issue(*rd.pop(0))
                nd = len(dm) if mi == len(p.mf) - 1 else len(dm) // 2
                for _ in range(nd):
                    dm.pop(0)()
                for _ in range(rate):
                    if fq:
                        f = fq.pop(0)
                        if callable(f):
                            f()
                        else:
                            k(f)
        assert not fq, len(fq)

    P12 = p12_steps()
    k(f"s_cmp_eq_u32 {s(sCG)}, 15")
    k("s_cbranch_scc1 L_k1_g")
    for n in range(NSL):
        for f in fill(n):
            f()
    setup2()
    P0 = p0_steps(False)
    stamp(k, 1)
    waits(k, vm=vq.need(*P0[0].need))
    k("s_barrier")
    stamp(k, 2)
    for r in P0[0].reads:
        lq.issue(*r)
    emit(P0, P12[0], {})
    k.label("L_k1_p1")
    merge_l, merge_v = list(lq.q), list(vq.q)
    if DIAG:
        stamp(k, 3, lq)

    fl = {"rate": 3}
    ep = []
    for t in range(2):
        for hf in range(2):
            A = ACC[t] + 8 * hf
            ep += [f"v_mul_f32 {v(A + r)}, {s(sSC)}, {v(A + r)}" for r in range(8)]
            ep += [f"v_cvt_pk_bf16_f32 {v(A + c)}, {v(A + 2 * c)}, {v(A + 2 * c + 1)}" for c in range(4)]
            ep.append(lambda A=A, t=t, hf=hf: vq.issue("st", f"buffer_store_dwordx4 {v(A, 4)}, {v(vL16)}, {s(SO, 4)}, {s(sQO + t)} offen offset:{1024 * hf}"))
    fl[1] = ep

    def job_dma():
        k(f"s_add_u32 m0, {s(sW2K)}, {SIDE}")
        vq.issue("job", f"buffer_load_dwordx4 {v(oJ[0])}, {s(SJ, 4)}, {s(sJS)} offen lds")
        vq.issue("job", f"buffer_load_dwordx4 {v(oJ[1])}, {s(SJ, 4)}, {s(sJS)} offen offset:1024 lds")
    fl[13] = [job_dma]
    J = ACC[1]

    def job_rd():
        vq.wait("job")
        for q in range(4):
            lq.issue("jr", f"ds_read_b64_tr_b16 {v(J + 2 * q, 2)}, {v(vJR)} offset:{512 * q}")

    def job_st():
        lq.wait("jr")
        vq.issue("st", f"buffer_store_dwordx4 {v(J, 4)}, {v(vL16)}, {s(SO, 4)}, {s(sJD)} offen")
        k(f"s_add_u32 {s(sJD)}, {s(sJD)}, {KP}")
        vq.issue("st", f"buffer_store_dwordx4 {v(J + 4, 4)}, {v(vL16)}, {s(SO, 4)}, {s(sJD)} offen")
    fl[33] = [job_rd]
    fl[35] = [job_st]
    ge = []
    for hf in range(2):
        G, U = ACC[2] + 8 * hf, ACC[3] + 8 * hf
        ge += gelu_ops(G, U, ACC[1] + 8 * hf, 8, sK2, vK1)
        ge += [f"v_cvt_pk_bf16_f32 {v(G + c)}, {v(G + 2 * c)}, {v(G + 2 * c + 1)}" for c in range(4)]
        ge.append(lambda G=G, hf=hf: vq.issue("st", f"buffer_store_dwordx4 {v(G, 4)}, {v(vL16)}, {s(SO, 4)}, {s(sHO1)} offen offset:{1024 * hf}"))
    fl[41] = ge
    for i in range(40, 60):
        fl[("rate", i)] = 4
    if DIAG:
        fl[40] = [lambda: stamp(k, 4, lq)]
    emit(P12, None, fl)
    stamp(k, 5, lq)
    G = ACC[0]
    for t in gelu_ops(G, G + 8, ACC[1], 8, sK2, vK1):
        k(t)
    for c in range(4):
        k(f"v_cvt_pk_bf16_f32 {v(G + c)}, {v(G + 2 * c)}, {v(G + 2 * c + 1)}")
    k(f"buffer_store_dwordx4 {v(G, 4)}, {v(vL16)}, {s(SO, 4)}, {s(sHO2)} offen")
    endpgm(k, 0, 8)

    k.label("L_k1_g")
    lq.q, vq.q = [], []
    srd(k, SW0, pB + 6, D_ * 2)
    k(f"v_lshlrev_b32 {v(vL16)}, 4, {v(vL)}")
    k(f"s_add_u32 m0, {s(sW2K)}, {SIDE}")
    vq.issue("gw", f"buffer_load_dwordx4 {v(vL16)}, {s(SW0, 4)}, 0 offen lds")
    vq.issue("gw", f"buffer_load_dwordx4 {v(vL16)}, {s(SW0, 4)}, 0 offen offset:1024 lds")
    for n in range(NSL):
        for f in fill(n, True):
            f()
    setup2()
    k(f"s_add_u32 {s(t0)}, {s(sW2K)}, {SIDE}")
    k(f"v_lshlrev_b32 {v(vGW)}, 4, {v(vH)}")
    k(f"v_add_u32 {v(vGW)}, {s(t0)}, {v(vGW)}")
    PG = p0_steps(True)
    stamp(k, 1)
    waits(k, vm=vq.need(*PG[0].need))
    k("s_barrier")
    stamp(k, 2)
    for r in PG[0].reads:
        lq.issue(*r)
    emit(PG, P12[0], {}, gpath=True)
    assert lq.q == merge_l and vq.q == merge_v, (lq.q, merge_l, vq.q, merge_v)
    g = ACC[0]
    k(f"s_mov_b32 {s(t1)}, {f32(-LOG2E)}")
    k(f"s_lshl_b32 {s(t0)}, {s(sRB)}, 2")
    k(f"s_add_u32 {s(t0)}, {s(t0)}, {s(sRG)}")
    k(f"s_lshl_b32 {s(t0)}, {s(t0)}, 7")
    k(f"s_add_u32 {s(t0)}, {s(t0)}, {WS_G}")
    k(f"v_lshlrev_b32 {v(g + 1)}, 2, {v(vI)}")
    k(f"v_cvt_pk_bf16_f32 {v(g)}, {v(g)}, {v(g)}")
    k(f"v_lshlrev_b32 {v(g)}, 16, {v(g)}")
    k(f"v_mul_f32 {v(g)}, {s(t1)}, {v(g)}")
    k(f"v_exp_f32 {v(g)}, {v(g)}")
    k(f"v_add_f32 {v(g)}, 1.0, {v(g)}")
    k(f"v_rcp_f32 {v(g)}, {v(g)}")
    k(f"v_cvt_pk_bf16_f32 {v(g)}, {v(g)}, {v(g)}")
    k(f"v_lshlrev_b32 {v(g)}, 16, {v(g)}")
    k(f"buffer_store_dword {v(g)}, {v(g + 1)}, {s(SO, 4)}, {s(t0)} offen")
    k("s_branch L_k1_p1")
    k.label("L_k1_end")
    k("s_endpgm")
    return name, 256, 60


def gen_k2(k):
    name = "k2_kernel"
    TS = 3136
    CH = 8 * TS
    STG = 2 * CH
    FLG = STG + 65536
    SW_ = 8
    sW, sKH, sQG, sHEAD, sQB, sODD = 12, 13, 14, 15, 16, 17
    sKO, sKO2, sM0, sPASS, sWD, sWDc, sBO, sHO, sQO = 18, 19, 20, 21, 22, 23, 24, 25, 26
    t0, t1, t2, t3 = 28, 29, 30, 31
    sMASK, sTMP = 32, 34
    sCNT = 36
    kernel_head(k, name)
    k("s_cmp_ge_u32 s2, 256")
    k("s_cbranch_scc1 L_k2_end")
    diag_begin(k)
    k(f"s_load_dwordx2 s[4:5], s[0:1], {KA_WS}")
    va = Alloc(1, 256)
    vL = va(); vI = va(); vH = va(); vL16 = va()
    vt = [va() for _ in range(6)]
    vD = [va() for _ in range(3)]
    vK1 = va(); vK2 = va()
    vV = [va() for _ in range(4)]
    vWD = va(); vSW = va(); vSR = va(); vBS = va(); vQ2 = va()
    MXP = [va(2) for _ in range(2)]
    Q1 = [va(4) for _ in range(2)]
    Q2 = [va(2) for _ in range(2)]
    KF1 = va(4); KF2 = va(2)
    VF = [va(4) for _ in range(2)]
    P = [va(8, 4) for _ in range(2)]
    SS = [va(16, 4) for _ in range(2)]
    O = [va(16, 4) for _ in range(2)]
    HF = [va(4) for _ in range(12)]
    WDF = [va(4) for _ in range(6)]
    BA = va(16, 4)
    RT = va(16, 4)
    vPF = va()
    k(f"v_lshrrev_b32 {v(vt[0])}, 6, v0")
    k(f"v_and_b32 {v(vL)}, 63, v0")
    k(f"v_readfirstlane_b32 {s(sW)}, {v(vt[0])}")
    k(f"v_and_b32 {v(vI)}, 31, v0")
    k(f"v_bfe_u32 {v(vH)}, v0, 5, 1")
    k(f"v_lshlrev_b32 {v(vL16)}, 4, {v(vL)}")
    k(f"s_and_b32 {s(t0)}, s2, 7")
    k(f"s_lshl_b32 {s(t0)}, {s(t0)}, 2")
    k(f"s_lshr_b32 {s(t1)}, s2, 6")
    k(f"s_add_u32 {s(sHEAD)}, {s(t0)}, {s(t1)}")
    k(f"s_bfe_u32 {s(sQB)}, s2, 0x30003")
    k(f"s_lshr_b32 {s(sKH)}, {s(sW)}, 2")
    k(f"s_and_b32 {s(sQG)}, {s(sW)}, 3")
    k(f"s_and_b32 {s(sODD)}, {s(sHEAD)}, 1")
    k(f"s_lshr_b32 {s(t2)}, {s(sHEAD)}, 1")
    k(f"s_mul_i32 {s(t2)}, {s(t2)}, 5")
    k(f"s_lshl_b32 {s(t3)}, {s(sODD)}, 1")
    k(f"s_add_u32 {s(t2)}, {s(t2)}, {s(t3)}")
    k(f"s_lshl_b32 {s(t2)}, {s(t2)}, 9")
    k(f"s_lshl_b32 {s(t0)}, {s(sQB)}, 3")
    k(f"s_lshl_b32 {s(t1)}, {s(sQG)}, 1")
    k(f"s_add_u32 {s(t0)}, {s(t0)}, {s(t1)}")
    k(f"s_mul_i32 {s(sQO)}, {s(t0)}, {TT_QKV}")
    k(f"s_add_u32 {s(sQO)}, {s(sQO)}, {s(t2)}")
    k(f"s_lshl_b32 {s(t0)}, {s(sODD)}, 9")
    k(f"v_add_u32 {v(vK1)}, {s(t0)}, {v(vL16)}")
    k(f"s_cmp_eq_u32 {s(sODD)}, 1")
    k(f"s_cselect_b32 {s(t1)}, 8, 1024")
    k(f"v_lshlrev_b32 {v(vt[0])}, 4, {v(vI)}")
    k(f"v_add_u32 {v(vQ2)}, {s(t1)}, {v(vt[0])}")
    k(f"s_mul_i32 {s(t0)}, {s(sW)}, {TT_QKV}")
    k(f"s_add_u32 {s(t0)}, {s(t0)}, {s(t2)}")
    k(f"s_add_u32 {s(t0)}, {s(t0)}, {80 * 512}")
    k(f"v_add_u32 {v(vD[0])}, {s(t0)}, {v(vL16)}")
    k(f"v_mul_u32_u24 {v(vt[1])}, {80 * 512 - 1024}, {v(vH)}")
    k(f"v_add3_u32 {v(vD[1])}, {v(vt[0])}, {v(vt[1])}, {s(t0)}")
    k(f"v_lshlrev_b32 {v(vt[1])}, 6, {v(vH)}")
    k(f"v_add_u32 {v(vt[1])}, 64, {v(vt[1])}")
    k(f"v_xor_b32 {v(vt[1])}, {v(vt[1])}, {v(vL16)}")
    k(f"s_add_u32 {s(t0)}, {s(t0)}, {80 * 512 + 512 - 2048}")
    k(f"v_add_u32 {v(vD[2])}, {s(t0)}, {v(vt[1])}")
    k(f"s_mul_i32 {s(sM0)}, {s(sW)}, {TS}")
    k(f"s_mov_b32 {s(sPASS)}, 0")
    for qt in range(2):
        for r in range(2):
            k(f"v_mov_b32 {v(MXP[qt] + r)}, 0")
    k("s_waitcnt lgkmcnt(0)")
    srd(k, SW_, 4, WS_SIZE)
    lq = Q(k, "lgkmcnt", 15)
    vq = Q(k, "vmcnt", 63)

    def dma_chunk(c):
        def a():
            k(f"s_add_u32 m0, {s(sM0)}, {(c % 2) * CH}")
            k(f"s_mov_b32 {s(sKO)}, {c * 8 * TT_QKV}")
            vq.issue(f"c{c}", f"buffer_load_dwordx4 {v(vD[0])}, {s(SW_, 4)}, {s(sKO)} offen lds")
        out = [a]
        for j in (1, 2):
            out.append(lambda j=j: vq.issue(f"c{c}", f"buffer_load_dwordx4 {v(vD[j])}, {s(SW_, 4)}, {s(sKO)} offen offset:{1024 * j} lds"))
        return out

    k.label("L_k2_start")
    k(f"s_add_u32 {s(t1)}, {s(sQO)}, {TT_QKV}")
    k(f"s_lshl_b32 {s(t0)}, {s(sODD)}, 9")
    k(f"v_add_u32 {v(vt[0])}, {s(t0)}, {v(vL16)}")
    for qt in range(2):
        so = sQO if qt == 0 else t1
        vq.issue("q", f"buffer_load_dwordx4 {v(Q1[qt], 4)}, {v(vt[0])}, {s(SW_, 4)}, {s(so)} offen")
        vq.issue("q", f"buffer_load_dwordx2 {v(Q2[qt], 2)}, {v(vQ2)}, {s(SW_, 4)}, {s(so)} offen")
    for c in range(2):
        for f in dma_chunk(c):
            f()
    k(f"s_and_b32 {s(t0)}, s2, 7")
    k(f"s_lshl_b32 {s(t0)}, {s(t0)}, 3")
    k(f"s_add_u32 {s(t0)}, {s(t0)}, {s(sQB)}")
    k(f"s_mul_i32 {s(sHO)}, {s(t0)}, {TT_H}")
    k(f"s_mul_i32 {s(t1)}, {s(sW)}, 12288")
    k(f"s_add_u32 {s(sHO)}, {s(sHO)}, {s(t1)}")
    k(f"s_add_u32 {s(sHO)}, {s(sHO)}, {WS_H}")
    k(f"s_lshr_b32 {s(t2)}, s2, 6")
    k(f"s_mul_i32 {s(sWD)}, {s(sW)}, {24 * KP}")
    k(f"s_mul_i32 {s(t1)}, {s(t2)}, 2560")
    k(f"s_add_u32 {s(sWD)}, {s(sWD)}, {s(t1)}")
    k(f"s_add_u32 {s(sWD)}, {s(sWD)}, {WS_WT + 80 * KP}")
    k(f"v_mul_u32_u24 {v(vt[0])}, {KP}, {v(vH)}")
    k(f"v_lshl_add_u32 {v(vWD)}, {v(vI)}, 4, {v(vt[0])}")
    k(f"s_lshl_b32 {s(t0)}, {s(t0)}, 3")
    k(f"s_add_u32 {s(t0)}, {s(t0)}, {s(sW)}")
    k(f"s_mul_i32 {s(sBO)}, {s(t0)}, {4 * 1280}")
    k(f"s_mul_i32 {s(t1)}, {s(t2)}, 320")
    k(f"s_add_u32 {s(sBO)}, {s(sBO)}, {s(t1)}")
    k(f"s_add_u32 {s(sBO)}, {s(sBO)}, {WS_B}")

    def wd_load(i):
        if i >= 60:
            return
        t, ks = divmod(i, 12)
        k(f"s_add_u32 {s(sWDc)}, {s(sWD)}, {ks * 2 * KP}")
        vq.issue(f"wd{i}", f"buffer_load_dwordx4 {v(WDF[i % 6], 4)}, {v(vWD)}, {s(SW_, 4)}, {s(sWDc)} offen offset:{512 * t}")

    for j in range(12):
        if j % 4 == 0 and j:
            k(f"s_add_u32 {s(sHO)}, {s(sHO)}, 4096")
        vq.issue(f"h{j}", f"buffer_load_dwordx4 {v(HF[j], 4)}, {v(vL16)}, {s(SW_, 4)}, {s(sHO)} offen offset:{1024 * (j % 4)}")
    for i in range(6):
        wd_load(i)
    k(f"s_mul_i32 {s(t3)}, {s(sKH)}, {TS}")
    k(f"s_lshl_b32 {s(t0)}, {s(sODD)}, 9")
    k(f"s_add_u32 {s(t0)}, {s(t0)}, {s(t3)}")
    k(f"v_add_u32 {v(vK1)}, {s(t0)}, {v(vL16)}")
    k(f"v_cmp_eq_u32 {s(sMASK, 2)}, 1, {v(vH)}")
    k(f"v_mov_b32 {v(vt[1])}, 3072")
    k(f"v_cndmask_b32 {v(vK2)}, {v(vQ2)}, {v(vt[1])}, {s(sMASK, 2)}")
    k(f"v_add_u32 {v(vK2)}, {s(t3)}, {v(vK2)}")
    k(f"v_and_b32 {v(vt[0])}, 1, {v(vL)}")
    k(f"v_add_u32 {v(vt[0])}, {s(sODD)}, {v(vt[0])}")
    k(f"v_bfe_u32 {v(vt[1])}, {v(vL)}, 1, 1")
    k(f"v_bfe_u32 {v(vt[2])}, {v(vL)}, 4, 1")
    k(f"v_cmp_eq_u32 vcc, 1, {v(vt[2])}")
    k(f"s_lshl_b32 {s(t0)}, {s(sODD)}, 1")
    k(f"s_sub_u32 {s(t0)}, 2, {s(t0)}")
    k(f"v_mov_b32 {v(vt[3])}, {s(t0)}")
    k(f"v_cndmask_b32 {v(vt[0])}, {v(vt[0])}, {v(vt[3])}, vcc")
    k(f"v_mov_b32 {v(vt[3])}, {s(sODD)}")
    k(f"v_cndmask_b32 {v(vt[1])}, {v(vt[1])}, {v(vt[3])}, vcc")
    k(f"v_bfe_u32 {v(vt[3])}, {v(vL)}, 2, 2")
    k(f"v_lshl_add_u32 {v(vt[3])}, {v(vH)}, 2, {v(vt[3])}")
    k(f"v_lshlrev_b32 {v(vt[4])}, 2, {v(vt[0])}")
    k(f"v_xor_b32 {v(vt[3])}, {v(vt[3])}, {v(vt[4])}")
    k(f"v_lshlrev_b32 {v(vt[3])}, 4, {v(vt[3])}")
    k(f"v_lshl_add_u32 {v(vt[3])}, {v(vt[1])}, 3, {v(vt[3])}")
    k(f"v_lshl_add_u32 {v(vt[3])}, {v(vt[0])}, 9, {v(vt[3])}")
    k(f"v_and_b32 {v(vt[4])}, 19, {v(vL)}")
    k(f"v_cmp_lt_u32 vcc, 16, {v(vt[4])}")
    k(f"v_mov_b32 {v(vt[5])}, {3072 - 1536}")
    k(f"s_add_u32 {s(t0)}, {s(t3)}, 1536")
    for q in range(4):
        k(f"v_xor_b32 {v(vt[4])}, {128 * q}, {v(vt[3])}")
        k(f"v_cndmask_b32 {v(vt[4])}, {v(vt[4])}, {v(vt[5])}, vcc")
        k(f"v_add_u32 {v(vV[q])}, {s(t0)}, {v(vt[4])}")
    k(f"v_and_b32 {v(vt[0])}, 15, {v(vL)}")
    k(f"v_mul_u32_u24 {v(vt[0])}, {TS}, {v(vt[0])}")
    k(f"v_mov_b32 {v(RT)}, 0x3f803f80")
    k(f"v_mov_b32 {v(RT + 1)}, 0x3f803f80")
    lq.issue("one", f"ds_write_b64 {v(vt[0])}, {v(RT, 2)} offset:3072")
    k(f"v_lshlrev_b32 {v(vt[0])}, 5, {v(vH)}")
    k(f"v_xor_b32 {v(vt[0])}, {v(vt[0])}, {v(vL16)}")
    k(f"s_lshl_b32 {s(t0)}, {s(sW)}, 12")
    k(f"s_add_u32 {s(t0)}, {s(t0)}, {STG}")
    k(f"v_add_u32 {v(vSW)}, {s(t0)}, {v(vt[0])}")
    k(f"v_lshrrev_b32 {v(vt[0])}, 4, {v(vL)}")
    k(f"s_lshl_b32 {s(t0)}, {s(sW)}, 2")
    k(f"v_add_u32 {v(vt[1])}, {s(t0)}, {v(vt[0])}")
    k(f"v_and_b32 {v(vt[2])}, 14, {v(vL)}")
    k(f"v_xor_b32 {v(vt[1])}, {v(vt[1])}, {v(vt[2])}")
    k(f"v_lshlrev_b32 {v(vt[1])}, 4, {v(vt[1])}")
    k(f"v_lshl_add_u32 {v(vt[1])}, {v(vt[2])}, 8, {v(vt[1])}")
    k(f"v_and_b32 {v(vt[2])}, 1, {v(vL)}")
    k(f"v_lshl_add_u32 {v(vt[1])}, {v(vt[2])}, 3, {v(vt[1])}")
    k(f"v_add_u32 {v(vSR)}, {STG}, {v(vt[1])}")
    k(f"v_mul_u32_u24 {v(vt[0])}, 1280, {v(vt[0])}")
    k(f"v_and_b32 {v(vt[2])}, 15, {v(vL)}")
    k(f"v_lshl_add_u32 {v(vBS)}, {v(vt[2])}, 2, {v(vt[0])}")
    stamp(k, 1, lq)
    waits(k, lg=lq.all(), vm=vq.need("q", "c0"))
    for qt in range(2):
        for r in range(2):
            k(f"v_cndmask_b32 {v(Q2[qt] + r)}, {v(Q2[qt] + r)}, {v(MXP[qt] + r)}, {s(sMASK, 2)}")
    k("s_barrier")
    stamp(k, 2, lq)

    def toff(n):
        c, j = divmod(n, 4)
        return (c % 2) * CH + 2 * j * TS

    def kread(n):
        lq.issue("k", f"ds_read_b128 {v(KF1, 4)}, {v(vK1)} offset:{toff(n)}")
        lq.issue("k", f"ds_read_b64 {v(KF2, 2)}, {v(vK2)} offset:{toff(n)}")

    def vread(n):
        for q in range(4):
            lq.issue(f"v{q // 2}", f"ds_read_b64_tr_b16 {v(VF[q // 2] + 2 * (q % 2), 2)}, {v(vV[q])} offset:{toff(n)}")

    def qk(qt):
        return [f"{MF32} {v(SS[qt], 16)}, {v(KF1, 4)}, {v(Q1[qt], 4)}, 0",
                f"v_mfma_f32_32x32x8_bf16 {v(SS[qt], 16)}, {v(KF2, 2)}, {v(Q2[qt], 2)}, {v(SS[qt], 16)}"]

    def pv(qt, first=False):
        return [f"{MF32} {v(O[qt], 16)}, {v(VF[t], 4)}, {v(P[qt] + 4 * t, 4)}, " + ("0" if first and t == 0 else v(O[qt], 16))
                for t in range(2)]

    def softmax_ops(qt):
        ops = []
        for r in range(16):
            ops.append(f"v_exp_f32 {v(SS[qt] + r)}, {v(SS[qt] + r)}")
            if r >= 3 and r % 2 == 1:
                c = (r - 3) // 2
                ops.append(f"v_cvt_pk_bf16_f32 {v(P[qt] + c)}, {v(SS[qt] + 2 * c)}, {v(SS[qt] + 2 * c + 1)}")
        ops.append(f"v_cvt_pk_bf16_f32 {v(P[qt] + 7)}, {v(SS[qt] + 14)}, {v(SS[qt] + 15)}")
        return ops

    PTS = [0, 5, 9, 13, 17, 21, 23]

    def phase(valu, slots):
        for i, t in enumerate(valu):
            if i in PTS:
                for x in slots[PTS.index(i)]:
                    if callable(x):
                        x()
                    else:
                        k(x)
            k(t)

    def gm(i):
        t, ks = divmod(i, 12)

        def f():
            waits(k, vm=vq.need(f"wd{i}", f"h{ks}"), lg=(lq.need("sw") if ks == 0 else None))
            k(f"{MF32} {v(BA, 16)}, {v(WDF[i % 6], 4)}, {v(HF[ks], 4)}, " + ("0" if ks == 0 else v(BA, 16)))
            wd_load(i + 6)
        return f

    def stg_write(t):
        def f():
            for g in range(4):
                if g:
                    k(f"v_xor_b32 {v(vt[g])}, {64 * g}, {v(vSW)}")
            for g in range(4):
                lq.issue("sw", f"ds_write_b128 {v(vt[g] if g else vSW)}, {v(BA + 4 * g, 4)} offset:{(t % 2) * 32768 + 1024 * g}")
        return f

    def stg_read(t):
        def f():
            for p in range(8):
                lq.issue("sr", f"ds_read_b64 {v(RT + 2 * p, 2)}, {v(vSR)} offset:{(t % 2) * 32768 + 4096 * p}")
        return f

    def stg_sum(t, part):
        def f():
            if part == 0:
                lq.wait("sr")
                for p in range(4):
                    for r in range(2):
                        k(f"v_add_f32 {v(RT + 2 * p + r)}, {v(RT + 2 * p + r)}, {v(RT + 8 + 2 * p + r)}")
            else:
                for p in range(2):
                    for r in range(2):
                        k(f"v_add_f32 {v(RT + 2 * p + r)}, {v(RT + 2 * p + r)}, {v(RT + 4 + 2 * p + r)}")
                for r in range(2):
                    k(f"v_add_f32 {v(RT + r)}, {v(RT + r)}, {v(RT + 2 + r)}")
                k(f"v_cvt_pk_bf16_f32 {v(RT)}, {v(RT)}, {v(RT + 1)}")
                vq.issue("st", f"buffer_store_dword {v(RT)}, {v(vBS)}, {s(SW_, 4)}, {s(sBO)} offen offset:{64 * t}")
        return f

    def wo_prefetch():
        k(f"s_lshr_b32 {s(t0)}, s2, 3")
        k(f"s_lshl_b32 {s(t0)}, {s(t0)}, 3")
        k(f"s_add_u32 {s(t0)}, {s(t0)}, {s(sW)}")
        k(f"s_mul_i32 {s(t0)}, {s(t0)}, {25 * 128}")
        k(f"s_add_u32 {s(t0)}, {s(t0)}, {WS_WT}")
        k(f"v_min_u32 {v(vt[0])}, 24, {v(vL)}")
        k(f"v_lshlrev_b32 {v(vt[0])}, 7, {v(vt[0])}")
        vq.issue("pf", f"buffer_load_dword {v(vPF)}, {v(vt[0])}, {s(SW_, 4)}, {s(t0)} offen")

    kread(0)
    lq.wait("k")
    for t in qk(0):
        k(t)
    NT = 32
    for n in range(NT):
        it, j = divmod(n, 4)
        ex = [[[], [], []], [[], [], []]]
        tg = it - 1
        if 0 <= tg < 5:
            ex[0][1].append(gm(12 * tg + 3 * j))
            ex[1][0].append(gm(12 * tg + 3 * j + 1))
            ex[1][1].append(gm(12 * tg + 3 * j + 2))
        head = []
        if j == 0 and 0 <= it - 2 < 5:
            head.append(stg_write(it - 2))
        if 0 <= it - 3 < 5:
            if j == 1:
                ex[0][0].append(stg_read(it - 3))
            if j == 2:
                ex[0][0].append(stg_sum(it - 3, 0))
            if j == 3:
                ex[0][0].append(stg_sum(it - 3, 1))
        if n == 25:
            ex[1][2].append(wo_prefetch)
        q = qk(1)
        p = pv(1, n == 1) if n > 0 else [None, None]
        kr = []
        if n + 1 < NT:
            if j == 3:
                kr.append(lambda it=it: waits(k, lg=lq.all(), vm=vq.need(f"c{it + 1}")))
                kr.append("s_barrier")
            kr.append(lambda n=n: kread(n + 1))
            if j == 3 and it + 2 < 8:
                d = dma_chunk(it + 2)
                ex[0][1] += d[:1]
                ex[0][2] += d[1:2]
                ex[1][2] += d[2:]
        s0 = [p[0]] if p[0] else []
        s1 = ([p[1]] if p[1] else []) + [lambda n=n: vread(n)] + head
        phase(softmax_ops(0), [s0, s1, [q[0]], [q[1]] + kr] + ex[0])
        p = pv(0, n == 0)
        q = qk(0)
        sq = [[lambda: lq.wait("k"), q[0]], [q[1]]] if n + 1 < NT else [[], []]
        phase(softmax_ops(1), [[lambda: lq.wait("v0"), p[0]], [lambda: lq.wait("v1"), p[1]]] + sq + ex[1])
        if DIAG and n in (3, 7, 23):
            stamp(k, 3 + (3, 7, 23).index(n), lq)
    for t in pv(1):
        k(t)
    stamp(k, 6, lq)
    k(f"s_mov_b32 {s(t0)}, {f32(2.0 ** 60)}")
    k(f"s_mov_b32 {s(t1)}, {f32(2.0 ** -60)}")
    k(f"v_mul_f32 {v(vt[0])}, 0, {v(O[0])}")
    for r in range(1, 12):
        k(f"v_fma_f32 {v(vt[0])}, {v(O[0] + r)}, 0, {v(vt[0])}")
    for r in range(12):
        k(f"v_fma_f32 {v(vt[0])}, {v(O[1] + r)}, 0, {v(vt[0])}")
    k(f"v_max_f32 {v(vt[1])}, {v(O[0] + 12)}, {v(O[1] + 12)}")
    k(f"v_min_f32 {v(vt[2])}, {v(O[0] + 12)}, {v(O[1] + 12)}")
    k(f"v_add_f32 {v(vt[1])}, {v(vt[1])}, {v(vt[0])}")
    k(f"v_cmp_nle_f32 vcc, {v(vt[1])}, {s(t0)}")
    k(f"v_cmp_nge_f32 {s(sTMP, 2)}, {v(vt[2])}, {s(t1)}")
    k(f"s_or_b64 vcc, vcc, {s(sTMP, 2)}")
    k(f"s_cmp_lg_u64 vcc, 0")
    k(f"s_cselect_b32 {s(t0)}, 1, 0")
    k(f"s_lshl_b32 {s(t1)}, {s(sW)}, 2")
    k(f"s_add_u32 {s(t1)}, {s(t1)}, {FLG}")
    k(f"v_mov_b32 {v(vt[0])}, {s(t0)}")
    k(f"v_mov_b32 {v(vt[1])}, {s(t1)}")
    k(f"ds_write_b32 {v(vt[1])}, {v(vt[0])}")
    k(f"s_lshl_b32 {s(t0)}, {s(sW)}, 12")
    k(f"s_add_u32 {s(t0)}, {s(t0)}, {STG + 32768}")
    k(f"v_add_u32 {v(vt[2])}, {s(t0)}, {v(vL16)}")
    k(f"s_xor_b32 {s(t0)}, {s(sW)}, 4")
    k(f"s_lshl_b32 {s(t0)}, {s(t0)}, 12")
    k(f"s_add_u32 {s(t0)}, {s(t0)}, {STG + 32768}")
    k(f"v_add_u32 {v(vt[3])}, {s(t0)}, {v(vL16)}")
    k(f"s_cmp_eq_u32 {s(sKH)}, 0")
    k("s_cbranch_scc1 L_k2_m0")
    for r in range(4):
        k(f"ds_write_b128 {v(vt[2])}, {v(O[0] + 4 * r, 4)} offset:{1024 * r}")
    for r in range(13):
        k(f"v_mov_b32 {v(O[0] + r)}, {v(O[1] + r)}")
    k("s_branch L_k2_m1")
    k.label("L_k2_m0")
    for r in range(4):
        k(f"ds_write_b128 {v(vt[2])}, {v(O[1] + 4 * r, 4)} offset:{1024 * r}")
    k.label("L_k2_m1")
    k(f"v_and_b32 {v(vt[4])}, 7, {v(vL)}")
    k(f"v_lshlrev_b32 {v(vt[4])}, 2, {v(vt[4])}")
    k(f"v_add_u32 {v(vt[4])}, {FLG}, {v(vt[4])}")
    k(f"s_lshl_b32 {s(t0)}, {s(sQB)}, 3")
    k(f"s_lshl_b32 {s(t1)}, {s(sQG)}, 1")
    k(f"s_add_u32 {s(t0)}, {s(t0)}, {s(t1)}")
    k(f"s_add_u32 {s(t0)}, {s(t0)}, {s(sKH)}")
    k(f"s_mul_i32 {s(t0)}, {s(t0)}, {TT_O}")
    k(f"s_lshr_b32 {s(t2)}, {s(sHEAD)}, 1")
    k(f"s_mul_i32 {s(t2)}, {s(t2)}, 5")
    k(f"s_lshl_b32 {s(t3)}, {s(sODD)}, 1")
    k(f"s_add_u32 {s(t2)}, {s(t2)}, {s(t3)}")
    k(f"s_lshl_b32 {s(t2)}, {s(t2)}, 9")
    k(f"s_add_u32 {s(t0)}, {s(t0)}, {s(t2)}")
    k(f"s_add_u32 {s(t0)}, {s(t0)}, {WS_O}")
    k(f"s_lshl_b32 {s(t1)}, {s(sODD)}, 9")
    k(f"s_add_u32 {s(t1)}, {s(t1)}, {s(t0)}")
    k("s_waitcnt lgkmcnt(0)")
    k("s_barrier")
    k(f"ds_read_b32 {v(vt[0])}, {v(vt[4])}")
    for r in range(4):
        k(f"ds_read_b128 {v(SS[0] + 4 * r, 4)}, {v(vt[3])} offset:{1024 * r}")
    k("s_waitcnt lgkmcnt(4)")
    k(f"v_cmp_ne_u32 vcc, 0, {v(vt[0])}")
    k(f"s_cmp_lg_u32 {s(sPASS)}, 0")
    k("s_cbranch_scc1 L_k2_fin")
    k("s_cbranch_vccnz L_k2_fb")
    k.label("L_k2_fin")
    k("s_waitcnt lgkmcnt(0)")
    k(f"v_add_f32 {v(vt[1])}, {v(O[0] + 12)}, {v(SS[0] + 12)}")
    k(f"v_rcp_f32 {v(vt[1])}, {v(vt[1])}")
    for r in range(12):
        k(f"v_add_f32 {v(O[0] + r)}, {v(O[0] + r)}, {v(SS[0] + r)}")
    for r in range(12):
        k(f"v_mul_f32 {v(O[0] + r)}, {v(O[0] + r)}, {v(vt[1])}")
    for c in range(6):
        k(f"v_cvt_pk_bf16_f32 {v(P[0] + c)}, {v(O[0] + 2 * c)}, {v(O[0] + 2 * c + 1)}")
    k(f"buffer_store_dwordx4 {v(P[0], 4)}, {v(vL16)}, {s(SW_, 4)}, {s(t1)} offen")
    k("s_mov_b64 exec, 0xffffffff")
    k(f"buffer_store_dwordx2 {v(P[0] + 4, 2)}, {v(vQ2)}, {s(SW_, 4)}, {s(t0)} offen")
    endpgm(k, 1, 8)

    k.label("L_k2_fb")
    MX = [O[0], O[1]]
    k("s_waitcnt vmcnt(0) lgkmcnt(0)")
    k(f"s_mov_b32 {s(sPASS)}, 1")
    for qt in range(2):
        k(f"v_mov_b32 {v(MX[qt])}, 0xff800000")
    k(f"s_mov_b32 {s(sCNT)}, 0")
    k(f"s_mov_b32 {s(sKO)}, 0")
    k.label("L_k2_mx")
    k("s_barrier")
    k(f"s_mov_b32 m0, {s(sM0)}")
    for j in range(3):
        k(f"buffer_load_dwordx4 {v(vD[j])}, {s(SW_, 4)}, {s(sKO)} offen offset:{1024 * j} lds")
    k(f"s_add_u32 {s(sKO)}, {s(sKO)}, {8 * TT_QKV}")
    k("s_waitcnt vmcnt(0)")
    k("s_barrier")
    for j in range(4):
        k(f"ds_read_b128 {v(KF1, 4)}, {v(vK1)} offset:{2 * j * TS}")
        k(f"ds_read_b64 {v(KF2, 2)}, {v(vK2)} offset:{2 * j * TS}")
        k("s_waitcnt lgkmcnt(0)")
        for qt in range(2):
            for t in qk(qt):
                k(t)
        for qt in range(2):
            for r in range(0, 16, 2):
                k(f"v_max3_f32 {v(MX[qt])}, {v(MX[qt])}, {v(SS[qt] + r)}, {v(SS[qt] + r + 1)}")
    k(f"s_add_u32 {s(sCNT)}, {s(sCNT)}, 1")
    k(f"s_cmp_lt_u32 {s(sCNT)}, 8")
    k("s_cbranch_scc1 L_k2_mx")
    k(f"ds_write_b32 {v(vt[2])}, {v(MX[0])}")
    k(f"ds_write_b32 {v(vt[2])}, {v(MX[1])} offset:4")
    k("s_waitcnt lgkmcnt(0)")
    k("s_barrier")
    k(f"ds_read_b64 {v(KF2, 2)}, {v(vt[3])}")
    k("s_waitcnt lgkmcnt(0)")
    for qt in range(2):
        m = MX[qt]
        k(f"v_max_f32 {v(m)}, {v(m)}, {v(KF2 + qt)}")
        k(f"v_mov_b32 {v(vt[0])}, {v(m)}")
        k(f"v_permlane32_swap_b32 {v(vt[0])}, {v(m)}")
        k(f"v_max_f32 {v(m)}, {v(m)}, {v(vt[0])}")
        k(f"v_sub_f32 {v(m)}, 0, {v(m)}")
        k(f"v_and_b32 {v(vt[0])}, 0xffff0000, {v(m)}")
        k(f"v_sub_f32 {v(vt[1])}, {v(m)}, {v(vt[0])}")
        k(f"v_and_b32 {v(vt[4])}, 0xffff0000, {v(vt[1])}")
        k(f"v_sub_f32 {v(vt[1])}, {v(vt[1])}, {v(vt[4])}")
        k(f"v_lshrrev_b32 {v(vt[0])}, 16, {v(vt[0])}")
        k(f"v_or_b32 {v(MXP[qt])}, {v(vt[0])}, {v(vt[4])}")
        k(f"v_lshrrev_b32 {v(MXP[qt] + 1)}, 16, {v(vt[1])}")
    k("s_barrier")
    k("s_branch L_k2_start")
    k.label("L_k2_end")
    k("s_endpgm")
    return name, va.hi, 40


def gen_k3(k):
    name = "k3_kernel"
    SWS, SOUT = 8, 12
    sW, sRT, sCT, sSO, sAO, sM = 16, 17, 18, 19, 20, 21
    t0, t1, t2, t3 = 24, 25, 26, 27
    kernel_head(k, name)
    k("s_cmp_ge_u32 s2, 256")
    k("s_cbranch_scc1 L_k3_end")
    diag_begin(k)
    k(f"s_load_dwordx2 s[4:5], s[0:1], {KA_WS}")
    k(f"s_load_dwordx2 s[6:7], s[0:1], {KA_OUT}")
    va = Alloc(1, 256)
    vL = va()
    vt = [va() for _ in range(6)]
    vD = [va() for _ in range(5)]
    vA = va(); vB = [va(), va()]; vG = va(); vO = va(); vO2 = va()
    AF = [va(4) for _ in range(20)]
    BF = [[va(4) for _ in range(5)] for _ in range(2)]
    ACC = [va(4) for _ in range(5)]
    BB = va(12, 4)
    k(f"v_lshrrev_b32 {v(vt[0])}, 6, v0")
    k(f"v_and_b32 {v(vL)}, 63, v0")
    k(f"v_readfirstlane_b32 {s(sW)}, {v(vt[0])}")
    k(f"s_and_b32 {s(t0)}, s2, 7")
    k(f"s_lshl_b32 {s(t0)}, {s(t0)}, 2")
    k(f"s_lshr_b32 {s(t1)}, s2, 6")
    k(f"s_add_u32 {s(sRT)}, {s(t0)}, {s(t1)}")
    k(f"s_bfe_u32 {s(sCT)}, s2, 0x30003")
    k(f"v_lshrrev_b32 {v(vt[0])}, 4, {v(vL)}")
    k(f"v_and_b32 {v(vt[1])}, 15, {v(vL)}")
    k(f"v_lshlrev_b32 {v(vt[2])}, 4, {v(vt[1])}")
    k(f"v_lshl_add_u32 {v(vA)}, {v(vt[0])}, 9, {v(vt[2])}")
    k(f"s_lshl_b32 {s(t0)}, {s(sRT)}, 1")
    k(f"s_lshr_b32 {s(t1)}, {s(sW)}, 1")
    k(f"s_add_u32 {s(t0)}, {s(t0)}, {s(t1)}")
    k(f"s_mul_i32 {s(sAO)}, {s(t0)}, {TT_O}")
    k(f"s_and_b32 {s(t1)}, {s(sW)}, 1")
    k(f"s_lshl_b32 {s(t1)}, {s(t1)}, 8")
    k(f"s_add_u32 {s(sAO)}, {s(sAO)}, {s(t1)}")
    k(f"s_add_u32 {s(sAO)}, {s(sAO)}, {WS_O}")
    k(f"v_and_b32 {v(vt[3])}, 12, {v(vL)}")
    k(f"v_add_u32 {v(vt[3])}, {v(vt[3])}, {v(vt[1])}")
    k(f"s_mul_i32 {s(t0)}, {s(sCT)}, 1280")
    for j in range(5):
        k(f"v_add_u32 {v(vt[4])}, {4 * j}, {v(vt[0])}")
        k(f"v_mul_u32_u24 {v(vt[5])}, 205, {v(vt[4])}")
        k(f"v_lshrrev_b32 {v(vt[5])}, 10, {v(vt[5])}")
        k(f"v_mad_i32_i24 {v(vt[4])}, {v(vt[5])}, -5, {v(vt[4])}")
        k(f"v_mul_u32_u24 {v(vD[j])}, {KP}, {v(vt[5])}")
        k(f"v_cmp_eq_u32 vcc, 4, {v(vt[4])}")
        k(f"v_cndmask_b32 {v(vt[5])}, {v(vt[3])}, {v(vt[1])}, vcc")
        k(f"v_lshl_add_u32 {v(vD[j])}, {v(vt[5])}, 4, {v(vD[j])}")
        k(f"v_lshrrev_b32 {v(vt[5])}, 1, {v(vt[4])}")
        k(f"v_lshl_add_u32 {v(vD[j])}, {v(vt[5])}, 9, {v(vD[j])}")
        k(f"v_and_b32 {v(vt[5])}, 1, {v(vt[4])}")
        k(f"v_lshl_add_u32 {v(vD[j])}, {v(vt[5])}, 6, {v(vD[j])}")
    k(f"s_mul_i32 {s(sSO)}, {s(sW)}, {4 * KP}")
    k(f"s_add_u32 {s(sSO)}, {s(sSO)}, {s(t0)}")
    k(f"s_add_u32 {s(sSO)}, {s(sSO)}, {WS_WT}")
    k(f"s_mul_i32 {s(sM)}, {s(sW)}, 5120")
    k("s_waitcnt lgkmcnt(0)")
    srd(k, SWS, 4, WS_SIZE)
    lq = Q(k, "lgkmcnt", 15)
    vq = Q(k, "vmcnt", 63)
    for G in range(5):
        for j in range(5):
            k(f"s_add_u32 m0, {s(sM)}, {G * 20480 + j * 1024}")
            vq.issue(f"g{G}", f"buffer_load_dwordx4 {v(vD[j])}, {s(SWS, 4)}, {s(sSO)} offen lds")
        k(f"s_add_u32 {s(sSO)}, {s(sSO)}, {16 * KP}")
        for q in range(4):
            vq.issue(f"g{G}", f"buffer_load_dwordx4 {v(AF[4 * G + q], 4)}, {v(vA)}, {s(SWS, 4)}, {s(sAO)} offen offset:{2048 * (q % 2)}")
            if q % 2:
                k(f"s_add_u32 {s(sAO)}, {s(sAO)}, 4096")
    srd(k, SOUT, 6, S_ * D_ * 2)
    k(f"s_lshl_b32 {s(t0)}, {s(sRT)}, 2")
    k(f"s_add_u32 {s(t0)}, {s(t0)}, {s(sW)}")
    k(f"s_lshl_b32 {s(t0)}, {s(t0)}, 4")
    k(f"v_add_u32 {v(vt[2])}, {s(t0)}, {v(vt[1])}")
    k(f"v_lshlrev_b32 {v(vt[3])}, 2, {v(vt[2])}")
    k(f"v_mul_u32_u24 {v(vt[2])}, 1280, {v(vt[2])}")
    k(f"v_lshl_add_u32 {v(vO)}, {v(vt[0])}, 4, {v(vt[2])}")
    k(f"v_lshl_add_u32 {v(vO2)}, {v(vt[0])}, 3, {v(vt[2])}")
    k(f"s_mul_i32 {s(t1)}, {s(sCT)}, 160")
    k(f"s_add_u32 {s(t2)}, {s(t1)}, {WS_B}")
    k(f"s_mov_b32 {s(t3)}, {WS_G}")
    vq.issue("e", f"buffer_load_dword {v(vG)}, {v(vt[3])}, {s(SWS, 4)}, {s(t3)} offen")
    vq.issue("e", f"buffer_load_dwordx4 {v(BB, 4)}, {v(vO)}, {s(SWS, 4)}, {s(t2)} offen")
    vq.issue("e", f"buffer_load_dwordx4 {v(BB + 4, 4)}, {v(vO)}, {s(SWS, 4)}, {s(t2)} offen offset:64")
    vq.issue("e", f"buffer_load_dwordx2 {v(BB + 8, 2)}, {v(vO2)}, {s(SWS, 4)}, {s(t2)} offen offset:128")
    k(f"v_mul_u32_u24 {v(vt[2])}, 1280, {v(vt[0])}")
    k(f"v_lshl_add_u32 {v(vB[0])}, {v(vt[1])}, 4, {v(vt[2])}")
    k(f"v_add_u32 {v(vB[1])}, {12 * 5120}, {v(vB[0])}")
    stamp(k, 1, lq)

    def b_reads(ks):
        st = ks % 2
        r, o = (vB[0], ks * 5120) if ks < 12 else (vB[1], (ks - 12) * 5120)
        return [(f"b{st}{t}", f"ds_read_b128 {v(BF[st][t], 4)}, {v(r)} offset:{o + 256 * t}") for t in range(5)]

    vq.wait("g0")
    k("s_barrier")
    stamp(k, 2, lq)
    for r in b_reads(0):
        lq.issue(*r)
    for ks in range(20):
        st = ks % 2
        nxt = b_reads(ks + 1) if ks + 1 < 20 else []
        for t in range(5):
            if t == 0 and (ks + 1) % 4 == 0 and nxt:
                waits(k, lg=lq.need(f"b{st}{t}"), vm=vq.need(f"g{(ks + 1) // 4}"))
            else:
                lq.wait(f"b{st}{t}")
            k(f"v_mfma_f32_16x16x32_bf16 {v(ACC[t], 4)}, {v(BF[st][t], 4)}, {v(AF[ks], 4)}, " + ("0" if ks == 0 else v(ACC[t], 4)))
            if t == 0 and (ks + 1) % 4 == 0 and nxt:
                k("s_barrier")
            if nxt:
                lq.issue(*nxt.pop(0))
    stamp(k, 3, lq)
    vq.wait("e")
    k(f"v_sub_f32 {v(vt[0])}, 1.0, {v(vG)}")
    T = AF[0]
    for c in range(10):
        k(f"v_lshlrev_b32 {v(T + 2 * c)}, 16, {v(BB + c)}")
        k(f"v_and_b32 {v(T + 2 * c + 1)}, 0xffff0000, {v(BB + c)}")
    for c in range(20):
        k(f"v_mul_f32 {v(T + c)}, {v(T + c)}, {v(vt[0])}")
    for c in range(20):
        k(f"v_fmac_f32 {v(T + c)}, {v(ACC[c // 4] + c % 4)}, {v(vG)}")
    for c in range(10):
        k(f"v_cvt_pk_bf16_f32 {v(BB + c)}, {v(T + 2 * c)}, {v(T + 2 * c + 1)}")
    k(f"buffer_store_dwordx4 {v(BB, 4)}, {v(vO)}, {s(SOUT, 4)}, {s(t1)} offen")
    k(f"buffer_store_dwordx4 {v(BB + 4, 4)}, {v(vO)}, {s(SOUT, 4)}, {s(t1)} offen offset:64")
    k(f"buffer_store_dwordx2 {v(BB + 8, 2)}, {v(vO2)}, {s(SOUT, 4)}, {s(t1)} offen offset:128")
    endpgm(k, 2, 4)
    k.label("L_k3_end")
    k("s_endpgm")
    return name, va.hi, 32


if __name__ == "__main__":
    launches = [
        "; @launch kernel=k1_kernel grid=(256,1,1) block=(512,1,1) lds=163840",
        "; @launch kernel=k2_kernel grid=(256,1,1) block=(512,1,1) lds=115776",
        "; @launch kernel=k3_kernel grid=(256,1,1) block=(256,1,1) lds=102400",
    ]
    write(sys.argv[1] if len(sys.argv) > 1 else f"cdna_kernels/{NAME}.s", launches, (gen_k1, gen_k2, gen_k3))
```

```python
from common import *

WS_QKV, TT_QKV = 0, 122880
WS_H, TT_H = 0x780000, 98304
WS_O, TT_O = 0xD80000, 40960
WS_WT, KP = 0x1000000, 10240
WS_B = 0x12B0000
WS_G = 0x1530000
WS_SIZE = 0x1532000
MF32 = "v_mfma_f32_32x32x16_bf16"
GK1 = -2.0 * LOG2E * math.sqrt(2.0 / math.pi)
GK2 = GK1 * 0.044715
ST_FLAG = os.environ.get("ST_FLAG", "")
K1_PF_INIT = int(os.environ.get("K1_PF_INIT", "3"))
K1_PF0_STEPS = eval(os.environ.get("K1_PF0_STEPS", "[0, 2]"))
K1_PF1_STEPS = eval(os.environ.get("K1_PF1_STEPS", "[4, 5, 6]"))
X_NOFILL = int(os.environ.get("X_NOFILL", "99"))
X_NOBAR = int(os.environ.get("X_NOBAR", "0"))
X_NOEP = int(os.environ.get("X_NOEP", "0"))
K1_SETUP_FIRST = int(os.environ.get("K1_SETUP_FIRST", "1"))
K1_FILLS = eval(os.environ.get("K1_FILLS", "{0: [0, 1, 2, 3], 1: [4, 5, 6, 7], 2: [8, 9], 3: [10, 11], 4: [12, 13], 5: [14, 15], 6: [16, 17], 7: [18, 19], 8: [20, 21], 9: [22, 23], 10: [24, 25], 11: [26, 27], 12: [28, 29], 13: [30, 31], 14: [32], 15: [33], 16: [34]}"))


def gelu_ops(G, U, Z, n, sK2, vK1):
    ops = []
    for b in range(0, n, 4):
        R = range(b, b + 4)
        ops += [f"v_mul_f32 {v(Z + r)}, {v(G + r)}, {v(G + r)}" for r in R]
        ops += [f"v_fma_f32 {v(Z + r)}, {v(Z + r)}, {s(sK2)}, {v(vK1)}" for r in R]
        ops += [f"v_mul_f32 {v(Z + r)}, {v(Z + r)}, {v(G + r)}" for r in R]
        ops += [f"v_exp_f32 {v(Z + r)}, {v(Z + r)}" for r in R]
        ops += [f"v_mul_f32 {v(G + r)}, {v(G + r)}, {v(U + r)}" for r in R]
        ops += [f"v_add_f32 {v(Z + r)}, 1.0, {v(Z + r)}" for r in R]
        ops += [f"v_rcp_f32 {v(Z + r)}, {v(Z + r)}" for r in R]
        ops += [f"v_mul_f32 {v(G + r)}, {v(G + r)}, {v(Z + r)}" for r in R]
    return ops


def gen_k1(k):
    name = "k1_kernel"
    NSL, SL = 9, 16384
    SIDE = NSL * SL
    SX, SW0, SW1, SO, SJ = 8, 12, 16, 20, 24
    SP = SX
    SP1 = SW0
    sW, sRG, sCH, sRB, sCG, sW2K, sSO, sW4K = 28, 29, 30, 31, 32, 33, 34, 35
    pA, pB, pWO, pWS = 4, 36, 44, 46
    t0, t1, t2, t3 = 48, 49, 50, 51
    sQO, sQO2, sSC, sHO1, sHO2, sJS, sJD, sK2 = 52, 53, 54, 55, 56, 57, 58, 59
    sPS, sPO = 3, 35
    vL16 = 1
    vW = [2, 3, 4]
    vW2 = [5, 6, 7]
    oW1 = [8, 9]
    oW2 = [10, 11]
    oJ = [12, 13]
    vJR = 14
    vK1 = 15
    WF = [[16, 20], [24, 28]]
    ACC = [32, 48, 64, 80]
    X = 96
    oX = [64, 65, 66, 67]
    vXA = [[68 + 4 * b + ks for ks in range(4)] for b in range(3)]
    vt = [80 + i for i in range(8)]
    vL, vI, vH = 88, 89, 90
    vGW = 91
    oW0 = [92, 93, 94, 95]
    oP, oP1, vPD = 64, 65, 0

    kernel_head(k, name)
    k("s_cmp_ge_u32 s2, 256")
    k("s_cbranch_scc1 L_k1_end")
    diag_begin(k)
    k(f"s_load_dwordx4 {s(pA, 4)}, s[0:1], {KA_X}")
    k(f"s_load_dwordx8 {s(pB, 8)}, s[0:1], {KA_WG}")
    k(f"s_load_dwordx2 {s(pWO, 2)}, s[0:1], {KA_WO}")
    k(f"s_load_dwordx2 {s(pWS, 2)}, s[0:1], {KA_WS}")
    k(f"v_lshrrev_b32 {v(vt[0])}, 6, v0")
    k(f"v_and_b32 {v(vL)}, 63, v0")
    k(f"v_readfirstlane_b32 {s(sW)}, {v(vt[0])}")
    k(f"v_and_b32 {v(vI)}, 31, v0")
    k(f"v_bfe_u32 {v(vH)}, v0, 5, 1")
    k(f"s_bfe_u32 {s(t0)}, s2, 0x10002")
    k(f"s_lshl_b32 {s(t0)}, {s(t0)}, 3")
    k(f"s_bfe_u32 {s(t1)}, s2, 0x30003")
    k(f"s_add_u32 {s(sRB)}, {s(t0)}, {s(t1)}")
    k(f"s_and_b32 {s(t0)}, s2, 3")
    k(f"s_lshl_b32 {s(t0)}, {s(t0)}, 2")
    k(f"s_lshr_b32 {s(t1)}, s2, 6")
    k(f"s_add_u32 {s(sCG)}, {s(t0)}, {s(t1)}")
    k(f"s_and_b32 {s(sRG)}, {s(sW)}, 3")
    k(f"s_lshr_b32 {s(sCH)}, {s(sW)}, 2")
    k(f"s_lshl_b32 {s(sW2K)}, {s(sW)}, 11")
    k(f"s_cmp_eq_u32 {s(sCH)}, 1")
    k("s_cbranch_scc1 L_k1_pf")

    lq = Q(k, "lgkmcnt", 15)
    vq = Q(k, "vmcnt", 63)

    def loader_setup(gpath):
        k(f"s_lshl_b32 {s(sW4K)}, {s(sW)}, 12")
        k(f"v_lshrrev_b32 {v(vt[0])}, 3, {v(vL)}")
        k(f"v_and_b32 {v(vt[1])}, 7, {v(vL)}")
        k(f"v_lshrrev_b32 {v(vt[2])}, 4, {v(vL)}")
        k(f"s_lshl_b32 {s(t0)}, {s(sRB)}, 7")
        k(f"s_lshl_b32 {s(t1)}, {s(sW)}, 5")
        k(f"s_add_u32 {s(t0)}, {s(t0)}, {s(t1)}")
        k(f"v_add_u32 {v(vt[3])}, {s(t0)}, {v(vt[0])}")
        k(f"v_mul_u32_u24 {v(vt[3])}, 1280, {v(vt[3])}")
        k(f"v_xor_b32 {v(vt[4])}, {v(vt[1])}, {v(vt[2])}")
        k(f"v_lshl_add_u32 {v(oX[0])}, {v(vt[4])}, 4, {v(vt[3])}")
        k(f"v_xor_b32 {v(oX[1])}, 64, {v(oX[0])}")
        k(f"v_add_u32 {v(oX[1])}, {8 * 1280 - 1024}, {v(oX[1])}")
        k(f"v_add_u32 {v(oX[2])}, {16 * 1280 - 2048}, {v(oX[0])}")
        k(f"v_add_u32 {v(oX[3])}, {16 * 1280 - 2048}, {v(oX[1])}")
        if not gpath:
            k(f"v_and_b32 {v(vt[2])}, 1, {v(vt[2])}")
            k(f"v_lshlrev_b32 {v(vt[2])}, 2, {v(vt[2])}")
            k(f"v_xor_b32 {v(vt[2])}, {v(vt[2])}, {v(vt[1])}")
            k(f"v_lshlrev_b32 {v(vt[2])}, 4, {v(vt[2])}")
            k(f"s_and_b32 {s(t0)}, {s(sW)}, 1")
            k(f"s_lshl_b32 {s(t0)}, {s(t0)}, 5")
            k(f"v_add_u32 {v(vt[3])}, {s(t0)}, {v(vt[0])}")
            k(f"s_lshl_b32 {s(t0)}, {s(sCG)}, 8")
            k(f"s_lshr_b32 {s(t1)}, {s(sW)}, 1")
            k(f"s_lshl_b32 {s(t1)}, {s(t1)}, 7")
            k(f"s_add_u32 {s(t0)}, {s(t0)}, {s(t1)}")
            k(f"v_mul_u32_u24 {v(vt[4])}, 3840, {v(vt[3])}")
            k(f"v_add3_u32 {v(oW0[0])}, {v(vt[4])}, {v(vt[2])}, {s(t0)}")
            for j in range(1, 4):
                k(f"v_add_u32 {v(oW0[j])}, {j * (8 * 3840 - 1024)}, {v(oW0[0])}")

    def pf_setup():
        k(f"s_and_b32 {s(t3)}, {s(sW)}, 1")
        k(f"s_lshl_b32 {s(t0)}, {s(sRB)}, 3")
        k(f"s_and_b32 {s(t1)}, {s(sCG)}, 3")
        k(f"s_lshl_b32 {s(t1)}, {s(t1)}, 1")
        k(f"s_add_u32 {s(t0)}, {s(t0)}, {s(t1)}")
        k(f"s_add_u32 {s(t0)}, {s(t0)}, {s(t3)}")
        k(f"s_mul_i32 {s(t0)}, {s(t0)}, {16 * 1280}")
        k(f"v_and_b32 {v(vt[0])}, 15, {v(vL)}")
        k(f"v_mul_u32_u24 {v(vt[0])}, 1280, {v(vt[0])}")
        k(f"v_lshrrev_b32 {v(vt[1])}, 4, {v(vL)}")
        k(f"v_lshl_add_u32 {v(vt[0])}, {v(vt[1])}, 7, {v(vt[0])}")
        k(f"v_lshl_add_u32 {v(vt[0])}, {v(vH)}, 30, {v(vt[0])}")
        k(f"v_add_u32 {v(vt[0])}, {s(t0)}, {v(vt[0])}")
        k(f"s_and_b32 {s(t1)}, {s(sRB)}, 7")
        k(f"s_lshl_b32 {s(t2)}, {s(t3)}, 3")
        k(f"s_add_u32 {s(t2)}, {s(t2)}, {s(t1)}")
        k(f"s_mul_i32 {s(t2)}, {s(t2)}, {8 * 3840}")
        k(f"s_lshl_b32 {s(t0)}, {s(sCG)}, 8")
        k(f"s_add_u32 {s(t2)}, {s(t2)}, {s(t0)}")
        k(f"v_lshrrev_b32 {v(vt[2])}, 1, {v(vL)}")
        k(f"v_mul_u32_u24 {v(vt[2])}, 3840, {v(vt[2])}")
        k(f"v_and_b32 {v(vt[3])}, 1, {v(vL)}")
        k(f"v_lshl_add_u32 {v(vt[2])}, {v(vt[3])}, 7, {v(vt[2])}")
        k(f"v_lshl_add_u32 {v(vt[2])}, {v(vt[1])}, 28, {v(vt[2])}")
        k(f"v_add_u32 {v(vt[2])}, {s(t2)}, {v(vt[2])}")
        k(f"s_cmp_ge_u32 {s(sW)}, 6")
        k(f"s_cselect_b64 vcc, -1, 0")
        k(f"v_cndmask_b32 {v(oP)}, {v(vt[0])}, {v(vt[2])}, vcc")
        k(f"s_cselect_b32 {s(sPS)}, {128 * 3840 - 256}, 0")
        k(f"s_add_u32 {s(sPS)}, {s(sPS)}, 256")
        k(f"s_mov_b32 {s(sPO)}, 0")
        k("s_waitcnt lgkmcnt(0)")
        k(f"s_cmp_ge_u32 {s(sW)}, 6")
        k(f"s_cselect_b32 {s(SP)}, {s(pA + 2)}, {s(pA)}")
        k(f"s_cselect_b32 {s(t0)}, {s(pA + 3)}, {s(pA + 1)}")
        k(f"s_cselect_b32 {s(SP + 2)}, 0, {S_ * D_ * 2 - D_ * 3 * D_ * 2}")
        k(f"s_and_b32 {s(SP + 1)}, {s(t0)}, 0xffff")
        k(f"s_add_u32 {s(SP + 2)}, {s(SP + 2)}, {D_ * 3 * D_ * 2}")
        k(f"s_mov_b32 {s(SP + 3)}, 0x00020000")

    def pf_setup1():
        k(f"s_cmp_ge_u32 {s(sW)}, 6")
        k(f"s_cselect_b32 {s(t0)}, {s(pB + 2)}, {s(pB)}")
        k(f"s_cselect_b32 {s(t1)}, {s(pB + 3)}, {s(pB + 1)}")
        srd(k, SP1, t0, D_ * F_ * 2)
        k(f"s_and_b32 {s(t0)}, {s(sW)}, 1")
        k(f"s_lshl_b32 {s(t0)}, {s(t0)}, 4")
        k(f"s_and_b32 {s(t1)}, {s(sRB)}, 7")
        k(f"s_add_u32 {s(t0)}, {s(t0)}, {s(t1)}")
        k(f"s_mul_i32 {s(t0)}, {s(t0)}, {8 * 3072}")
        k(f"s_mul_i32 {s(t1)}, {s(sCG)}, 192")
        k(f"s_and_b32 {s(t1)}, {s(t1)}, 0xffffff80")
        k(f"s_add_u32 {s(t0)}, {s(t0)}, {s(t1)}")
        k(f"v_bfe_u32 {v(vt[0])}, {v(vL)}, 1, 3")
        k(f"v_bfe_u32 {v(vt[1])}, {v(vL)}, 4, 1")
        k(f"v_lshl_add_u32 {v(vt[0])}, {v(vt[1])}, 6, {v(vt[0])}")
        k(f"v_mul_u32_u24 {v(vt[0])}, 3072, {v(vt[0])}")
        k(f"v_and_b32 {v(vt[1])}, 1, {v(vL)}")
        k(f"v_lshl_add_u32 {v(vt[0])}, {v(vt[1])}, 7, {v(vt[0])}")
        k(f"v_lshl_add_u32 {v(vt[0])}, {v(vH)}, 30, {v(vt[0])}")
        k(f"v_add_u32 {v(oP1)}, {s(t0)}, {v(vt[0])}")

    def pf0():
        vq.issue("pf", f"buffer_load_dword {v(vPD)}, {v(oP)}, {s(SP, 4)}, {s(sPO)} offen")
        k(f"s_add_u32 {s(sPO)}, {s(sPO)}, {s(sPS)}")

    def pf1(j):
        def f():
            k(f"s_mov_b32 {s(sPO)}, {j * 256 * 3072}")
            vq.issue("pf", f"buffer_load_dword {v(vPD)}, {v(oP1)}, {s(SP1, 4)}, {s(sPO)} offen")
        return f

    def fill(n, gpath=False, pfw=False):
        slot = (n % NSL) * SL
        base = sW2K
        if n >= X_NOFILL:
            return []
        if n < 20:
            if pfw:
                return []
            c = n // 2
            base = sW4K
            if n % 2 == 0:
                off, sr, so = oX, SX, c * 128
            else:
                if gpath:
                    return []
                off, sr, so = oW0, SW0, c * 64 * 3840
        elif n < 30:
            off, sr, so = oW1, SW1, (n - 20) * 64 * 3072
        elif n < 35:
            off, sr, so = oW2, SW1, (n - 30) * 128 * 3072
        else:
            return []

        def a():
            k(f"s_add_u32 m0, {s(base)}, {slot}")
            k(f"s_mov_b32 {s(sSO)}, {so}")
            vq.issue(f"f{n}", f"buffer_load_dwordx4 {v(off[0])}, {s(sr, 4)}, {s(sSO)} offen lds")
        out = [a]
        for j in range(1, len(off)):
            out.append(lambda j=j: vq.issue(f"f{n}", f"buffer_load_dwordx4 {v(off[j])}, {s(sr, 4)}, {s(sSO)} offen offset:{1024 * j} lds"))
        return out

    def setup2():
        k(f"v_lshlrev_b32 {v(vL16)}, 4, {v(vL)}")
        srd(k, SO, pWS, WS_SIZE)
        k(f"s_cmp_eq_u32 {s(sCH)}, 1")
        k(f"s_cselect_b32 {s(t0)}, {s(pB + 2)}, {s(pB)}")
        k(f"s_cselect_b32 {s(t1)}, {s(pB + 3)}, {s(pB + 1)}")
        srd(k, SW1, t0, D_ * F_ * 2)
        k(f"s_lshl_b32 {s(t0)}, {s(sRG)}, 12")
        k(f"v_lshlrev_b32 {v(vt[4])}, 7, {v(vI)}")
        k(f"v_bfe_u32 {v(vt[5])}, {v(vI)}, 1, 3")
        k(f"v_xor_b32 {v(vt[5])}, {v(vt[5])}, {v(vH)}")
        k(f"v_lshlrev_b32 {v(vt[5])}, 4, {v(vt[5])}")
        k(f"v_add3_u32 {v(vXA[0][0])}, {v(vt[4])}, {v(vt[5])}, {s(t0)}")
        for ks in range(1, 4):
            k(f"v_xor_b32 {v(vXA[0][ks])}, {32 * ks}, {v(vXA[0][0])}")
        for b in range(1, 3):
            for ks in range(4):
                k(f"v_add_u32 {v(vXA[b][ks])}, {65536 * b}, {v(vXA[0][ks])}")
        k(f"v_bfe_u32 {v(vt[0])}, {v(vL)}, 2, 2")
        k(f"v_lshl_add_u32 {v(vt[1])}, {v(vH)}, 3, {v(vt[0])}")
        k(f"v_bfe_u32 {v(vt[2])}, {v(vL)}, 4, 1")
        k(f"v_and_b32 {v(vt[3])}, 1, {v(vL)}")
        k(f"v_bfe_u32 {v(vt[4])}, {v(vL)}, 1, 1")
        k(f"v_lshlrev_b32 {v(vt[4])}, 3, {v(vt[4])}")
        k(f"v_lshl_add_u32 {v(vt[5])}, {v(vt[2])}, 1, {v(vt[3])}")
        k(f"v_bfe_u32 {v(vt[6])}, {v(vL)}, 3, 1")
        k(f"v_xor_b32 {v(vt[6])}, {s(sCH)}, {v(vt[6])}")
        k(f"v_lshl_add_u32 {v(vt[6])}, {v(vt[6])}, 2, {v(vt[5])}")
        k(f"v_lshl_add_u32 {v(vt[6])}, {v(vt[6])}, 4, {v(vt[4])}")
        k(f"v_lshl_add_u32 {v(vW[0])}, {v(vt[1])}, 7, {v(vt[6])}")
        k(f"s_lshl_b32 {s(t0)}, {s(sCH)}, 1")
        k(f"v_xor_b32 {v(vt[6])}, {s(t0)}, {v(vt[5])}")
        k(f"v_lshl_add_u32 {v(vt[6])}, {v(vt[6])}, 4, {v(vt[4])}")
        k(f"v_lshl_add_u32 {v(vt[6])}, {v(vt[1])}, 6, {v(vt[6])}")
        k(f"v_lshl_add_u32 {v(vW2[0])}, {v(vt[2])}, 13, {v(vt[6])}")
        for b in range(1, 3):
            k(f"v_add_u32 {v(vW[b])}, {65536 * b}, {v(vW[0])}")
            k(f"v_add_u32 {v(vW2[b])}, {65536 * b}, {v(vW2[0])}")
        k(f"v_lshrrev_b32 {v(vt[5])}, 4, {v(vL)}")
        k(f"v_lshlrev_b32 {v(vt[5])}, 5, {v(vt[5])}")
        k(f"v_lshl_add_u32 {v(vt[5])}, {v(vt[0])}, 7, {v(vt[5])}")
        k(f"v_and_b32 {v(vt[6])}, 3, {v(vL)}")
        k(f"v_lshl_add_u32 {v(vt[5])}, {v(vt[6])}, 3, {v(vt[5])}")
        k(f"s_add_u32 {s(t0)}, {s(sW2K)}, {SIDE}")
        k(f"v_add_u32 {v(vJR)}, {s(t0)}, {v(vt[5])}")

    def setup3():
        g = []
        g.append([f"v_lshrrev_b32 {v(vt[0])}, 3, {v(vL)}",
                  f"v_and_b32 {v(vt[1])}, 7, {v(vL)}",
                  f"v_bfe_u32 {v(vt[2])}, {v(vL)}, 4, 1",
                  f"v_lshlrev_b32 {v(vt[2])}, 2, {v(vt[2])}"])
        g.append([f"v_xor_b32 {v(vt[2])}, {v(vt[2])}, {v(vt[1])}",
                  f"v_lshlrev_b32 {v(vt[2])}, 4, {v(vt[2])}",
                  f"s_lshl_b32 {s(t0)}, {s(sRG)}, 4",
                  f"v_add_u32 {v(vt[3])}, {s(t0)}, {v(vt[0])}"])
        g.append([f"s_mul_i32 {s(t0)}, {s(sCG)}, 192",
                  f"s_bitcmp1_b32 {s(sCG)}, 0",
                  f"s_cselect_b32 {s(t2)}, 64, 0",
                  f"s_cselect_b32 {s(t3)}, 0, 128",
                  f"s_add_u32 {s(t2)}, {s(t2)}, {s(t0)}",
                  f"s_add_u32 {s(t3)}, {s(t3)}, {s(t0)}"])
        g.append([f"v_mul_u32_u24 {v(vt[4])}, 3072, {v(vt[3])}",
                  f"v_add3_u32 {v(oW1[0])}, {v(vt[4])}, {v(vt[2])}, {s(t2)}",
                  f"v_add_u32 {v(oW1[1])}, {8 * 3072 - 1024}, {v(oW1[0])}"])
        g.append([f"v_lshrrev_b32 {v(vt[4])}, 2, {v(vL)}",
                  f"s_lshl_b32 {s(t0)}, {s(sRG)}, 5",
                  f"v_add_u32 {v(vt[4])}, {s(t0)}, {v(vt[4])}",
                  f"v_mul_u32_u24 {v(vt[4])}, 3072, {v(vt[4])}"])
        g.append([f"v_and_b32 {v(vt[5])}, 3, {v(vL)}",
                  f"s_lshl_b32 {s(t0)}, {s(sCH)}, 1",
                  f"v_xor_b32 {v(vt[5])}, {s(t0)}, {v(vt[5])}",
                  f"v_lshlrev_b32 {v(vt[5])}, 4, {v(vt[5])}"])
        g.append([f"v_add3_u32 {v(oW2[0])}, {v(vt[4])}, {v(vt[5])}, {s(t3)}",
                  f"v_add_u32 {v(oW2[1])}, {16 * 3072 - 1024}, {v(oW2[0])}",
                  f"v_mul_u32_u24 {v(vt[5])}, 1280, {v(vt[0])}",
                  f"v_lshl_add_u32 {v(oJ[0])}, {v(vt[1])}, 4, {v(vt[5])}"])
        g.append([f"v_add_u32 {v(oJ[1])}, {8 * 1280 - 1024}, {v(oJ[0])}",
                  f"v_mov_b32 {v(vK1)}, {f32(GK1)}",
                  f"s_lshl_b32 {s(t0)}, {s(sRB)}, 2",
                  f"s_add_u32 {s(t0)}, {s(t0)}, {s(sRG)}",
                  f"s_mul_i32 {s(sQO)}, {s(t0)}, {TT_QKV}"])
        g.append([f"s_lshl_b32 {s(t1)}, {s(sCG)}, 13",
                  f"s_add_u32 {s(sQO)}, {s(sQO)}, {s(t1)}",
                  f"s_lshl_b32 {s(t1)}, {s(sCH)}, 11",
                  f"s_add_u32 {s(sQO)}, {s(sQO)}, {s(t1)}"])
        g.append([f"s_cmp_eq_u32 {s(sCG)}, 15",
                  f"s_cselect_b32 {s(sQO)}, {OOB}, {s(sQO)}",
                  f"s_add_u32 {s(sQO2)}, {s(sQO)}, 4096",
                  f"s_cmp_lt_u32 {s(sCG)}, 5",
                  f"s_cselect_b32 {s(sSC)}, {f32(QSCALE)}, 1.0"])
        g.append([f"s_mul_i32 {s(t0)}, {s(t0)}, {TT_H}",
                  f"s_add_u32 {s(t0)}, {s(t0)}, {WS_H}",
                  f"s_lshl_b32 {s(t2)}, {s(t2)}, 5",
                  f"s_add_u32 {s(sHO1)}, {s(t0)}, {s(t2)}",
                  f"s_add_u32 {s(sHO1)}, {s(sHO1)}, {s(t1)}"])
        g.append([f"s_lshl_b32 {s(t3)}, {s(t3)}, 5",
                  f"s_add_u32 {s(sHO2)}, {s(t0)}, {s(t3)}",
                  f"s_lshr_b32 {s(t1)}, {s(t1)}, 1",
                  f"s_add_u32 {s(sHO2)}, {s(sHO2)}, {s(t1)}",
                  f"s_mov_b32 {s(sK2)}, {f32(GK2)}"])
        g.append([f"s_lshl_b32 {s(t0)}, {s(sW)}, 8",
                  f"s_add_u32 {s(t0)}, {s(t0)}, s2",
                  f"s_mul_i32 {s(t1)}, {s(t0)}, 52429",
                  f"s_lshr_b32 {s(t1)}, {s(t1)}, 19",
                  f"s_mul_i32 {s(t2)}, {s(t1)}, 10"])
        g.append([f"s_sub_u32 {s(t2)}, {s(t0)}, {s(t2)}",
                  f"s_mul_i32 {s(sJD)}, {s(t1)}, {2 * KP}",
                  f"s_lshl_b32 {s(t3)}, {s(t2)}, 10",
                  f"s_add_u32 {s(sJD)}, {s(sJD)}, {s(t3)}",
                  f"s_add_u32 {s(sJD)}, {s(sJD)}, {WS_WT}"])
        g.append([f"s_cmp_ge_u32 {s(t1)}, 40",
                  f"s_cselect_b32 {s(SJ)}, {s(pB + 4)}, {s(pWO)}",
                  f"s_cselect_b32 {s(t3)}, {s(pB + 5)}, {s(pWO + 1)}",
                  f"s_cselect_b32 {s(SJ + 2)}, {(F_ - D_) * D_ * 2}, 0",
                  f"s_cselect_b32 {s(sJS)}, 40, 0"])
        g.append([f"s_and_b32 {s(SJ + 1)}, {s(t3)}, 0xffff",
                  f"s_add_u32 {s(SJ + 2)}, {s(SJ + 2)}, {D_ * D_ * 2}",
                  f"s_mov_b32 {s(SJ + 3)}, 0x00020000",
                  f"s_sub_u32 {s(t1)}, {s(t1)}, {s(sJS)}",
                  f"s_mul_i32 {s(sJS)}, {s(t1)}, {16 * 1280}"])
        g.append([f"s_lshl_b32 {s(t2)}, {s(t2)}, 7",
                  f"s_add_u32 {s(sJS)}, {s(sJS)}, {s(t2)}",
                  f"s_cmp_ge_u32 {s(t0)}, 1360",
                  f"s_cselect_b32 {s(sJS)}, {OOB}, {s(sJS)}",
                  f"s_cselect_b32 {s(sJD)}, {OOB}, {s(sJD)}"])
        return ["\n".join(x) for x in g]

    def lds(regs, n, off):
        a = (n % NSL) * SL + off
        return regs[a >> 16], a & 0xffff

    class Step:
        pass

    FS = K1_FILLS
    used_at = {n: (n // 2 if n < 20 else n - 10) for n in range(35)}
    seen = set()
    for st_, lst in sorted(FS.items()):
        for n in lst:
            seen.add(n)
            assert st_ < used_at[n] or st_ == 0, (st_, n)
            if n >= NSL:
                assert used_at[n - NSL] < st_, (st_, n)
    assert seen == set(range(35))

    def wreads(st, n, ks):
        out = []
        for sub in range(2):
            for e in range(2):
                r, o = lds(vW, n, ks * 2048 + e * 512 + sub * 8192)
                out.append((f"w{st}{sub}", f"ds_read_b64_tr_b16 {v(WF[st][sub] + 2 * e, 2)}, {v(r)} offset:{o}"))
        return out

    def xread(c, ks):
        r, o = lds([vXA[b][ks] for b in range(3)], 2 * c, 0)
        return (f"x{c}_{ks}", f"ds_read_b128 {v(X + 16 * c + 4 * ks, 4)}, {v(r)} offset:{o}")

    def p0_steps(gpath):
        out = []
        for c in range(10):
            for ks in range(4):
                p = Step()
                st = ks % 2
                xr = X + 16 * c + 4 * ks
                first = c == 0 and ks == 0
                if not gpath:
                    w = wreads(st, 2 * c + 1, ks)
                    p.reads = w[:2] + [xread(c, ks)] + w[2:]
                    p.mf = [(f"{MF32} {v(ACC[t], 16)}, {v(WF[st][t], 4)}, {v(xr, 4)}, " + ("0" if first else v(ACC[t], 16)),
                             (f"w{st}{t}", f"x{c}_{ks}")) for t in range(2)]
                    p.need = (f"f{2 * c}", f"f{2 * c + 1}") if ks == 0 else None
                else:
                    p.reads = [(f"w{st}0", f"ds_read_b128 {v(WF[st][0], 4)}, {v(vGW)} offset:{(4 * c + ks) * 32}"), xread(c, ks)]
                    p.mf = [(f"{MF32} {v(ACC[0], 16)}, {v(WF[st][0], 4)}, {v(xr, 4)}, " + ("0" if first else v(ACC[0], 16)),
                             (f"w{st}0", f"x{c}_{ks}"))]
                    p.need = (f"f{2 * c}", "gw") if ks == 0 else None
                p.fills = FS.get(c, []) if ks == 0 else []
                out.append(p)
        return out

    def p12_steps():
        out = []
        for c in range(10):
            for ks in range(4):
                p = Step()
                st = ks % 2
                xr = X + 16 * c + 4 * ks
                first = c == 0 and ks == 0
                p.reads = wreads(st, 20 + c, ks)
                p.mf = [(f"{MF32} {v(ACC[2 + t], 16)}, {v(WF[st][t], 4)}, {v(xr, 4)}, " + ("0" if first else v(ACC[2 + t], 16)),
                         (f"w{st}{t}",)) for t in range(2)]
                p.need = (f"f{20 + c}",) if ks == 0 else None
                p.fills = FS.get(10 + c, []) if ks == 0 else []
                out.append(p)
        for c in range(5):
            for d in range(4):
                p = Step()
                st = d % 2
                p.reads, p.mf = [], []
                for t in range(2):
                    ks = 2 * d + t
                    for e in range(2):
                        r, o = lds(vW2, 30 + c, ks * 1024 + e * 256)
                        p.reads.append((f"w{st}{t}", f"ds_read_b64_tr_b16 {v(WF[st][t] + 2 * e, 2)}, {v(r)} offset:{o}"))
                    xr = X + 32 * c + 4 * ks
                    first = c == 0 and ks == 0
                    p.mf.append((f"{MF32} {v(ACC[0], 16)}, {v(WF[st][t], 4)}, {v(xr, 4)}, " + ("0" if first else v(ACC[0], 16)),
                                 (f"w{st}{t}",)))
                p.need = (f"f{30 + c}",) if d == 0 else None
                p.fills = FS.get(20 + c, []) if d == 0 else []
                out.append(p)
        return out

    def emit(steps, after, fillers, gpath=False, pfw=False, flush_dm=True):
        fq = []
        dm = []
        for i, p in enumerate(steps):
            nx = steps[i + 1] if i + 1 < len(steps) else after
            last = i + 1 == len(steps)
            fq += fillers.get(i, [])
            fq = fillers.get(("pri", i), []) + fq
            rate = fillers.get(("rate", i), fillers.get("rate", 3))
            rd = list(nx.reads) if nx else []
            for mi, (txt, tags) in enumerate(p.mf):
                bar = nx is not None and nx.need is not None and mi == 0
                if bar and not X_NOBAR:
                    assert not dm
                    waits(k, lg=lq.all(), vm=vq.need(*nx.need))
                else:
                    lq.wait(*tags)
                k(txt)
                if bar:
                    if not X_NOBAR:
                        k("s_barrier")
                    for n in nx.fills:
                        dm += fill(n, gpath, pfw)
                nr = len(rd) if mi == len(p.mf) - 1 else (len(rd) + 1) // 2
                for _ in range(nr):
                    lq.issue(*rd.pop(0))
                nd = 4 // len(p.mf)
                if last and mi == len(p.mf) - 1:
                    nd = len(dm)
                for _ in range(nd):
                    if dm:
                        dm.pop(0)()
                for _ in range(rate):
                    if fq:
                        f = fq.pop(0)
                        if callable(f):
                            f()
                        else:
                            k(f)
        assert not fq, len(fq)

    P12 = p12_steps()
    merge = {}

    def p0_path(gpath, pfw):
        lq.q, vq.q = [], []
        if pfw:
            if not gpath:
                pf_setup()
                for _ in range(K1_PF_INIT):
                    pf0()
                setup2()
                pf_setup1()
                k(f"s_cmp_eq_u32 {s(sCG)}, 15")
                k("s_cbranch_scc1 L_k1_pfg")
            else:
                vq.q = ["pf"] * K1_PF_INIT
        else:
            if not gpath:
                k(f"s_cmp_eq_u32 {s(sCG)}, 15")
                k("s_cbranch_scc1 L_k1_g")
            loader_setup(gpath)
            k("s_waitcnt lgkmcnt(0)")
            srd(k, SX, pA, S_ * D_ * 2)
            if not gpath:
                srd(k, SW0, pA + 2, D_ * 3 * D_ * 2)
            if K1_SETUP_FIRST:
                setup2()
            for n in FS[0]:
                for f in fill(n, gpath, pfw):
                    f()
            if not K1_SETUP_FIRST:
                setup2()
            if gpath:
                srd(k, SW0, pB + 6, D_ * 2)
                k(f"s_mov_b32 m0, {SIDE}")
                vq.issue("gw", f"buffer_load_dwordx4 {v(vL16)}, {s(SW0, 4)}, 0 offen lds")
                vq.issue("gw", f"buffer_load_dwordx4 {v(vL16)}, {s(SW0, 4)}, 0 offen offset:1024 lds")
        if gpath:
            k(f"v_lshlrev_b32 {v(vGW)}, 4, {v(vH)}")
            k(f"v_add_u32 {v(vGW)}, {SIDE}, {v(vGW)}")
        P0 = p0_steps(gpath)
        stamp(k, 1)
        waits(k, vm=vq.need(*P0[0].need))
        k("s_barrier")
        stamp(k, 2)
        for r in P0[0].reads:
            lq.issue(*r)
        fl = {"rate": 1, 1: setup3()}
        if pfw:
            for i, stp in enumerate(K1_PF0_STEPS):
                fl[("pri", 4 * stp)] = [pf0] + fl.get(("pri", 4 * stp), [])
            for j, stp in enumerate(K1_PF1_STEPS):
                fl[("pri", 4 * stp + 2)] = [pf1(j)] + fl.get(("pri", 4 * stp + 2), [])
        emit(P0, P12[0], fl, gpath, pfw)
        q = [x for x in vq.q if x != "pf"]
        if not merge:
            merge["l"], merge["v"] = list(lq.q), q
        assert X_NOBAR or lq.q == merge["l"] and q == merge["v"], (lq.q, merge["l"], vq.q, merge["v"])
        if gpath:
            g = ACC[0]
            k(f"s_mov_b32 {s(t1)}, {f32(-LOG2E)}")
            k(f"s_lshl_b32 {s(t0)}, {s(sRB)}, 2")
            k(f"s_add_u32 {s(t0)}, {s(t0)}, {s(sRG)}")
            k(f"s_lshl_b32 {s(t0)}, {s(t0)}, 7")
            k(f"s_add_u32 {s(t0)}, {s(t0)}, {WS_G}")
            k(f"v_lshlrev_b32 {v(g + 1)}, 2, {v(vI)}")
            k(f"v_cvt_pk_bf16_f32 {v(g)}, {v(g)}, {v(g)}")
            k(f"v_lshlrev_b32 {v(g)}, 16, {v(g)}")
            k(f"v_mul_f32 {v(g)}, {s(t1)}, {v(g)}")
            k(f"v_exp_f32 {v(g)}, {v(g)}")
            k(f"v_add_f32 {v(g)}, 1.0, {v(g)}")
            k(f"v_rcp_f32 {v(g)}, {v(g)}")
            k(f"v_cvt_pk_bf16_f32 {v(g)}, {v(g)}, {v(g)}")
            k(f"v_lshlrev_b32 {v(g)}, 16, {v(g)}")
            k(f"buffer_store_dword {v(g)}, {v(g + 1)}, {s(SO, 4)}, {s(t0)} offen")

    p0_path(False, False)
    k.label("L_k1_p1")
    if DIAG:
        stamp(k, 3, lq)

    fl = {"rate": 3}
    ep = []
    for t in range(2):
        for hf in range(2):
            A = ACC[t] + 8 * hf
            ep += [f"v_mul_f32 {v(A + r)}, {s(sSC)}, {v(A + r)}" for r in range(8)]
            ep += [f"v_cvt_pk_bf16_f32 {v(A + c)}, {v(A + 2 * c)}, {v(A + 2 * c + 1)}" for c in range(4)]
            ep.append(lambda A=A, t=t, hf=hf: vq.issue("st", f"buffer_store_dwordx4 {v(A, 4)}, {v(vL16)}, {s(SO, 4)}, {s(sQO + t)} offen offset:{1024 * hf}{ST_FLAG}"))
    fl[1] = ep if not X_NOEP else []

    def job_dma():
        k(f"s_add_u32 m0, {s(sW2K)}, {SIDE}")
        vq.issue("job", f"buffer_load_dwordx4 {v(oJ[0])}, {s(SJ, 4)}, {s(sJS)} offen lds")
        vq.issue("job", f"buffer_load_dwordx4 {v(oJ[1])}, {s(SJ, 4)}, {s(sJS)} offen offset:1024 lds")
    lastfill = max(FS)
    fl[4 * (lastfill - 10) + 2] = [job_dma]
    J = X

    def job_rd():
        vq.wait("job")
        for q in range(4):
            lq.issue("jr", f"ds_read_b64_tr_b16 {v(J + 2 * q, 2)}, {v(vJR)} offset:{512 * q}")

    def job_st():
        lq.wait("jr")
        vq.issue("st", f"buffer_store_dwordx4 {v(J, 4)}, {v(vL16)}, {s(SO, 4)}, {s(sJD)} offen{ST_FLAG}")
        k(f"s_add_u32 {s(sJD)}, {s(sJD)}, {KP}")
        vq.issue("st", f"buffer_store_dwordx4 {v(J + 4, 4)}, {v(vL16)}, {s(SO, 4)}, {s(sJD)} offen{ST_FLAG}")
    ge = []
    for hf in range(2):
        G, U = ACC[2] + 8 * hf, ACC[3] + 8 * hf
        ge += gelu_ops(G, U, ACC[1] + 8 * hf, 8, sK2, vK1)
        ge += [f"v_cvt_pk_bf16_f32 {v(G + c)}, {v(G + 2 * c)}, {v(G + 2 * c + 1)}" for c in range(4)]
        ge.append(lambda G=G, hf=hf: vq.issue("st", f"buffer_store_dwordx4 {v(G, 4)}, {v(vL16)}, {s(SO, 4)}, {s(sHO1)} offen offset:{1024 * hf}{ST_FLAG}"))
    ge = ge[:40] + [job_rd] + ge[40:56] + [job_st] + ge[56:]
    fl[41] = ge
    for i in range(40, 60):
        fl[("rate", i)] = 4
    if DIAG:
        fl[40] = [lambda: stamp(k, 4, lq)]
    emit(P12, None, fl)
    stamp(k, 5, lq)
    G = ACC[0]
    for t in gelu_ops(G, G + 8, ACC[1], 8, sK2, vK1):
        k(t)
    for c in range(4):
        k(f"v_cvt_pk_bf16_f32 {v(G + c)}, {v(G + 2 * c)}, {v(G + 2 * c + 1)}")
    k(f"buffer_store_dwordx4 {v(G, 4)}, {v(vL16)}, {s(SO, 4)}, {s(sHO2)} offen{ST_FLAG}")
    endpgm(k, 0, 8)

    k.label("L_k1_pf")
    p0_path(False, True)
    k("s_branch L_k1_p1")
    k.label("L_k1_g")
    p0_path(True, False)
    k("s_branch L_k1_p1")
    k.label("L_k1_pfg")
    p0_path(True, True)
    k("s_branch L_k1_p1")
    k.label("L_k1_end")
    k("s_endpgm")
    return name, 256, 60


def gen_k2(k):
    name = "k2_kernel"
    TS = 3136
    CH = 8 * TS
    STG = 2 * CH
    FLG = STG + 65536
    SW_ = 8
    sW, sKH, sQG, sHEAD, sQB, sODD = 12, 13, 14, 15, 16, 17
    sKO, sKO2, sM0, sPASS, sWD, sWDc, sBO, sHO, sQO = 18, 19, 20, 21, 22, 23, 24, 25, 26
    t0, t1, t2, t3 = 28, 29, 30, 31
    sMASK, sTMP = 32, 34
    sCNT = 36
    kernel_head(k, name)
    k("s_cmp_ge_u32 s2, 256")
    k("s_cbranch_scc1 L_k2_end")
    diag_begin(k)
    k(f"s_load_dwordx2 s[4:5], s[0:1], {KA_WS}")
    va = Alloc(1, 256)
    vL = va(); vI = va(); vH = va(); vL16 = va()
    vt = [va() for _ in range(6)]
    vD = [va() for _ in range(3)]
    vK1 = va(); vK2 = va()
    vV = [va() for _ in range(4)]
    vWD = va(); vSW = va(); vSR = va(); vBS = va(); vQ2 = va()
    MXP = [va(2) for _ in range(2)]
    Q1 = [va(4) for _ in range(2)]
    Q2 = [va(2) for _ in range(2)]
    KF1 = va(4); KF2 = va(2)
    VF = [va(4) for _ in range(2)]
    P = [va(8, 4) for _ in range(2)]
    SS = [va(16, 4) for _ in range(2)]
    O = [va(16, 4) for _ in range(2)]
    HF = [va(4) for _ in range(12)]
    WDF = [va(4) for _ in range(6)]
    BA = va(16, 4)
    RT = va(16, 4)
    vPF = va()
    k(f"v_lshrrev_b32 {v(vt[0])}, 6, v0")
    k(f"v_and_b32 {v(vL)}, 63, v0")
    k(f"v_readfirstlane_b32 {s(sW)}, {v(vt[0])}")
    k(f"v_and_b32 {v(vI)}, 31, v0")
    k(f"v_bfe_u32 {v(vH)}, v0, 5, 1")
    k(f"v_lshlrev_b32 {v(vL16)}, 4, {v(vL)}")
    k(f"s_and_b32 {s(t0)}, s2, 7")
    k(f"s_lshl_b32 {s(t0)}, {s(t0)}, 2")
    k(f"s_lshr_b32 {s(t1)}, s2, 6")
    k(f"s_add_u32 {s(sHEAD)}, {s(t0)}, {s(t1)}")
    k(f"s_bfe_u32 {s(sQB)}, s2, 0x30003")
    k(f"s_lshr_b32 {s(sKH)}, {s(sW)}, 2")
    k(f"s_and_b32 {s(sQG)}, {s(sW)}, 3")
    k(f"s_and_b32 {s(sODD)}, {s(sHEAD)}, 1")
    k(f"s_lshr_b32 {s(t2)}, {s(sHEAD)}, 1")
    k(f"s_mul_i32 {s(t2)}, {s(t2)}, 5")
    k(f"s_lshl_b32 {s(t3)}, {s(sODD)}, 1")
    k(f"s_add_u32 {s(t2)}, {s(t2)}, {s(t3)}")
    k(f"s_lshl_b32 {s(t2)}, {s(t2)}, 9")
    k(f"s_lshl_b32 {s(t0)}, {s(sQB)}, 3")
    k(f"s_lshl_b32 {s(t1)}, {s(sQG)}, 1")
    k(f"s_add_u32 {s(t0)}, {s(t0)}, {s(t1)}")
    k(f"s_mul_i32 {s(sQO)}, {s(t0)}, {TT_QKV}")
    k(f"s_add_u32 {s(sQO)}, {s(sQO)}, {s(t2)}")
    k(f"s_lshl_b32 {s(t0)}, {s(sODD)}, 9")
    k(f"v_add_u32 {v(vK1)}, {s(t0)}, {v(vL16)}")
    k(f"s_cmp_eq_u32 {s(sODD)}, 1")
    k(f"s_cselect_b32 {s(t1)}, 8, 1024")
    k(f"v_lshlrev_b32 {v(vt[0])}, 4, {v(vI)}")
    k(f"v_add_u32 {v(vQ2)}, {s(t1)}, {v(vt[0])}")
    k(f"s_mul_i32 {s(t0)}, {s(sW)}, {TT_QKV}")
    k(f"s_add_u32 {s(t0)}, {s(t0)}, {s(t2)}")
    k(f"s_add_u32 {s(t0)}, {s(t0)}, {80 * 512}")
    k(f"v_add_u32 {v(vD[0])}, {s(t0)}, {v(vL16)}")
    k(f"v_mul_u32_u24 {v(vt[1])}, {80 * 512 - 1024}, {v(vH)}")
    k(f"v_add3_u32 {v(vD[1])}, {v(vt[0])}, {v(vt[1])}, {s(t0)}")
    k(f"v_lshlrev_b32 {v(vt[1])}, 6, {v(vH)}")
    k(f"v_add_u32 {v(vt[1])}, 64, {v(vt[1])}")
    k(f"v_xor_b32 {v(vt[1])}, {v(vt[1])}, {v(vL16)}")
    k(f"s_add_u32 {s(t0)}, {s(t0)}, {80 * 512 + 512 - 2048}")
    k(f"v_add_u32 {v(vD[2])}, {s(t0)}, {v(vt[1])}")
    k(f"s_mul_i32 {s(sM0)}, {s(sW)}, {TS}")
    k(f"s_mov_b32 {s(sPASS)}, 0")
    for qt in range(2):
        for r in range(2):
            k(f"v_mov_b32 {v(MXP[qt] + r)}, 0")
    k("s_waitcnt lgkmcnt(0)")
    srd(k, SW_, 4, WS_SIZE)
    lq = Q(k, "lgkmcnt", 15)
    vq = Q(k, "vmcnt", 63)

    def dma_chunk(c):
        def a():
            k(f"s_add_u32 m0, {s(sM0)}, {(c % 2) * CH}")
            k(f"s_mov_b32 {s(sKO)}, {c * 8 * TT_QKV}")
            vq.issue(f"c{c}", f"buffer_load_dwordx4 {v(vD[0])}, {s(SW_, 4)}, {s(sKO)} offen lds")
        out = [a]
        for j in (1, 2):
            out.append(lambda j=j: vq.issue(f"c{c}", f"buffer_load_dwordx4 {v(vD[j])}, {s(SW_, 4)}, {s(sKO)} offen offset:{1024 * j} lds"))
        return out

    k.label("L_k2_start")
    k(f"s_add_u32 {s(t1)}, {s(sQO)}, {TT_QKV}")
    k(f"s_lshl_b32 {s(t0)}, {s(sODD)}, 9")
    k(f"v_add_u32 {v(vt[0])}, {s(t0)}, {v(vL16)}")
    for qt in range(2):
        so = sQO if qt == 0 else t1
        vq.issue("q", f"buffer_load_dwordx4 {v(Q1[qt], 4)}, {v(vt[0])}, {s(SW_, 4)}, {s(so)} offen")
        vq.issue("q", f"buffer_load_dwordx2 {v(Q2[qt], 2)}, {v(vQ2)}, {s(SW_, 4)}, {s(so)} offen")
    for c in range(2):
        for f in dma_chunk(c):
            f()
    k(f"s_and_b32 {s(t0)}, s2, 7")
    k(f"s_lshl_b32 {s(t0)}, {s(t0)}, 3")
    k(f"s_add_u32 {s(t0)}, {s(t0)}, {s(sQB)}")
    k(f"s_mul_i32 {s(sHO)}, {s(t0)}, {TT_H}")
    k(f"s_mul_i32 {s(t1)}, {s(sW)}, 12288")
    k(f"s_add_u32 {s(sHO)}, {s(sHO)}, {s(t1)}")
    k(f"s_add_u32 {s(sHO)}, {s(sHO)}, {WS_H}")
    k(f"s_lshr_b32 {s(t2)}, s2, 6")
    k(f"s_mul_i32 {s(sWD)}, {s(sW)}, {24 * KP}")
    k(f"s_mul_i32 {s(t1)}, {s(t2)}, 2560")
    k(f"s_add_u32 {s(sWD)}, {s(sWD)}, {s(t1)}")
    k(f"s_add_u32 {s(sWD)}, {s(sWD)}, {WS_WT + 80 * KP}")
    k(f"v_mul_u32_u24 {v(vt[0])}, {KP}, {v(vH)}")
    k(f"v_lshl_add_u32 {v(vWD)}, {v(vI)}, 4, {v(vt[0])}")
    k(f"s_lshl_b32 {s(t0)}, {s(t0)}, 3")
    k(f"s_add_u32 {s(t0)}, {s(t0)}, {s(sW)}")
    k(f"s_mul_i32 {s(sBO)}, {s(t0)}, {4 * 1280}")
    k(f"s_mul_i32 {s(t1)}, {s(t2)}, 320")
    k(f"s_add_u32 {s(sBO)}, {s(sBO)}, {s(t1)}")
    k(f"s_add_u32 {s(sBO)}, {s(sBO)}, {WS_B}")

    def wd_load(i):
        if i >= 60:
            return
        t, ks = divmod(i, 12)
        k(f"s_add_u32 {s(sWDc)}, {s(sWD)}, {ks * 2 * KP}")
        vq.issue(f"wd{i}", f"buffer_load_dwordx4 {v(WDF[i % 6], 4)}, {v(vWD)}, {s(SW_, 4)}, {s(sWDc)} offen offset:{512 * t}")

    for j in range(12):
        if j % 4 == 0 and j:
            k(f"s_add_u32 {s(sHO)}, {s(sHO)}, 4096")
        vq.issue(f"h{j}", f"buffer_load_dwordx4 {v(HF[j], 4)}, {v(vL16)}, {s(SW_, 4)}, {s(sHO)} offen offset:{1024 * (j % 4)}")
    for i in range(6):
        wd_load(i)
    k(f"s_mul_i32 {s(t3)}, {s(sKH)}, {TS}")
    k(f"s_lshl_b32 {s(t0)}, {s(sODD)}, 9")
    k(f"s_add_u32 {s(t0)}, {s(t0)}, {s(t3)}")
    k(f"v_add_u32 {v(vK1)}, {s(t0)}, {v(vL16)}")
    k(f"v_cmp_eq_u32 {s(sMASK, 2)}, 1, {v(vH)}")
    k(f"v_mov_b32 {v(vt[1])}, 3072")
    k(f"v_cndmask_b32 {v(vK2)}, {v(vQ2)}, {v(vt[1])}, {s(sMASK, 2)}")
    k(f"v_add_u32 {v(vK2)}, {s(t3)}, {v(vK2)}")
    k(f"v_and_b32 {v(vt[0])}, 1, {v(vL)}")
    k(f"v_add_u32 {v(vt[0])}, {s(sODD)}, {v(vt[0])}")
    k(f"v_bfe_u32 {v(vt[1])}, {v(vL)}, 1, 1")
    k(f"v_bfe_u32 {v(vt[2])}, {v(vL)}, 4, 1")
    k(f"v_cmp_eq_u32 vcc, 1, {v(vt[2])}")
    k(f"s_lshl_b32 {s(t0)}, {s(sODD)}, 1")
    k(f"s_sub_u32 {s(t0)}, 2, {s(t0)}")
    k(f"v_mov_b32 {v(vt[3])}, {s(t0)}")
    k(f"v_cndmask_b32 {v(vt[0])}, {v(vt[0])}, {v(vt[3])}, vcc")
    k(f"v_mov_b32 {v(vt[3])}, {s(sODD)}")
    k(f"v_cndmask_b32 {v(vt[1])}, {v(vt[1])}, {v(vt[3])}, vcc")
    k(f"v_bfe_u32 {v(vt[3])}, {v(vL)}, 2, 2")
    k(f"v_lshl_add_u32 {v(vt[3])}, {v(vH)}, 2, {v(vt[3])}")
    k(f"v_lshlrev_b32 {v(vt[4])}, 2, {v(vt[0])}")
    k(f"v_xor_b32 {v(vt[3])}, {v(vt[3])}, {v(vt[4])}")
    k(f"v_lshlrev_b32 {v(vt[3])}, 4, {v(vt[3])}")
    k(f"v_lshl_add_u32 {v(vt[3])}, {v(vt[1])}, 3, {v(vt[3])}")
    k(f"v_lshl_add_u32 {v(vt[3])}, {v(vt[0])}, 9, {v(vt[3])}")
    k(f"v_and_b32 {v(vt[4])}, 19, {v(vL)}")
    k(f"v_cmp_lt_u32 vcc, 16, {v(vt[4])}")
    k(f"v_mov_b32 {v(vt[5])}, {3072 - 1536}")
    k(f"s_add_u32 {s(t0)}, {s(t3)}, 1536")
    for q in range(4):
        k(f"v_xor_b32 {v(vt[4])}, {128 * q}, {v(vt[3])}")
        k(f"v_cndmask_b32 {v(vt[4])}, {v(vt[4])}, {v(vt[5])}, vcc")
        k(f"v_add_u32 {v(vV[q])}, {s(t0)}, {v(vt[4])}")
    k(f"v_and_b32 {v(vt[0])}, 15, {v(vL)}")
    k(f"v_mul_u32_u24 {v(vt[0])}, {TS}, {v(vt[0])}")
    k(f"v_mov_b32 {v(RT)}, 0x3f803f80")
    k(f"v_mov_b32 {v(RT + 1)}, 0x3f803f80")
    lq.issue("one", f"ds_write_b64 {v(vt[0])}, {v(RT, 2)} offset:3072")
    k(f"v_lshlrev_b32 {v(vt[0])}, 5, {v(vH)}")
    k(f"v_xor_b32 {v(vt[0])}, {v(vt[0])}, {v(vL16)}")
    k(f"s_lshl_b32 {s(t0)}, {s(sW)}, 12")
    k(f"s_add_u32 {s(t0)}, {s(t0)}, {STG}")
    k(f"v_add_u32 {v(vSW)}, {s(t0)}, {v(vt[0])}")
    k(f"v_lshrrev_b32 {v(vt[0])}, 4, {v(vL)}")
    k(f"s_lshl_b32 {s(t0)}, {s(sW)}, 2")
    k(f"v_add_u32 {v(vt[1])}, {s(t0)}, {v(vt[0])}")
    k(f"v_and_b32 {v(vt[2])}, 14, {v(vL)}")
    k(f"v_xor_b32 {v(vt[1])}, {v(vt[1])}, {v(vt[2])}")
    k(f"v_lshlrev_b32 {v(vt[1])}, 4, {v(vt[1])}")
    k(f"v_lshl_add_u32 {v(vt[1])}, {v(vt[2])}, 8, {v(vt[1])}")
    k(f"v_and_b32 {v(vt[2])}, 1, {v(vL)}")
    k(f"v_lshl_add_u32 {v(vt[1])}, {v(vt[2])}, 3, {v(vt[1])}")
    k(f"v_add_u32 {v(vSR)}, {STG}, {v(vt[1])}")
    k(f"v_mul_u32_u24 {v(vt[0])}, 1280, {v(vt[0])}")
    k(f"v_and_b32 {v(vt[2])}, 15, {v(vL)}")
    k(f"v_lshl_add_u32 {v(vBS)}, {v(vt[2])}, 2, {v(vt[0])}")
    stamp(k, 1, lq)
    waits(k, lg=lq.all(), vm=vq.need("q", "c0"))
    for qt in range(2):
        for r in range(2):
            k(f"v_cndmask_b32 {v(Q2[qt] + r)}, {v(Q2[qt] + r)}, {v(MXP[qt] + r)}, {s(sMASK, 2)}")
    k("s_barrier")
    stamp(k, 2, lq)

    def toff(n):
        c, j = divmod(n, 4)
        return (c % 2) * CH + 2 * j * TS

    def kread(n):
        lq.issue("k", f"ds_read_b128 {v(KF1, 4)}, {v(vK1)} offset:{toff(n)}")
        lq.issue("k", f"ds_read_b64 {v(KF2, 2)}, {v(vK2)} offset:{toff(n)}")

    def vread(n):
        for q in range(4):
            lq.issue(f"v{q // 2}", f"ds_read_b64_tr_b16 {v(VF[q // 2] + 2 * (q % 2), 2)}, {v(vV[q])} offset:{toff(n)}")

    def qk(qt):
        return [f"{MF32} {v(SS[qt], 16)}, {v(KF1, 4)}, {v(Q1[qt], 4)}, 0",
                f"v_mfma_f32_32x32x8_bf16 {v(SS[qt], 16)}, {v(KF2, 2)}, {v(Q2[qt], 2)}, {v(SS[qt], 16)}"]

    def pv(qt, first=False):
        return [f"{MF32} {v(O[qt], 16)}, {v(VF[t], 4)}, {v(P[qt] + 4 * t, 4)}, " + ("0" if first and t == 0 else v(O[qt], 16))
                for t in range(2)]

    def softmax_ops(qt):
        ops = []
        for r in range(16):
            ops.append(f"v_exp_f32 {v(SS[qt] + r)}, {v(SS[qt] + r)}")
            if r >= 3 and r % 2 == 1:
                c = (r - 3) // 2
                ops.append(f"v_cvt_pk_bf16_f32 {v(P[qt] + c)}, {v(SS[qt] + 2 * c)}, {v(SS[qt] + 2 * c + 1)}")
        ops.append(f"v_cvt_pk_bf16_f32 {v(P[qt] + 7)}, {v(SS[qt] + 14)}, {v(SS[qt] + 15)}")
        return ops

    PTS = [0, 5, 9, 13, 17, 21, 23]

    def phase(valu, slots):
        for i, t in enumerate(valu):
            if i in PTS:
                for x in slots[PTS.index(i)]:
                    if callable(x):
                        x()
                    else:
                        k(x)
            k(t)

    def gm(i):
        t, ks = divmod(i, 12)

        def f():
            waits(k, vm=vq.need(f"wd{i}", f"h{ks}"), lg=(lq.need("sw") if ks == 0 else None))
            k(f"{MF32} {v(BA, 16)}, {v(WDF[i % 6], 4)}, {v(HF[ks], 4)}, " + ("0" if ks == 0 else v(BA, 16)))
            wd_load(i + 6)
        return f

    def stg_write(t):
        def f():
            for g in range(4):
                if g:
                    k(f"v_xor_b32 {v(vt[g])}, {64 * g}, {v(vSW)}")
            for g in range(4):
                lq.issue("sw", f"ds_write_b128 {v(vt[g] if g else vSW)}, {v(BA + 4 * g, 4)} offset:{(t % 2) * 32768 + 1024 * g}")
        return f

    def stg_read(t):
        def f():
            for p in range(8):
                lq.issue("sr", f"ds_read_b64 {v(RT + 2 * p, 2)}, {v(vSR)} offset:{(t % 2) * 32768 + 4096 * p}")
        return f

    def stg_sum(t, part):
        def f():
            if part == 0:
                lq.wait("sr")
                for p in range(4):
                    for r in range(2):
                        k(f"v_add_f32 {v(RT + 2 * p + r)}, {v(RT + 2 * p + r)}, {v(RT + 8 + 2 * p + r)}")
            else:
                for p in range(2):
                    for r in range(2):
                        k(f"v_add_f32 {v(RT + 2 * p + r)}, {v(RT + 2 * p + r)}, {v(RT + 4 + 2 * p + r)}")
                for r in range(2):
                    k(f"v_add_f32 {v(RT + r)}, {v(RT + r)}, {v(RT + 2 + r)}")
                k(f"v_cvt_pk_bf16_f32 {v(RT)}, {v(RT)}, {v(RT + 1)}")
                vq.issue("st", f"buffer_store_dword {v(RT)}, {v(vBS)}, {s(SW_, 4)}, {s(sBO)} offen offset:{64 * t}")
        return f

    def wo_prefetch():
        k(f"s_lshr_b32 {s(t0)}, s2, 3")
        k(f"s_lshl_b32 {s(t0)}, {s(t0)}, 3")
        k(f"s_add_u32 {s(t0)}, {s(t0)}, {s(sW)}")
        k(f"s_mul_i32 {s(t0)}, {s(t0)}, {25 * 128}")
        k(f"s_add_u32 {s(t0)}, {s(t0)}, {WS_WT}")
        k(f"v_min_u32 {v(vt[0])}, 24, {v(vL)}")
        k(f"v_lshlrev_b32 {v(vt[0])}, 7, {v(vt[0])}")
        vq.issue("pf", f"buffer_load_dword {v(vPF)}, {v(vt[0])}, {s(SW_, 4)}, {s(t0)} offen")

    kread(0)
    lq.wait("k")
    for t in qk(0):
        k(t)
    NT = 32
    for n in range(NT):
        it, j = divmod(n, 4)
        ex = [[[], [], []], [[], [], []]]
        tg = it - 1
        if 0 <= tg < 5:
            ex[0][1].append(gm(12 * tg + 3 * j))
            ex[1][0].append(gm(12 * tg + 3 * j + 1))
            ex[1][1].append(gm(12 * tg + 3 * j + 2))
        head = []
        if j == 0 and 0 <= it - 2 < 5:
            head.append(stg_write(it - 2))
        if 0 <= it - 3 < 5:
            if j == 1:
                ex[0][0].append(stg_read(it - 3))
            if j == 2:
                ex[0][0].append(stg_sum(it - 3, 0))
            if j == 3:
                ex[0][0].append(stg_sum(it - 3, 1))
        if n == 25:
            ex[1][2].append(wo_prefetch)
        q = qk(1)
        p = pv(1, n == 1) if n > 0 else [None, None]
        kr = []
        if n + 1 < NT:
            if j == 3:
                kr.append(lambda it=it: waits(k, lg=lq.all(), vm=vq.need(f"c{it + 1}")))
                kr.append("s_barrier")
            kr.append(lambda n=n: kread(n + 1))
            if j == 3 and it + 2 < 8:
                d = dma_chunk(it + 2)
                ex[0][1] += d[:1]
                ex[0][2] += d[1:2]
                ex[1][2] += d[2:]
        s0 = [p[0]] if p[0] else []
        s1 = ([p[1]] if p[1] else []) + [lambda n=n: vread(n)] + head
        phase(softmax_ops(0), [s0, s1, [q[0]], [q[1]] + kr] + ex[0])
        p = pv(0, n == 0)
        q = qk(0)
        sq = [[lambda: lq.wait("k"), q[0]], [q[1]]] if n + 1 < NT else [[], []]
        phase(softmax_ops(1), [[lambda: lq.wait("v0"), p[0]], [lambda: lq.wait("v1"), p[1]]] + sq + ex[1])
        if DIAG and n in (3, 7, 23):
            stamp(k, 3 + (3, 7, 23).index(n), lq)
    for t in pv(1):
        k(t)
    stamp(k, 6, lq)
    k(f"s_mov_b32 {s(t0)}, {f32(2.0 ** 60)}")
    k(f"s_mov_b32 {s(t1)}, {f32(2.0 ** -60)}")
    k(f"v_mul_f32 {v(vt[0])}, 0, {v(O[0])}")
    for r in range(1, 12):
        k(f"v_fma_f32 {v(vt[0])}, {v(O[0] + r)}, 0, {v(vt[0])}")
    for r in range(12):
        k(f"v_fma_f32 {v(vt[0])}, {v(O[1] + r)}, 0, {v(vt[0])}")
    k(f"v_max_f32 {v(vt[1])}, {v(O[0] + 12)}, {v(O[1] + 12)}")
    k(f"v_min_f32 {v(vt[2])}, {v(O[0] + 12)}, {v(O[1] + 12)}")
    k(f"v_add_f32 {v(vt[1])}, {v(vt[1])}, {v(vt[0])}")
    k(f"v_cmp_nle_f32 vcc, {v(vt[1])}, {s(t0)}")
    k(f"v_cmp_nge_f32 {s(sTMP, 2)}, {v(vt[2])}, {s(t1)}")
    k(f"s_or_b64 vcc, vcc, {s(sTMP, 2)}")
    k(f"s_cmp_lg_u64 vcc, 0")
    k(f"s_cselect_b32 {s(t0)}, 1, 0")
    k(f"s_lshl_b32 {s(t1)}, {s(sW)}, 2")
    k(f"s_add_u32 {s(t1)}, {s(t1)}, {FLG}")
    k(f"v_mov_b32 {v(vt[0])}, {s(t0)}")
    k(f"v_mov_b32 {v(vt[1])}, {s(t1)}")
    k(f"ds_write_b32 {v(vt[1])}, {v(vt[0])}")
    k(f"s_lshl_b32 {s(t0)}, {s(sW)}, 12")
    k(f"s_add_u32 {s(t0)}, {s(t0)}, {STG + 32768}")
    k(f"v_add_u32 {v(vt[2])}, {s(t0)}, {v(vL16)}")
    k(f"s_xor_b32 {s(t0)}, {s(sW)}, 4")
    k(f"s_lshl_b32 {s(t0)}, {s(t0)}, 12")
    k(f"s_add_u32 {s(t0)}, {s(t0)}, {STG + 32768}")
    k(f"v_add_u32 {v(vt[3])}, {s(t0)}, {v(vL16)}")
    k(f"s_cmp_eq_u32 {s(sKH)}, 0")
    k("s_cbranch_scc1 L_k2_m0")
    for r in range(4):
        k(f"ds_write_b128 {v(vt[2])}, {v(O[0] + 4 * r, 4)} offset:{1024 * r}")
    for r in range(13):
        k(f"v_mov_b32 {v(O[0] + r)}, {v(O[1] + r)}")
    k("s_branch L_k2_m1")
    k.label("L_k2_m0")
    for r in range(4):
        k(f"ds_write_b128 {v(vt[2])}, {v(O[1] + 4 * r, 4)} offset:{1024 * r}")
    k.label("L_k2_m1")
    k(f"v_and_b32 {v(vt[4])}, 7, {v(vL)}")
    k(f"v_lshlrev_b32 {v(vt[4])}, 2, {v(vt[4])}")
    k(f"v_add_u32 {v(vt[4])}, {FLG}, {v(vt[4])}")
    k(f"s_lshl_b32 {s(t0)}, {s(sQB)}, 3")
    k(f"s_lshl_b32 {s(t1)}, {s(sQG)}, 1")
    k(f"s_add_u32 {s(t0)}, {s(t0)}, {s(t1)}")
    k(f"s_add_u32 {s(t0)}, {s(t0)}, {s(sKH)}")
    k(f"s_mul_i32 {s(t0)}, {s(t0)}, {TT_O}")
    k(f"s_lshr_b32 {s(t2)}, {s(sHEAD)}, 1")
    k(f"s_mul_i32 {s(t2)}, {s(t2)}, 5")
    k(f"s_lshl_b32 {s(t3)}, {s(sODD)}, 1")
    k(f"s_add_u32 {s(t2)}, {s(t2)}, {s(t3)}")
    k(f"s_lshl_b32 {s(t2)}, {s(t2)}, 9")
    k(f"s_add_u32 {s(t0)}, {s(t0)}, {s(t2)}")
    k(f"s_add_u32 {s(t0)}, {s(t0)}, {WS_O}")
    k(f"s_lshl_b32 {s(t1)}, {s(sODD)}, 9")
    k(f"s_add_u32 {s(t1)}, {s(t1)}, {s(t0)}")
    k("s_waitcnt lgkmcnt(0)")
    k("s_barrier")
    k(f"ds_read_b32 {v(vt[0])}, {v(vt[4])}")
    for r in range(4):
        k(f"ds_read_b128 {v(SS[0] + 4 * r, 4)}, {v(vt[3])} offset:{1024 * r}")
    k("s_waitcnt lgkmcnt(4)")
    k(f"v_cmp_ne_u32 vcc, 0, {v(vt[0])}")
    k(f"s_cmp_lg_u32 {s(sPASS)}, 0")
    k("s_cbranch_scc1 L_k2_fin")
    k("s_cbranch_vccnz L_k2_fb")
    k.label("L_k2_fin")
    k("s_waitcnt lgkmcnt(0)")
    k(f"v_add_f32 {v(vt[1])}, {v(O[0] + 12)}, {v(SS[0] + 12)}")
    k(f"v_rcp_f32 {v(vt[1])}, {v(vt[1])}")
    for r in range(12):
        k(f"v_add_f32 {v(O[0] + r)}, {v(O[0] + r)}, {v(SS[0] + r)}")
    for r in range(12):
        k(f"v_mul_f32 {v(O[0] + r)}, {v(O[0] + r)}, {v(vt[1])}")
    for c in range(6):
        k(f"v_cvt_pk_bf16_f32 {v(P[0] + c)}, {v(O[0] + 2 * c)}, {v(O[0] + 2 * c + 1)}")
    k(f"buffer_store_dwordx4 {v(P[0], 4)}, {v(vL16)}, {s(SW_, 4)}, {s(t1)} offen")
    k("s_mov_b64 exec, 0xffffffff")
    k(f"buffer_store_dwordx2 {v(P[0] + 4, 2)}, {v(vQ2)}, {s(SW_, 4)}, {s(t0)} offen")
    endpgm(k, 1, 8)

    k.label("L_k2_fb")
    MX = [O[0], O[1]]
    k("s_waitcnt vmcnt(0) lgkmcnt(0)")
    k(f"s_mov_b32 {s(sPASS)}, 1")
    for qt in range(2):
        k(f"v_mov_b32 {v(MX[qt])}, 0xff800000")
    k(f"s_mov_b32 {s(sCNT)}, 0")
    k(f"s_mov_b32 {s(sKO)}, 0")
    k.label("L_k2_mx")
    k("s_barrier")
    k(f"s_mov_b32 m0, {s(sM0)}")
    for j in range(3):
        k(f"buffer_load_dwordx4 {v(vD[j])}, {s(SW_, 4)}, {s(sKO)} offen offset:{1024 * j} lds")
    k(f"s_add_u32 {s(sKO)}, {s(sKO)}, {8 * TT_QKV}")
    k("s_waitcnt vmcnt(0)")
    k("s_barrier")
    for j in range(4):
        k(f"ds_read_b128 {v(KF1, 4)}, {v(vK1)} offset:{2 * j * TS}")
        k(f"ds_read_b64 {v(KF2, 2)}, {v(vK2)} offset:{2 * j * TS}")
        k("s_waitcnt lgkmcnt(0)")
        for qt in range(2):
            for t in qk(qt):
                k(t)
        for qt in range(2):
            for r in range(0, 16, 2):
                k(f"v_max3_f32 {v(MX[qt])}, {v(MX[qt])}, {v(SS[qt] + r)}, {v(SS[qt] + r + 1)}")
    k(f"s_add_u32 {s(sCNT)}, {s(sCNT)}, 1")
    k(f"s_cmp_lt_u32 {s(sCNT)}, 8")
    k("s_cbranch_scc1 L_k2_mx")
    k(f"ds_write_b32 {v(vt[2])}, {v(MX[0])}")
    k(f"ds_write_b32 {v(vt[2])}, {v(MX[1])} offset:4")
    k("s_waitcnt lgkmcnt(0)")
    k("s_barrier")
    k(f"ds_read_b64 {v(KF2, 2)}, {v(vt[3])}")
    k("s_waitcnt lgkmcnt(0)")
    for qt in range(2):
        m = MX[qt]
        k(f"v_max_f32 {v(m)}, {v(m)}, {v(KF2 + qt)}")
        k(f"v_mov_b32 {v(vt[0])}, {v(m)}")
        k(f"v_permlane32_swap_b32 {v(vt[0])}, {v(m)}")
        k(f"v_max_f32 {v(m)}, {v(m)}, {v(vt[0])}")
        k(f"v_sub_f32 {v(m)}, 0, {v(m)}")
        k(f"v_and_b32 {v(vt[0])}, 0xffff0000, {v(m)}")
        k(f"v_sub_f32 {v(vt[1])}, {v(m)}, {v(vt[0])}")
        k(f"v_and_b32 {v(vt[4])}, 0xffff0000, {v(vt[1])}")
        k(f"v_sub_f32 {v(vt[1])}, {v(vt[1])}, {v(vt[4])}")
        k(f"v_lshrrev_b32 {v(vt[0])}, 16, {v(vt[0])}")
        k(f"v_or_b32 {v(MXP[qt])}, {v(vt[0])}, {v(vt[4])}")
        k(f"v_lshrrev_b32 {v(MXP[qt] + 1)}, 16, {v(vt[1])}")
    k("s_barrier")
    k("s_branch L_k2_start")
    k.label("L_k2_end")
    k("s_endpgm")
    return name, va.hi, 40


def gen_k3(k):
    name = "k3_kernel"
    SWS, SOUT = 8, 12
    sW, sRT, sCT, sSO, sAO, sM = 16, 17, 18, 19, 20, 21
    t0, t1, t2, t3 = 24, 25, 26, 27
    kernel_head(k, name)
    k("s_cmp_ge_u32 s2, 256")
    k("s_cbranch_scc1 L_k3_end")
    diag_begin(k)
    k(f"s_load_dwordx2 s[4:5], s[0:1], {KA_WS}")
    k(f"s_load_dwordx2 s[6:7], s[0:1], {KA_OUT}")
    va = Alloc(1, 256)
    vL = va()
    vt = [va() for _ in range(6)]
    vD = [va() for _ in range(5)]
    vA = va(); vB = [va(), va()]; vG = va(); vO = va(); vO2 = va()
    AF = [va(4) for _ in range(20)]
    BF = [[va(4) for _ in range(5)] for _ in range(2)]
    ACC = [va(4) for _ in range(5)]
    BB = va(12, 4)
    k(f"v_lshrrev_b32 {v(vt[0])}, 6, v0")
    k(f"v_and_b32 {v(vL)}, 63, v0")
    k(f"v_readfirstlane_b32 {s(sW)}, {v(vt[0])}")
    k(f"s_and_b32 {s(t0)}, s2, 7")
    k(f"s_lshl_b32 {s(t0)}, {s(t0)}, 2")
    k(f"s_lshr_b32 {s(t1)}, s2, 6")
    k(f"s_add_u32 {s(sRT)}, {s(t0)}, {s(t1)}")
    k(f"s_bfe_u32 {s(sCT)}, s2, 0x30003")
    k(f"v_lshrrev_b32 {v(vt[0])}, 4, {v(vL)}")
    k(f"v_and_b32 {v(vt[1])}, 15, {v(vL)}")
    k(f"v_lshlrev_b32 {v(vt[2])}, 4, {v(vt[1])}")
    k(f"v_lshl_add_u32 {v(vA)}, {v(vt[0])}, 9, {v(vt[2])}")
    k(f"s_lshl_b32 {s(t0)}, {s(sRT)}, 1")
    k(f"s_lshr_b32 {s(t1)}, {s(sW)}, 1")
    k(f"s_add_u32 {s(t0)}, {s(t0)}, {s(t1)}")
    k(f"s_mul_i32 {s(sAO)}, {s(t0)}, {TT_O}")
    k(f"s_and_b32 {s(t1)}, {s(sW)}, 1")
    k(f"s_lshl_b32 {s(t1)}, {s(t1)}, 8")
    k(f"s_add_u32 {s(sAO)}, {s(sAO)}, {s(t1)}")
    k(f"s_add_u32 {s(sAO)}, {s(sAO)}, {WS_O}")
    k(f"v_and_b32 {v(vt[3])}, 12, {v(vL)}")
    k(f"v_add_u32 {v(vt[3])}, {v(vt[3])}, {v(vt[1])}")
    k(f"s_mul_i32 {s(t0)}, {s(sCT)}, 1280")
    for j in range(5):
        k(f"v_add_u32 {v(vt[4])}, {4 * j}, {v(vt[0])}")
        k(f"v_mul_u32_u24 {v(vt[5])}, 205, {v(vt[4])}")
        k(f"v_lshrrev_b32 {v(vt[5])}, 10, {v(vt[5])}")
        k(f"v_mad_i32_i24 {v(vt[4])}, {v(vt[5])}, -5, {v(vt[4])}")
        k(f"v_mul_u32_u24 {v(vD[j])}, {KP}, {v(vt[5])}")
        k(f"v_cmp_eq_u32 vcc, 4, {v(vt[4])}")
        k(f"v_cndmask_b32 {v(vt[5])}, {v(vt[3])}, {v(vt[1])}, vcc")
        k(f"v_lshl_add_u32 {v(vD[j])}, {v(vt[5])}, 4, {v(vD[j])}")
        k(f"v_lshrrev_b32 {v(vt[5])}, 1, {v(vt[4])}")
        k(f"v_lshl_add_u32 {v(vD[j])}, {v(vt[5])}, 9, {v(vD[j])}")
        k(f"v_and_b32 {v(vt[5])}, 1, {v(vt[4])}")
        k(f"v_lshl_add_u32 {v(vD[j])}, {v(vt[5])}, 6, {v(vD[j])}")
    k(f"s_mul_i32 {s(sSO)}, {s(sW)}, {4 * KP}")
    k(f"s_add_u32 {s(sSO)}, {s(sSO)}, {s(t0)}")
    k(f"s_add_u32 {s(sSO)}, {s(sSO)}, {WS_WT}")
    k(f"s_mul_i32 {s(sM)}, {s(sW)}, 5120")
    k("s_waitcnt lgkmcnt(0)")
    srd(k, SWS, 4, WS_SIZE)
    lq = Q(k, "lgkmcnt", 15)
    vq = Q(k, "vmcnt", 63)
    for G in range(5):
        for j in range(5):
            k(f"s_add_u32 m0, {s(sM)}, {G * 20480 + j * 1024}")
            vq.issue(f"g{G}", f"buffer_load_dwordx4 {v(vD[j])}, {s(SWS, 4)}, {s(sSO)} offen lds")
        k(f"s_add_u32 {s(sSO)}, {s(sSO)}, {16 * KP}")
        for q in range(4):
            vq.issue(f"g{G}", f"buffer_load_dwordx4 {v(AF[4 * G + q], 4)}, {v(vA)}, {s(SWS, 4)}, {s(sAO)} offen offset:{2048 * (q % 2)}")
            if q % 2:
                k(f"s_add_u32 {s(sAO)}, {s(sAO)}, 4096")
    srd(k, SOUT, 6, S_ * D_ * 2)
    k(f"s_lshl_b32 {s(t0)}, {s(sRT)}, 2")
    k(f"s_add_u32 {s(t0)}, {s(t0)}, {s(sW)}")
    k(f"s_lshl_b32 {s(t0)}, {s(t0)}, 4")
    k(f"v_add_u32 {v(vt[2])}, {s(t0)}, {v(vt[1])}")
    k(f"v_lshlrev_b32 {v(vt[3])}, 2, {v(vt[2])}")
    k(f"v_mul_u32_u24 {v(vt[2])}, 1280, {v(vt[2])}")
    k(f"v_lshl_add_u32 {v(vO)}, {v(vt[0])}, 4, {v(vt[2])}")
    k(f"v_lshl_add_u32 {v(vO2)}, {v(vt[0])}, 3, {v(vt[2])}")
    k(f"s_mul_i32 {s(t1)}, {s(sCT)}, 160")
    k(f"s_add_u32 {s(t2)}, {s(t1)}, {WS_B}")
    k(f"s_mov_b32 {s(t3)}, {WS_G}")
    vq.issue("e", f"buffer_load_dword {v(vG)}, {v(vt[3])}, {s(SWS, 4)}, {s(t3)} offen")
    vq.issue("e", f"buffer_load_dwordx4 {v(BB, 4)}, {v(vO)}, {s(SWS, 4)}, {s(t2)} offen")
    vq.issue("e", f"buffer_load_dwordx4 {v(BB + 4, 4)}, {v(vO)}, {s(SWS, 4)}, {s(t2)} offen offset:64")
    vq.issue("e", f"buffer_load_dwordx2 {v(BB + 8, 2)}, {v(vO2)}, {s(SWS, 4)}, {s(t2)} offen offset:128")
    k(f"v_mul_u32_u24 {v(vt[2])}, 1280, {v(vt[0])}")
    k(f"v_lshl_add_u32 {v(vB[0])}, {v(vt[1])}, 4, {v(vt[2])}")
    k(f"v_add_u32 {v(vB[1])}, {12 * 5120}, {v(vB[0])}")
    stamp(k, 1, lq)

    def b_reads(ks):
        st = ks % 2
        r, o = (vB[0], ks * 5120) if ks < 12 else (vB[1], (ks - 12) * 5120)
        return [(f"b{st}{t}", f"ds_read_b128 {v(BF[st][t], 4)}, {v(r)} offset:{o + 256 * t}") for t in range(5)]

    vq.wait("g0")
    k("s_barrier")
    stamp(k, 2, lq)
    for r in b_reads(0):
        lq.issue(*r)
    for ks in range(20):
        st = ks % 2
        nxt = b_reads(ks + 1) if ks + 1 < 20 else []
        for t in range(5):
            if t == 0 and (ks + 1) % 4 == 0 and nxt:
                waits(k, lg=lq.need(f"b{st}{t}"), vm=vq.need(f"g{(ks + 1) // 4}"))
            else:
                lq.wait(f"b{st}{t}")
            k(f"v_mfma_f32_16x16x32_bf16 {v(ACC[t], 4)}, {v(BF[st][t], 4)}, {v(AF[ks], 4)}, " + ("0" if ks == 0 else v(ACC[t], 4)))
            if t == 0 and (ks + 1) % 4 == 0 and nxt:
                k("s_barrier")
            if nxt:
                lq.issue(*nxt.pop(0))
    stamp(k, 3, lq)
    vq.wait("e")
    k(f"v_sub_f32 {v(vt[0])}, 1.0, {v(vG)}")
    T = AF[0]
    for c in range(10):
        k(f"v_lshlrev_b32 {v(T + 2 * c)}, 16, {v(BB + c)}")
        k(f"v_and_b32 {v(T + 2 * c + 1)}, 0xffff0000, {v(BB + c)}")
    for c in range(20):
        k(f"v_mul_f32 {v(T + c)}, {v(T + c)}, {v(vt[0])}")
    for c in range(20):
        k(f"v_fmac_f32 {v(T + c)}, {v(ACC[c // 4] + c % 4)}, {v(vG)}")
    for c in range(10):
        k(f"v_cvt_pk_bf16_f32 {v(BB + c)}, {v(T + 2 * c)}, {v(T + 2 * c + 1)}")
    k(f"buffer_store_dwordx4 {v(BB, 4)}, {v(vO)}, {s(SOUT, 4)}, {s(t1)} offen")
    k(f"buffer_store_dwordx4 {v(BB + 4, 4)}, {v(vO)}, {s(SOUT, 4)}, {s(t1)} offen offset:64")
    k(f"buffer_store_dwordx2 {v(BB + 8, 2)}, {v(vO2)}, {s(SOUT, 4)}, {s(t1)} offen offset:128")
    endpgm(k, 2, 4)
    k.label("L_k3_end")
    k("s_endpgm")
    return name, va.hi, 32


if __name__ == "__main__":
    launches = [
        "; @launch kernel=k1_kernel grid=(256,1,1) block=(512,1,1) lds=163840",
        "; @launch kernel=k2_kernel grid=(256,1,1) block=(512,1,1) lds=115776",
        "; @launch kernel=k3_kernel grid=(256,1,1) block=(256,1,1) lds=102400",
    ]
    write(sys.argv[1] if len(sys.argv) > 1 else f"cdna_kernels/{NAME}.s", launches, (gen_k1, gen_k2, gen_k3))
```

```python
from common import *
from gen3 import WS_QKV, TT_QKV, WS_H, TT_H, WS_WT, KP, WS_G, WS_SIZE, MF32, GK1, GK2, gelu_ops

ST = os.environ.get("ST_FLAG", " sc1")
E = lambda n, d: eval(os.environ.get(n, d))
LD_INIT = E("LD_INIT", "{-2: ['x0', 's0', 's1'], -1: ['x1', 's2'], 0: ['s3', 's4'], 1: ['x2', 's5']}")
LDX = os.environ.get("LDX", "")
LDW = os.environ.get("LDW", "")
LEAD = E("LEAD", "4")
ROT = E("ROT", "0")
JOB0 = E("JOB0", "9")
JOBL = E("JOBL", "5")
NOJOB = E("X_NOJOB", "0")
NOLD = E("X_NOLD", "0")
LAG = 3
NW = 12
PFD = E("PFD", "7")
PFMIN = E("PFMIN", "1")
PFD0 = E("PFD0", "3")
PFR = E("PFR", "0.5")
PFSL = E("PFSL", "0")
PFU = E("PFU", "{1: -2, 2: -2, 3: -1}")
LDP = os.environ.get("LDP", "")


def gen_k1(k):
    name = "k1_kernel"
    SLW, NSW = 20480, 5
    XB, SLX, NSX = 102400, 16384, 3
    SIDE = XB + NSX * SLX
    NSTG = 20 + LAG
    pA, pB, pWO, pWS = 4, 8, 16, 18
    sW, sRB, sCG, sCP = 20, 21, 22, 23
    t0, t1, t2, t3 = 24, 25, 26, 27
    vt = [2 + i for i in range(8)]
    vL = 1

    kernel_head(k, name)
    k("s_cmp_ge_u32 s2, 256")
    k("s_cbranch_scc1 L_k1_end")
    diag_begin(k)
    k(f"s_load_dwordx4 {s(pA, 4)}, s[0:1], {KA_X}")
    k(f"s_load_dwordx8 {s(pB, 8)}, s[0:1], {KA_WG}")
    k(f"s_load_dwordx2 {s(pWO, 2)}, s[0:1], {KA_WO}")
    k(f"s_load_dwordx2 {s(pWS, 2)}, s[0:1], {KA_WS}")
    k(f"v_lshrrev_b32 {v(vt[0])}, 6, v0")
    k(f"v_and_b32 {v(vL)}, 63, v0")
    k(f"v_readfirstlane_b32 {s(sW)}, {v(vt[0])}")
    k(f"s_bfe_u32 {s(t0)}, s2, 0x10002")
    k(f"s_lshl_b32 {s(t0)}, {s(t0)}, 3")
    k(f"s_bfe_u32 {s(t1)}, s2, 0x30003")
    k(f"s_add_u32 {s(sRB)}, {s(t0)}, {s(t1)}")
    k(f"s_and_b32 {s(t0)}, s2, 3")
    k(f"s_lshl_b32 {s(t0)}, {s(t0)}, 2")
    k(f"s_lshr_b32 {s(t1)}, s2, 6")
    k(f"s_add_u32 {s(sCG)}, {s(t0)}, {s(t1)}")
    k(f"s_lshr_b32 {s(sCP)}, {s(sCG)}, 1")
    k(f"s_cmp_ge_u32 {s(sW)}, 8")
    k("s_cbranch_scc1 L_k1_aux")

    def subtile_cols(sC):
        k(f"s_mul_i32 {s(t0)}, {s(sCP)}, 384")
        k(f"s_lshl_b32 {s(t1)}, {s(sCP)}, 9")
        k(f"s_add_u32 {s(t2)}, {s(t0)}, 256")
        k(f"s_add_u32 {s(t3)}, {s(t0)}, 128")
        k(f"s_add_u32 {s(sC[2])}, {s(t1)}, 128")
        k(f"s_add_u32 {s(sC[3])}, {s(t1)}, 256")
        k(f"s_add_u32 {s(sC[4])}, {s(t1)}, 384")
        k(f"s_bitcmp1_b32 {s(sCG)}, 0")
        k(f"s_cselect_b32 {s(sC[0])}, {s(t2)}, {s(t0)}")
        k(f"s_cselect_b32 {s(sC[2])}, {s(sC[2])}, {s(t3)}")
        k(f"s_cselect_b32 {s(sC[3])}, {s(sC[3])}, {s(t3)}")
        k(f"s_cselect_b32 {s(sC[4])}, {s(sC[4])}, {s(t1)}")
        k(f"s_mov_b32 {s(sC[1])}, {s(sC[0])}")

    def subtile_oob(sC):
        k(f"s_cmp_eq_u32 {s(sCG)}, 15")
        k(f"s_cselect_b32 {s(sC[3])}, {OOB}, {s(sC[3])}")
        k(f"s_cselect_b32 {s(sC[4])}, {OOB}, {s(sC[4])}")

    def subtile_srds(SR, sST):
        srd(k, SR[0], pB, D_ * F_ * 2)
        srd(k, SR[1], pB + 2, D_ * F_ * 2)
        srd(k, SR[4], pA + 2, D_ * 3 * D_ * 2)
        k(f"s_bitcmp1_b32 {s(sCG)}, 0")
        for j in (2, 3):
            for r in range(3):
                k(f"s_cselect_b32 {s(SR[j] + r)}, {s(SR[4] + r)}, {s(SR[j - 2] + r)}")
            k(f"s_mov_b32 {s(SR[j] + 3)}, 0x00020000")
        k(f"s_cselect_b32 {s(sST)}, 768, 0")
        k(f"s_add_u32 {s(sST)}, {s(sST)}, 3072")

    lq = Q(k, "lgkmcnt", 12)
    vq = Q(k, "vmcnt", 63)
    sRG, sCH = 28, 29
    SO = 32
    sC = [36, 37, 38, 39, 40]
    sSC = [41, 42, 43]
    sK2 = 44
    vL16, vK1 = 10, 11
    vW = [12, 13]
    vX = [0, 14, 15, 9]
    WF = [[16 + 20 * b + 4 * j for j in range(5)] for b in range(2)]
    XF = [56 + 4 * i for i in range(8)]
    ACC = [88 + 16 * j for j in range(5)]
    vI, vH = vt[6], vt[5]
    k(f"s_and_b32 {s(sRG)}, {s(sW)}, 3")
    k(f"s_lshr_b32 {s(sCH)}, {s(sW)}, 2")
    k(f"v_and_b32 {v(vI)}, 31, v0")
    k(f"v_bfe_u32 {v(vH)}, v0, 5, 1")
    k(f"v_lshlrev_b32 {v(vL16)}, 4, {v(vL)}")
    k(f"s_lshl_b32 {s(t0)}, {s(sRG)}, 12")
    k(f"s_add_u32 {s(t0)}, {s(t0)}, {XB}")
    k(f"v_lshlrev_b32 {v(vt[0])}, 7, {v(vI)}")
    k(f"v_bfe_u32 {v(vt[1])}, {v(vI)}, 1, 3")
    k(f"v_xor_b32 {v(vt[1])}, {v(vt[1])}, {v(vH)}")
    k(f"v_lshlrev_b32 {v(vt[1])}, 4, {v(vt[1])}")
    k(f"v_add3_u32 {v(vX[0])}, {v(vt[0])}, {v(vt[1])}, {s(t0)}")
    for ks in range(1, 4):
        k(f"v_xor_b32 {v(vX[ks])}, {32 * ks}, {v(vX[0])}")
    k(f"v_bfe_u32 {v(vt[0])}, {v(vL)}, 2, 2")
    k(f"v_lshl_add_u32 {v(vt[1])}, {v(vH)}, 3, {v(vt[0])}")
    k(f"v_bfe_u32 {v(vt[2])}, {v(vL)}, 4, 1")
    k(f"v_and_b32 {v(vt[3])}, 1, {v(vL)}")
    k(f"v_bfe_u32 {v(vt[4])}, {v(vL)}, 1, 1")
    k(f"v_lshlrev_b32 {v(vt[4])}, 3, {v(vt[4])}")
    k(f"v_lshl_add_u32 {v(vt[2])}, {v(vt[2])}, 1, {v(vt[3])}")
    k(f"v_bfe_u32 {v(vt[3])}, {v(vL)}, 3, 1")
    k(f"v_xor_b32 {v(vt[3])}, {s(sCH)}, {v(vt[3])}")
    k(f"v_lshl_add_u32 {v(vt[3])}, {v(vt[3])}, 2, {v(vt[2])}")
    k(f"v_lshl_add_u32 {v(vt[3])}, {v(vt[3])}, 4, {v(vt[4])}")
    k(f"v_lshl_add_u32 {v(vW[0])}, {v(vt[1])}, 7, {v(vt[3])}")
    k(f"v_add_u32 {v(vW[1])}, 65536, {v(vW[0])}")
    k(f"v_mov_b32 {v(vK1)}, {f32(GK1)}")
    k(f"s_mov_b32 {s(sK2)}, {f32(GK2)}")
    subtile_cols(sC)
    for j in (2, 3, 4):
        k(f"s_cmp_lt_u32 {s(sC[j])}, 1280")
        k(f"s_cselect_b32 {s(sSC[j - 2])}, {f32(QSCALE)}, 1.0")
    for j in range(5):
        k(f"s_lshl_b32 {s(sC[j])}, {s(sC[j])}, 5")
    k(f"s_lshl_b32 {s(t0)}, {s(sRB)}, 2")
    k(f"s_add_u32 {s(t0)}, {s(t0)}, {s(sRG)}")
    k(f"s_lshl_b32 {s(t3)}, {s(sCH)}, 11")
    k(f"s_mul_i32 {s(t1)}, {s(t0)}, {TT_QKV}")
    k(f"s_add_u32 {s(t1)}, {s(t1)}, {s(t3)}")
    k(f"s_mul_i32 {s(t2)}, {s(t0)}, {TT_H}")
    k(f"s_add_u32 {s(t2)}, {s(t2)}, {s(t3)}")
    k(f"s_add_u32 {s(t2)}, {s(t2)}, {WS_H}")
    k(f"s_add_u32 {s(sC[0])}, {s(sC[0])}, {s(t2)}")
    k(f"s_bitcmp1_b32 {s(sCG)}, 0")
    k(f"s_cselect_b32 {s(t2)}, {s(t1)}, {s(t2)}")
    k(f"s_add_u32 {s(sC[2])}, {s(sC[2])}, {s(t2)}")
    k(f"s_add_u32 {s(sC[3])}, {s(sC[3])}, {s(t1)}")
    k(f"s_add_u32 {s(sC[4])}, {s(sC[4])}, {s(t1)}")
    subtile_oob(sC)
    k("s_waitcnt lgkmcnt(0)")
    srd(k, SO, pWS, WS_SIZE)

    NS = 2 * NSTG

    def tiles(n):
        return ([2, 3, 4] if n >= 2 * LAG else []) + ([0, 1] if n < 40 else [])

    def wread(n, j):
        out = []
        for e in range(2):
            a_ = (n // 2 % NSW) * SLW + j * 4096 + (n % 2) * 2048 + e * 512
            out.append((f"w{n}_{j}", f"ds_read_b64_tr_b16 {v(WF[n % 2][j] + 2 * e, 2)}, {v(vW[a_ >> 16])} offset:{a_ & 0xffff}"))
        return out

    def xread(n):
        return [(f"x{n}", f"ds_read_b128 {v(XF[n % 8], 4)}, {v(vX[n % 4])} offset:{(n // 4 % NSX) * SLX}")]

    def gelu_tile(jg, ju, Z, so):
        ge = []
        for hf in range(2):
            G, U = ACC[jg] + 8 * hf, ACC[ju] + 8 * hf
            ge += gelu_ops(G, U, Z, 8, sK2, vK1)
            ge += [f"v_cvt_pk_bf16_f32 {v(G + c)}, {v(G + 2 * c)}, {v(G + 2 * c + 1)}" for c in range(4)]
            ge.append(f"buffer_store_dwordx4 {v(G, 4)}, {v(vL16)}, {s(SO, 4)}, {s(so)} offen offset:{1024 * hf}{ST}")
        return ge

    def qkv_tile(j):
        ep = []
        for hf in range(2):
            A = ACC[j] + 8 * hf
            ep += [f"v_mul_f32 {v(A + r)}, {s(sSC[j - 2])}, {v(A + r)}" for r in range(8)]
            ep += [f"v_cvt_pk_bf16_f32 {v(A + c)}, {v(A + 2 * c)}, {v(A + 2 * c + 1)}" for c in range(4)]
            ep.append(f"buffer_store_dwordx4 {v(A, 4)}, {v(vL16)}, {s(SO, 4)}, {s(sC[j])} offen offset:{1024 * hf}{ST}")
        return ep

    stamp(k, 1)
    k("s_barrier")
    stamp(k, 2)
    seq = [(n, j) for n in range(NS) for j in tiles(n)]
    idx = {x: i for i, x in enumerate(seq)}
    first = {n: idx[(n, tiles(n)[0])] for n in range(NS)}
    att = {}
    for n, j in seq:
        lo = -1 if n < 2 else first[n - 2]
        if j == 0:
            e_ = max(lo, idx.get((n - 8 + 2 * LAG, 4), -2) + 1)
            att.setdefault(e_, []).extend(xread(n))
        e_ = max(lo, idx.get((n - 2, j), -2) + 1)
        att.setdefault(e_, []).extend(wread(n, j))
    for r in att[-1]:
        lq.issue(*r)
    fq = []
    for i, (n, j) in enumerate(seq):
        if i == first[40] + 1:
            fq = gelu_tile(0, 1, WF[0][0], sC[0])
            fn = (len(fq) + 16) // 17
        xs = n if j < 2 else n - 2 * LAG
        lq.wait(f"w{n}_{j}", f"x{xs}")
        k(f"{MF32} {v(ACC[j], 16)}, {v(WF[n % 2][j], 4)}, {v(XF[xs % 8], 4)}, " + ("0" if xs == 0 else v(ACC[j], 16)))
        if i == first[n] and n % 2 == 0 and n + 2 < NS:
            k("s_barrier")
        for r in att.get(i, []):
            lq.issue(*r)
        for _ in range(fn if fq else 0):
            if fq:
                k(fq.pop(0))
    assert not fq
    stamp(k, 7, lq)
    k(f"s_bitcmp1_b32 {s(sCG)}, 0")
    k("s_cbranch_scc1 L_k1_odd")
    ge = gelu_tile(2, 3, WF[0][0], sC[2])
    ep = qkv_tile(4)
    for t in ge[:37] + ep + ge[37:]:
        k(t)
    endpgm(k, 0, NW)
    k.label("L_k1_odd")
    for j in (2, 3, 4):
        for t in qkv_tile(j):
            k(t)
    endpgm(k, 0, NW)

    k.label("L_k1_aux")
    k("s_setprio 3")
    k(f"s_cmp_eq_u32 {s(sW)}, 10")
    k("s_cbranch_scc1 L_k1_job")
    SR = [28, 32, 36, 40, 44]
    SX = 48
    sC = [52, 53, 54, 55, 56]
    sST, sXO, sLW = 57, 58, 59
    subtile_cols(sC)
    subtile_oob(sC)

    k(f"s_cmp_eq_u32 {s(sW)}, 11")
    k("s_cbranch_scc1 L_k1_pf")
    vq.q = []
    oX = [10, 11, 12, 13]
    oF = [14, 15]
    oQ = [16, 17]
    oM = [18, 19]
    sS32 = 3
    k(f"s_and_b32 {s(sLW)}, {s(sW)}, 1")
    k(f"v_lshrrev_b32 {v(vt[0])}, 3, {v(vL)}")
    k(f"v_and_b32 {v(vt[1])}, 7, {v(vL)}")
    k(f"v_lshrrev_b32 {v(vt[2])}, 4, {v(vL)}")
    k(f"s_lshl_b32 {s(t0)}, {s(sRB)}, 1")
    k(f"s_add_u32 {s(t0)}, {s(t0)}, {s(sLW)}")
    k(f"s_mul_i32 {s(sXO)}, {s(t0)}, {64 * 1280}")
    k(f"v_mul_u32_u24 {v(vt[3])}, 1280, {v(vt[0])}")
    k(f"v_xor_b32 {v(vt[4])}, {v(vt[1])}, {v(vt[2])}")
    k(f"v_lshl_add_u32 {v(oX[0])}, {v(vt[4])}, 4, {v(vt[3])}")
    k(f"v_xor_b32 {v(oX[1])}, 64, {v(oX[0])}")
    k(f"v_add_u32 {v(oX[1])}, {8 * 1280 - 1024}, {v(oX[1])}")
    k(f"v_add_u32 {v(oX[2])}, {16 * 1280 - 2048}, {v(oX[0])}")
    k(f"v_add_u32 {v(oX[3])}, {16 * 1280 - 2048}, {v(oX[1])}")
    k(f"v_and_b32 {v(vt[2])}, 1, {v(vt[2])}")
    k(f"v_lshlrev_b32 {v(vt[2])}, 2, {v(vt[2])}")
    k(f"v_xor_b32 {v(vt[2])}, {v(vt[2])}, {v(vt[1])}")
    k(f"v_lshlrev_b32 {v(vt[2])}, 4, {v(vt[2])}")
    k(f"s_lshl_b32 {s(t0)}, {s(sLW)}, 4")
    k(f"v_add_u32 {v(vt[3])}, {s(t0)}, {v(vt[0])}")
    k(f"v_mul_u32_u24 {v(vt[4])}, 3072, {v(vt[3])}")
    k(f"v_add_u32 {v(oF[0])}, {v(vt[4])}, {v(vt[2])}")
    k(f"v_add_u32 {v(oF[1])}, {8 * 3072 - 1024}, {v(oF[0])}")
    k(f"v_mul_u32_u24 {v(vt[4])}, 3840, {v(vt[3])}")
    k(f"v_add_u32 {v(oQ[0])}, {v(vt[4])}, {v(vt[2])}")
    k(f"v_add_u32 {v(oQ[1])}, {8 * 3840 - 1024}, {v(oQ[0])}")
    k(f"s_bitcmp1_b32 {s(sCG)}, 0")
    k("s_cselect_b64 vcc, -1, 0")
    for q in range(2):
        k(f"v_cndmask_b32 {v(oM[q])}, {v(oF[q])}, {v(oQ[q])}, vcc")
    k(f"s_lshl_b32 {s(t3)}, {s(sLW)}, 13")
    k(f"s_lshl_b32 {s(sLW)}, {s(sLW)}, 11")
    k("s_waitcnt lgkmcnt(0)")
    srd(k, SX, pA, S_ * D_ * 2)
    subtile_srds(SR, sST)
    sKX, sKA, sKB = 3, 20, 23
    k(f"s_and_b32 {s(t0)}, {s(sCG)}, 3")
    k(f"s_mul_i32 {s(t0)}, {s(t0)}, 5")
    k(f"s_add_u32 {s(t0)}, {s(t0)}, 1")
    k(f"s_lshr_b32 {s(t0)}, {s(t0)}, 1")
    k(f"s_and_b32 {s(t1)}, {s(sRB)}, 7")
    k(f"s_add_u32 {s(t0)}, {s(t0)}, {s(t1)}")
    k(f"s_cmp_ge_u32 {s(t0)}, 10")
    k(f"s_cselect_b32 {s(t1)}, 10, 0")
    k(f"s_sub_u32 {s(t0)}, {s(t0)}, {s(t1)}")
    if not ROT:
        k(f"s_mov_b32 {s(t0)}, 0")
    elif ROT > 1:
        tab = sum((((i % ROT) * 10 + ROT // 2) // ROT if i % ROT else 0) << (4 * i) for i in range(11))
        k(f"s_and_b32 {s(t0)}, {s(sCG)}, 3")
        k(f"s_and_b32 {s(t1)}, {s(sRB)}, 7")
        k(f"s_add_u32 {s(t0)}, {s(t0)}, {s(t1)}")
        k(f"s_lshl_b32 {s(t0)}, {s(t0)}, 2")
        k(f"s_mov_b32 {s(pWO)}, {tab & 0xffffffff}")
        k(f"s_mov_b32 {s(pWO + 1)}, {tab >> 32}")
        k(f"s_lshr_b64 {s(pWO, 2)}, {s(pWO, 2)}, {s(t0)}")
        k(f"s_and_b32 {s(t0)}, {s(pWO)}, 15")
    k(f"s_lshl_b32 {s(sKX)}, {s(t0)}, 7")
    k(f"s_lshl_b32 {s(sKA)}, {s(t0)}, 6")
    k(f"s_lshl_b32 {s(sKB)}, {s(t0)}, 6")

    def adv(r, step, lim):
        k(f"s_add_u32 {s(r)}, {s(r)}, {step}")
        k(f"s_cmp_ge_u32 {s(r)}, {lim}")
        k(f"s_cselect_b32 {s(r)}, 0, {s(r)}")
    OFF = [oF, oF, oM, oM, oQ]
    if E("LD_SLEEP", "0"):
        k(f"s_sleep {E('LD_SLEEP', '0')}")

    def fill(nm):
        if nm[0] == "x":
            c = int(nm[1:])
            k(f"s_add_u32 {s(t0)}, {s(sXO)}, {s(sKX)}")
            for hq in range(2):
                k(f"s_add_u32 m0, {s(t3)}, {XB + (c % NSX) * SLX + hq * 4096}")
                if hq:
                    k(f"s_add_u32 {s(t0)}, {s(t0)}, {32 * 1280}")
                else:
                    adv(sKX, 128, 1280)
                for q in range(4):
                    vq.issue(nm, f"buffer_load_dwordx4 {v(oX[q])}, {s(SX, 4)}, {s(t0)} offen offset:{1024 * q}{LDX} lds")
        else:
            t = int(nm[1:])
            for j in tiles(2 * t):
                k(f"s_add_u32 m0, {s(sLW)}, {(t % NSW) * SLW + j * 4096}")
                st = {0: "3072", 1: "3072", 2: s(sST), 3: s(sST), 4: "3840"}[j]
                k(f"s_mul_i32 {s(t0)}, {s(sKA if j < 2 else sKB)}, {st}")
                k(f"s_add_u32 {s(t0)}, {s(t0)}, {s(sC[j])}")
                for q in range(2):
                    vq.issue(nm, f"buffer_load_dwordx4 {v(OFF[j][q])}, {s(SR[j], 4)}, {s(t0)} offen offset:{1024 * q}{LDW} lds")
                if j in (1, 4):
                    adv(sKA if j < 2 else sKB, 32, 640)

    sched = {u: list(l) for u, l in LD_INIT.items()}
    done = set(x for l in sched.values() for x in l)
    for u in range(max(sched) + 1, NSTG):
        l = []
        if (u + LEAD) % 2 == 0 and (u + LEAD) // 2 < 10:
            l.append(f"x{(u + LEAD) // 2}")
        if u + LEAD < NSTG:
            l.append(f"s{u + LEAD}")
        sched[u] = [x for x in l if x not in done]
        done |= set(l)
    assert done == {f"x{c}" for c in range(10)} | {f"s{t}" for t in range(NSTG)}, sorted(done)
    order = [x for u in sorted(sched) for x in sched[u] if x[0] == "s"]
    assert order == sorted(order, key=lambda x: int(x[1:]))
    order = [x for u in sorted(sched) for x in sched[u] if x[0] == "x"]
    assert order == sorted(order, key=lambda x: int(x[1:]))
    for u, l in sched.items():
        for x in l:
            i = int(x[1:])
            if x[0] == "x":
                assert u < 2 * i - 1 and (i < NSX or u >= 2 * (i - NSX) + 2), (u, x)
            else:
                assert u < i - 1 and (i < NSW or u >= i - NSW + 1), (u, x)
    for u in range(-2, NSTG - 1):
        if u >= -1:
            vq.wait(f"s{u + 1}", f"x{(u + 1) // 2}" if u % 2 else "-")
            k("s_barrier")
            if DIAG and u >= 17:
                stamp(k, u - 15)
        for x in sched.get(u, []):
            if not (NOLD and u >= NOLD):
                fill(x)
        if u == -2:
            stamp(k, 1)
    endpgm(k, 0, NW)

    k.label("L_k1_pf")
    oPX, oPF, oPQ, oPM = 10, 11, 12, 13
    sCL = 3
    k(f"s_sub_u32 {s(sCL)}, {s(sCG)}, {s(sRB)}")
    k(f"s_and_b32 {s(sCL)}, {s(sCL)}, 3")
    k(f"s_mul_i32 {s(sXO)}, {s(sRB)}, {128 * 1280}")
    k(f"s_add_u32 {s(sLW)}, {s(sXO)}, {64 * 1280}")
    k(f"v_mul_u32_u24 {v(oPX)}, 1280, {v(vL)}")
    k(f"s_and_b32 {s(t0)}, {s(sRB)}, 4")
    k(f"s_lshl_b32 {s(t0)}, {s(t0)}, 3")
    k(f"v_add_u32 {v(vt[0])}, {s(t0)}, {v(vL)}")
    k(f"v_lshrrev_b32 {v(vt[1])}, 5, {v(vL)}")
    k(f"v_mul_u32_u24 {v(oPF)}, 3072, {v(vt[0])}")
    k(f"v_lshl_add_u32 {v(oPF)}, {v(vt[1])}, 30, {v(oPF)}")
    k(f"v_mul_u32_u24 {v(oPQ)}, 3840, {v(vt[0])}")
    k(f"v_lshl_add_u32 {v(oPQ)}, {v(vt[1])}, 30, {v(oPQ)}")
    k(f"s_bitcmp1_b32 {s(sCG)}, 0")
    k("s_cselect_b64 vcc, -1, 0")
    k(f"v_cndmask_b32 {v(oPM)}, {v(oPF)}, {v(oPQ)}, vcc")
    k("s_waitcnt lgkmcnt(0)")
    srd(k, SX, pA, S_ * D_ * 2)
    subtile_srds(SR, sST)
    POFF = [oPF, oPF, oPM, oPM, oPQ]

    def batch(c):
        k(f"s_cmp_eq_u32 {s(sCL)}, {c % 4}")
        k(f"s_cbranch_scc0 L_k1_pb{c}")
        if c < 10:
            for so in (sXO, sLW):
                k(f"buffer_load_dword {v(20)}, {v(oPX)}, {s(SX, 4)}, {s(so)} offen offset:{128 * c}{LDP}")
        for j in range(5):
            cc = c if j < 2 else c - 1
            if cc >= 10:
                continue
            if j in (2, 3):
                k(f"s_mul_i32 {s(t0)}, {s(sST)}, {64 * cc}")
                k(f"s_add_u32 {s(t0)}, {s(t0)}, {s(sC[j])}")
            else:
                k(f"s_add_u32 {s(t0)}, {s(sC[j])}, {64 * cc * (3072 if j < 2 else 3840)}")
            k(f"buffer_load_dword {v(20)}, {v(POFF[j])}, {s(SR[j], 4)}, {s(t0)} offen{LDP}")
        k.label(f"L_k1_pb{c}")
    if PFSL:
        k(f"s_sleep {PFSL}")
    for u in range(-2, NSTG - 1):
        if u >= -1:
            k("s_barrier")
            if u <= 7:
                stamp(k, u + 2)
        for c in range(PFMIN, 11):
            if PFU.get(c, 2 * c - PFD) == u:
                batch(c)
    endpgm(k, 0, NW)

    k.label("L_k1_job")
    vq.q, lq.q = [], []
    SO, SJ, SG = 28, 32, 36
    sJS, sJD = 40, 50
    oJ = [10, 11]
    vJR, vL16, vGX, vG, vGO = 12, 13, 14, 15, 9
    GW = 16
    XG = 56
    J = 60
    k(f"v_lshrrev_b32 {v(vt[0])}, 3, {v(vL)}")
    k(f"v_and_b32 {v(vt[1])}, 7, {v(vL)}")
    k(f"v_lshlrev_b32 {v(vL16)}, 4, {v(vL)}")
    k(f"v_mul_u32_u24 {v(vt[2])}, 1280, {v(vt[0])}")
    k(f"v_lshl_add_u32 {v(oJ[0])}, {v(vt[1])}, 4, {v(vt[2])}")
    k(f"v_add_u32 {v(oJ[1])}, {8 * 1280 - 1024}, {v(oJ[0])}")
    k(f"v_bfe_u32 {v(vt[2])}, {v(vL)}, 2, 2")
    k(f"v_lshrrev_b32 {v(vt[3])}, 4, {v(vL)}")
    k(f"v_lshlrev_b32 {v(vt[3])}, 5, {v(vt[3])}")
    k(f"v_lshl_add_u32 {v(vt[3])}, {v(vt[2])}, 7, {v(vt[3])}")
    k(f"v_and_b32 {v(vt[4])}, 3, {v(vL)}")
    k(f"v_lshl_add_u32 {v(vt[3])}, {v(vt[4])}, 3, {v(vt[3])}")
    k(f"v_add_u32 {v(vJR)}, {SIDE}, {v(vt[3])}")
    SXG = 44
    sGX = 48
    k(f"s_lshl_b32 {s(t0)}, {s(sRB)}, 4")
    k(f"s_add_u32 {s(t0)}, {s(t0)}, {s(sCG)}")
    k(f"s_mul_i32 {s(sGX)}, {s(t0)}, {8 * 1280}")
    k(f"v_lshlrev_b32 {v(vt[2])}, 4, {v(vt[1])}")
    k(f"v_lshlrev_b32 {v(vGO)}, 2, {v(vt[0])}")
    k(f"v_lshl_add_u32 {v(vGO)}, {v(vt[1])}, 27, {v(vGO)}")
    k(f"v_mov_b32 {v(vG)}, 0")
    k("s_waitcnt lgkmcnt(0)")
    srd(k, SG, pB + 6, D_ * 2)
    srd(k, SO, pWS, WS_SIZE)
    srd(k, SXG, pA, S_ * D_ * 2)

    def job_dma(j):
        k(f"s_add_u32 {s(t0)}, s2, {256 * j}")
        k(f"s_mul_i32 {s(t1)}, {s(t0)}, 52429")
        k(f"s_lshr_b32 {s(t1)}, {s(t1)}, 19")
        k(f"s_mul_i32 {s(t2)}, {s(t1)}, 10")
        k(f"s_sub_u32 {s(t2)}, {s(t0)}, {s(t2)}")
        k(f"s_mul_i32 {s(sJD + j)}, {s(t1)}, {2 * KP}")
        k(f"s_lshl_b32 {s(t3)}, {s(t2)}, 10")
        k(f"s_add_u32 {s(sJD + j)}, {s(sJD + j)}, {s(t3)}")
        k(f"s_add_u32 {s(sJD + j)}, {s(sJD + j)}, {WS_WT}")
        k(f"s_cmp_ge_u32 {s(t1)}, 40")
        k(f"s_cselect_b32 {s(SJ)}, {s(pB + 4)}, {s(pWO)}")
        k(f"s_cselect_b32 {s(t3)}, {s(pB + 5)}, {s(pWO + 1)}")
        k(f"s_cselect_b32 {s(SJ + 2)}, {(F_ - D_) * D_ * 2}, 0")
        k(f"s_cselect_b32 {s(sJS)}, 40, 0")
        k(f"s_and_b32 {s(SJ + 1)}, {s(t3)}, 0xffff")
        k(f"s_add_u32 {s(SJ + 2)}, {s(SJ + 2)}, {D_ * D_ * 2}")
        k(f"s_mov_b32 {s(SJ + 3)}, 0x00020000")
        k(f"s_sub_u32 {s(t1)}, {s(t1)}, {s(sJS)}")
        k(f"s_mul_i32 {s(sJS)}, {s(t1)}, {16 * 1280}")
        k(f"s_lshl_b32 {s(t2)}, {s(t2)}, 7")
        k(f"s_add_u32 {s(sJS)}, {s(sJS)}, {s(t2)}")
        if 256 * j + 255 >= 1360:
            k(f"s_cmp_ge_u32 {s(t0)}, 1360")
            k(f"s_cselect_b32 {s(sJS)}, {OOB}, {s(sJS)}")
            k(f"s_cselect_b32 {s(sJD + j)}, {OOB}, {s(sJD + j)}")
        k(f"s_mov_b32 m0, {SIDE + 2048 * j}")
        vq.issue(f"j{j}", f"buffer_load_dwordx4 {v(oJ[0])}, {s(SJ, 4)}, {s(sJS)} offen lds")
        vq.issue(f"j{j}", f"buffer_load_dwordx4 {v(oJ[1])}, {s(SJ, 4)}, {s(sJS)} offen offset:1024 lds")

    def job_out(j):
        vq.wait(f"j{j}")
        R = J + 8 * (j % 2)
        for q in range(4):
            lq.issue("jr", f"ds_read_b64_tr_b16 {v(R + 2 * q, 2)}, {v(vJR)} offset:{2048 * j + 512 * q}")
        lq.wait("jr")
        vq.issue("st", f"buffer_store_dwordx4 {v(R, 4)}, {v(vL16)}, {s(SO, 4)}, {s(sJD + j)} offen{ST}")
        k(f"s_add_u32 {s(sJD + j)}, {s(sJD + j)}, {KP}")
        vq.issue("st", f"buffer_store_dwordx4 {v(R + 4, 4)}, {v(vL16)}, {s(SO, 4)}, {s(sJD + j)} offen{ST}")

    for u in range(-1, NSTG - 1):
        k("s_barrier")
        if 8 <= u <= 16:
            stamp(k, u - 7)
        if NOJOB:
            continue
        if u == JOB0 - 2:
            for c in range(10):
                vq.issue("gw", f"buffer_load_dwordx4 {v(GW + 4 * c, 4)}, {v(vt[2])}, {s(SG, 4)}, 0 offen offset:{128 * c}")
        if u == JOB0 - 1:
            for c in range(10):
                vq.issue("gx", f"buffer_load_dwordx4 {v(76 + 4 * c, 4)}, {v(oJ[0])}, {s(SXG, 4)}, {s(sGX)} offen offset:{128 * c}")
        if 0 <= u - JOB0 - JOBL < 6:
            job_out(u - JOB0 - JOBL)
        if 0 <= u - JOB0 < 6:
            job_dma(u - JOB0)
        if u == JOB0 + 3:
            g = vG
            vq.wait("gx", "gw")
            for c in range(40):
                k(f"v_dot2c_f32_bf16 {v(vG)}, {v(76 + c)}, {v(GW + c)}")
            k(f"v_add_f32_dpp {v(g)}, {v(g)}, {v(g)} quad_perm:[1,0,3,2] row_mask:0xf bank_mask:0xf")
            k(f"v_add_f32_dpp {v(g)}, {v(g)}, {v(g)} quad_perm:[2,3,0,1] row_mask:0xf bank_mask:0xf")
            k(f"v_add_f32_dpp {v(g)}, {v(g)}, {v(g)} row_half_mirror row_mask:0xf bank_mask:0xf")
            k(f"s_mov_b32 {s(t1)}, {f32(-LOG2E)}")
            k(f"s_lshl_b32 {s(t0)}, {s(sRB)}, 4")
            k(f"s_add_u32 {s(t0)}, {s(t0)}, {s(sCG)}")
            k(f"s_lshl_b32 {s(t0)}, {s(t0)}, 5")
            k(f"s_add_u32 {s(t0)}, {s(t0)}, {WS_G}")
            k(f"v_cvt_pk_bf16_f32 {v(g)}, {v(g)}, {v(g)}")
            k(f"v_lshlrev_b32 {v(g)}, 16, {v(g)}")
            k(f"v_mul_f32 {v(g)}, {s(t1)}, {v(g)}")
            k(f"v_exp_f32 {v(g)}, {v(g)}")
            k(f"v_add_f32 {v(g)}, 1.0, {v(g)}")
            k(f"v_rcp_f32 {v(g)}, {v(g)}")
            k(f"v_cvt_pk_bf16_f32 {v(g)}, {v(g)}, {v(g)}")
            k(f"v_lshlrev_b32 {v(g)}, 16, {v(g)}")
            vq.issue("st", f"buffer_store_dword {v(g)}, {v(vGO)}, {s(SO, 4)}, {s(t0)} offen{ST}")
    assert JOB0 + JOBL + 5 < NSTG - 1
    endpgm(k, 0, NW)
    k.label("L_k1_end")
    k("s_endpgm")
    return name, 168, 60
```

```python
from common import *
from gen3 import gen_k2, gen_k3
from k1v6 import gen_k1
if __name__ == "__main__":
    launches = [
        "; @launch kernel=k1_kernel grid=(256,1,1) block=(768,1,1) lds=163840",
        "; @launch kernel=k2_kernel grid=(256,1,1) block=(512,1,1) lds=115776",
        "; @launch kernel=k3_kernel grid=(256,1,1) block=(256,1,1) lds=102464",
    ]
    write(sys.argv[1] if len(sys.argv) > 1 else f"cdna_kernels/{NAME}.s", launches, (gen_k1, gen_k2, gen_k3))
```

```python
import sys, struct, math, os
sys.path.insert(0, "gen")
from asmgen import Asm, Alloc, v, s, a

NAME = "gated_mix__mha_block__geglu_ffn__prompt"
S_, D_, H_, DH, F_ = 2048, 640, 32, 20, 1536
KA_X, KA_WQKV, KA_WO, KA_BX, KA_WG, KA_WU, KA_WD, KA_GW, KA_OUT, KA_DBG, KA_WS = [8 * i for i in range(11)]
DIAG = int(os.environ.get("DIAG", "0"))
DIAG_BASE = 0x2000000
NST = 12
LOG2E = math.log2(math.e)
QSCALE = LOG2E / math.sqrt(DH)
OOB = 0x40000000


def f32(x):
    return "0x%08x" % struct.unpack("<I", struct.pack("<f", x))[0]


class Q:
    def __init__(self, k, cnt, cap):
        self.k, self.cnt, self.cap = k, cnt, cap
        self.q = []

    def issue(self, tag, text):
        self.k(text)
        self.q.append(tag)

    def need(self, *tags):
        idx = -1
        for i, t in enumerate(self.q):
            if t in tags:
                idx = i
        if idx < 0:
            return None
        n = len(self.q) - 1 - idx
        if n > self.cap:
            idx += n - self.cap
            n = self.cap
        self.q = self.q[idx + 1:]
        return n

    def wait(self, *tags):
        n = self.need(*tags)
        if n is not None:
            self.k(f"s_waitcnt {self.cnt}({n})")

    def all(self):
        n = 0 if self.q else None
        self.q = []
        return n


def waits(k, lg=None, vm=None):
    parts = []
    if vm is not None:
        parts.append(f"vmcnt({vm})")
    if lg is not None:
        parts.append(f"lgkmcnt({lg})")
    if parts:
        k("s_waitcnt " + " ".join(parts))


def srd(k, d, base, size):
    k(f"s_mov_b32 {s(d)}, {s(base)}")
    k(f"s_and_b32 {s(d + 1)}, {s(base + 1)}, 0xffff")
    k(f"s_mov_b32 {s(d + 2)}, {size}")
    k(f"s_mov_b32 {s(d + 3)}, 0x00020000")


TICKET = int(os.environ.get("TICKET", "0"))


def ticket(k, nm, ka, base, stride, size, lds):
    if not TICKET:
        return
    k(f"s_load_dwordx2 s[40:41], s[0:1], {ka}")
    k("s_getreg_b32 s42, hwreg(HW_REG_XCC_ID)")
    k("v_cmp_eq_u32 vcc, 0, v0")
    k(f"v_mov_b32 v1, {lds}")
    k(f"s_cbranch_vccz L_{nm}_tw")
    k("s_and_b32 s42, s42, 7")
    k("s_lshl_b32 s42, s42, 2")
    k("s_lshr_b32 s43, s2, 6")
    k("s_add_u32 s42, s42, s43")
    k("s_mov_b32 s43, 0")
    k("s_mov_b64 exec, 1")
    k("s_waitcnt lgkmcnt(0)")
    srd(k, 44, 40, size)
    k.label(f"L_{nm}_tl")
    k(f"s_mul_i32 s48, s42, {stride}")
    if base:
        k(f"s_add_u32 s48, s48, {base}")
    k("v_mov_b32 v2, 1")
    k("buffer_atomic_add v2, off, s[44:47], s48 sc0")
    k("s_lshr_b32 s48, s42, 2")
    k("s_and_b32 s41, s42, 3")
    k("s_lshl_b32 s41, s41, 6")
    k("s_add_u32 s48, s48, s41")
    k("s_add_u32 s42, s42, 1")
    k("s_and_b32 s42, s42, 31")
    k("s_add_u32 s43, s43, 1")
    k("s_waitcnt vmcnt(0)")
    k("v_readfirstlane_b32 s49, v2")
    k("v_lshl_add_u32 v2, v2, 3, s48")
    k("s_cmp_lt_u32 s49, 8")
    k(f"s_cbranch_scc1 L_{nm}_tp")
    k("s_cmp_lt_u32 s43, 32")
    k(f"s_cbranch_scc1 L_{nm}_tl")
    k("v_mov_b32 v2, s2")
    k.label(f"L_{nm}_tp")
    k("ds_write_b32 v1, v2")
    k("s_mov_b64 exec, -1")
    k("s_waitcnt lgkmcnt(0)")
    k.label(f"L_{nm}_tw")
    k("s_barrier")
    k("ds_read_b32 v2, v1")
    k("s_waitcnt lgkmcnt(0)")
    k("v_readfirstlane_b32 s2, v2")


def diag_begin(k):
    if not DIAG:
        return
    k(f"s_load_dwordx2 s[88:89], s[0:1], {KA_WS}")
    k("s_memrealtime s[86:87]")
    k("s_memtime s[60:61]")
    for i in range(1, NST):
        k(f"s_mov_b32 s{60 + 2 * i}, 0")
    k("s_waitcnt lgkmcnt(0)")
    k("s_memtime s[80:81]")
    k("s_mov_b32 s92, s88")
    k("s_and_b32 s93, s89, 0xffff")
    k("s_mov_b32 s94, 0x4000000")
    k("s_mov_b32 s95, 0x00020000")
    k("v_lshrrev_b32 v1, 6, v0")
    k("s_nop 1")
    k("v_readfirstlane_b32 s85, v1")


def stamp(k, i, lq=None):
    if not DIAG:
        return
    k(f"s_memtime s[{60 + 2 * i}:{61 + 2 * i}]")
    k("s_waitcnt lgkmcnt(0)")
    if lq is not None:
        lq.q = []


def endpgm(k, kid, wpw):
    if DIAG:
        k("s_waitcnt vmcnt(0)")
        k(f"s_memtime s[{60 + 2 * (NST - 1)}:{61 + 2 * (NST - 1)}]")
        k("s_memrealtime s[88:89]")
        k("s_getreg_b32 s90, hwreg(HW_REG_HW_ID)")
        k("s_getreg_b32 s91, hwreg(HW_REG_XCC_ID)")
        k("s_waitcnt lgkmcnt(0)")
        k("s_mov_b64 exec, 1")
        k(f"s_mul_i32 s84, s2, {wpw}")
        k("s_add_u32 s84, s84, s85")
        k("s_lshl_b32 s84, s84, 6")
        k(f"s_add_u32 s84, s84, {DIAG_BASE + kid * 0x80000}")
        k("v_mov_b32 v1, 0")
        for i in range(NST):
            k(f"v_mov_b32 v{4 + i}, s{60 + 2 * i}")
        k("v_mov_b32 v16, s86")
        k("v_mov_b32 v17, s88")
        k("v_mov_b32 v18, s90")
        k("v_mov_b32 v19, s91")
        for j in range(4):
            k(f"buffer_store_dwordx4 v[{4 + 4 * j}:{7 + 4 * j}], v1, s[92:95], s84 offen offset:{16 * j}")
    k("s_endpgm")


def kernel_head(k, name):
    k(".text")
    k(f".globl {name}")
    k(".p2align 8")
    k(f".type {name},@function")
    k.label(name)


def kernel_desc(name, nv, ns, accum=None):
    if accum is None:
        accum = (nv + 3) // 4 * 4
    if DIAG:
        ns = 100
    return f""".section .rodata,"a"
.p2align 6
.amdhsa_kernel {name}
  .amdhsa_next_free_vgpr {nv}
  .amdhsa_next_free_sgpr {ns}
  .amdhsa_accum_offset {accum}
  .amdhsa_group_segment_fixed_size 0
  .amdhsa_kernarg_size 88
  .amdhsa_user_sgpr_count 2
  .amdhsa_user_sgpr_kernarg_segment_ptr 1
  .amdhsa_system_sgpr_workgroup_id_x 1
.end_amdhsa_kernel
"""


def write(out, launches, gens):
    hdr = open(f"cdna_kernels/{NAME}.s.ref").read().split("\n")
    hdr = [l for l in hdr if l.startswith(";") and "@launch" not in l and "Override launch" not in l
           and "grid=ceil" not in l]
    text = "\n".join(hdr + launches) + "\n" + '.amdgcn_target "amdgcn-amd-amdhsa--gfx950"\n'
    descs = ""
    for g in gens:
        k = Asm()
        name, nv, ns = g(k)
        t = k.finalize()
        text += t
        descs += kernel_desc(name, nv, ns)
        print(name, "vgprs", nv, "lines", t.count("\n"), "nops", t.count("; hz"))
    open(out, "w").write(text + descs)
```

```python
from common import *

WS_QKV, TT_QKV = 0, 122880
WS_H, TT_H = 0x780000, 98304
WS_O, TT_O = 0xD80000, 40960
WS_WT, KP = 0x1000000, 10240
WS_B = 0x12B0000
WS_G = 0x1530000
WS_TK = 0x1532000
WS_VB = 0x1600000
WS_SIZE = 0x1D80000
VDELTA = WS_VB - 160 * 512
MF32 = "v_mfma_f32_32x32x16_bf16"
GK1 = -2.0 * LOG2E * math.sqrt(2.0 / math.pi)
GK2 = GK1 * 0.044715
ST_FLAG = os.environ.get("ST_FLAG", "")
K1_PF_INIT = int(os.environ.get("K1_PF_INIT", "3"))
K1_PF0_STEPS = eval(os.environ.get("K1_PF0_STEPS", "[0, 2]"))
K1_PF1_STEPS = eval(os.environ.get("K1_PF1_STEPS", "[4, 5, 6]"))
X_NOFILL = int(os.environ.get("X_NOFILL", "99"))
X_NOBAR = int(os.environ.get("X_NOBAR", "0"))
X_NOEP = int(os.environ.get("X_NOEP", "0"))
K1_SETUP_FIRST = int(os.environ.get("K1_SETUP_FIRST", "1"))
K1_FILLS = eval(os.environ.get("K1_FILLS", "{0: [0, 1, 2, 3], 1: [4, 5, 6, 7], 2: [8, 9], 3: [10, 11], 4: [12, 13], 5: [14, 15], 6: [16, 17], 7: [18, 19], 8: [20, 21], 9: [22, 23], 10: [24, 25], 11: [26, 27], 12: [28, 29], 13: [30, 31], 14: [32], 15: [33], 16: [34]}"))


def gelu_ops(G, U, Z, n, sK2, vK1):
    ops = []
    for b in range(0, n, 4):
        R = range(b, b + 4)
        ops += [f"v_mul_f32 {v(Z + r)}, {v(G + r)}, {v(G + r)}" for r in R]
        ops += [f"v_fma_f32 {v(Z + r)}, {v(Z + r)}, {s(sK2)}, {v(vK1)}" for r in R]
        ops += [f"v_mul_f32 {v(Z + r)}, {v(Z + r)}, {v(G + r)}" for r in R]
        ops += [f"v_exp_f32 {v(Z + r)}, {v(Z + r)}" for r in R]
        ops += [f"v_mul_f32 {v(G + r)}, {v(G + r)}, {v(U + r)}" for r in R]
        ops += [f"v_add_f32 {v(Z + r)}, 1.0, {v(Z + r)}" for r in R]
        ops += [f"v_rcp_f32 {v(Z + r)}, {v(Z + r)}" for r in R]
        ops += [f"v_mul_f32 {v(G + r)}, {v(G + r)}, {v(Z + r)}" for r in R]
    return ops


def gen_k1(k):
    name = "k1_kernel"
    NSL, SL = 9, 16384
    SIDE = NSL * SL
    SX, SW0, SW1, SO, SJ = 8, 12, 16, 20, 24
    SP = SX
    SP1 = SW0
    sW, sRG, sCH, sRB, sCG, sW2K, sSO, sW4K = 28, 29, 30, 31, 32, 33, 34, 35
    pA, pB, pWO, pWS = 4, 36, 44, 46
    t0, t1, t2, t3 = 48, 49, 50, 51
    sQO, sQO2, sSC, sHO1, sHO2, sJS, sJD, sK2 = 52, 53, 54, 55, 56, 57, 58, 59
    sPS, sPO = 3, 35
    vL16 = 1
    vW = [2, 3, 4]
    vW2 = [5, 6, 7]
    oW1 = [8, 9]
    oW2 = [10, 11]
    oJ = [12, 13]
    vJR = 14
    vK1 = 15
    WF = [[16, 20], [24, 28]]
    ACC = [32, 48, 64, 80]
    X = 96
    oX = [64, 65, 66, 67]
    vXA = [[68 + 4 * b + ks for ks in range(4)] for b in range(3)]
    vt = [80 + i for i in range(8)]
    vL, vI, vH = 88, 89, 90
    vGW = 91
    oW0 = [92, 93, 94, 95]
    oP, oP1, vPD = 64, 65, 0

    kernel_head(k, name)
    k("s_cmp_ge_u32 s2, 256")
    k("s_cbranch_scc1 L_k1_end")
    diag_begin(k)
    k(f"s_load_dwordx4 {s(pA, 4)}, s[0:1], {KA_X}")
    k(f"s_load_dwordx8 {s(pB, 8)}, s[0:1], {KA_WG}")
    k(f"s_load_dwordx2 {s(pWO, 2)}, s[0:1], {KA_WO}")
    k(f"s_load_dwordx2 {s(pWS, 2)}, s[0:1], {KA_WS}")
    k(f"v_lshrrev_b32 {v(vt[0])}, 6, v0")
    k(f"v_and_b32 {v(vL)}, 63, v0")
    k(f"v_readfirstlane_b32 {s(sW)}, {v(vt[0])}")
    k(f"v_and_b32 {v(vI)}, 31, v0")
    k(f"v_bfe_u32 {v(vH)}, v0, 5, 1")
    k(f"s_bfe_u32 {s(t0)}, s2, 0x10002")
    k(f"s_lshl_b32 {s(t0)}, {s(t0)}, 3")
    k(f"s_bfe_u32 {s(t1)}, s2, 0x30003")
    k(f"s_add_u32 {s(sRB)}, {s(t0)}, {s(t1)}")
    k(f"s_and_b32 {s(t0)}, s2, 3")
    k(f"s_lshl_b32 {s(t0)}, {s(t0)}, 2")
    k(f"s_lshr_b32 {s(t1)}, s2, 6")
    k(f"s_add_u32 {s(sCG)}, {s(t0)}, {s(t1)}")
    k(f"s_and_b32 {s(sRG)}, {s(sW)}, 3")
    k(f"s_lshr_b32 {s(sCH)}, {s(sW)}, 2")
    k(f"s_lshl_b32 {s(sW2K)}, {s(sW)}, 11")
    k(f"s_cmp_eq_u32 {s(sCH)}, 1")
    k("s_cbranch_scc1 L_k1_pf")

    lq = Q(k, "lgkmcnt", 15)
    vq = Q(k, "vmcnt", 63)

    def loader_setup(gpath):
        k(f"s_lshl_b32 {s(sW4K)}, {s(sW)}, 12")
        k(f"v_lshrrev_b32 {v(vt[0])}, 3, {v(vL)}")
        k(f"v_and_b32 {v(vt[1])}, 7, {v(vL)}")
        k(f"v_lshrrev_b32 {v(vt[2])}, 4, {v(vL)}")
        k(f"s_lshl_b32 {s(t0)}, {s(sRB)}, 7")
        k(f"s_lshl_b32 {s(t1)}, {s(sW)}, 5")
        k(f"s_add_u32 {s(t0)}, {s(t0)}, {s(t1)}")
        k(f"v_add_u32 {v(vt[3])}, {s(t0)}, {v(vt[0])}")
        k(f"v_mul_u32_u24 {v(vt[3])}, 1280, {v(vt[3])}")
        k(f"v_xor_b32 {v(vt[4])}, {v(vt[1])}, {v(vt[2])}")
        k(f"v_lshl_add_u32 {v(oX[0])}, {v(vt[4])}, 4, {v(vt[3])}")
        k(f"v_xor_b32 {v(oX[1])}, 64, {v(oX[0])}")
        k(f"v_add_u32 {v(oX[1])}, {8 * 1280 - 1024}, {v(oX[1])}")
        k(f"v_add_u32 {v(oX[2])}, {16 * 1280 - 2048}, {v(oX[0])}")
        k(f"v_add_u32 {v(oX[3])}, {16 * 1280 - 2048}, {v(oX[1])}")
        if not gpath:
            k(f"v_and_b32 {v(vt[2])}, 1, {v(vt[2])}")
            k(f"v_lshlrev_b32 {v(vt[2])}, 2, {v(vt[2])}")
            k(f"v_xor_b32 {v(vt[2])}, {v(vt[2])}, {v(vt[1])}")
            k(f"v_lshlrev_b32 {v(vt[2])}, 4, {v(vt[2])}")
            k(f"s_and_b32 {s(t0)}, {s(sW)}, 1")
            k(f"s_lshl_b32 {s(t0)}, {s(t0)}, 5")
            k(f"v_add_u32 {v(vt[3])}, {s(t0)}, {v(vt[0])}")
            k(f"s_lshl_b32 {s(t0)}, {s(sCG)}, 8")
            k(f"s_lshr_b32 {s(t1)}, {s(sW)}, 1")
            k(f"s_lshl_b32 {s(t1)}, {s(t1)}, 7")
            k(f"s_add_u32 {s(t0)}, {s(t0)}, {s(t1)}")
            k(f"v_mul_u32_u24 {v(vt[4])}, 3840, {v(vt[3])}")
            k(f"v_add3_u32 {v(oW0[0])}, {v(vt[4])}, {v(vt[2])}, {s(t0)}")
            for j in range(1, 4):
                k(f"v_add_u32 {v(oW0[j])}, {j * (8 * 3840 - 1024)}, {v(oW0[0])}")

    def pf_setup():
        k(f"s_and_b32 {s(t3)}, {s(sW)}, 1")
        k(f"s_lshl_b32 {s(t0)}, {s(sRB)}, 3")
        k(f"s_and_b32 {s(t1)}, {s(sCG)}, 3")
        k(f"s_lshl_b32 {s(t1)}, {s(t1)}, 1")
        k(f"s_add_u32 {s(t0)}, {s(t0)}, {s(t1)}")
        k(f"s_add_u32 {s(t0)}, {s(t0)}, {s(t3)}")
        k(f"s_mul_i32 {s(t0)}, {s(t0)}, {16 * 1280}")
        k(f"v_and_b32 {v(vt[0])}, 15, {v(vL)}")
        k(f"v_mul_u32_u24 {v(vt[0])}, 1280, {v(vt[0])}")
        k(f"v_lshrrev_b32 {v(vt[1])}, 4, {v(vL)}")
        k(f"v_lshl_add_u32 {v(vt[0])}, {v(vt[1])}, 7, {v(vt[0])}")
        k(f"v_lshl_add_u32 {v(vt[0])}, {v(vH)}, 30, {v(vt[0])}")
        k(f"v_add_u32 {v(vt[0])}, {s(t0)}, {v(vt[0])}")
        k(f"s_and_b32 {s(t1)}, {s(sRB)}, 7")
        k(f"s_lshl_b32 {s(t2)}, {s(t3)}, 3")
        k(f"s_add_u32 {s(t2)}, {s(t2)}, {s(t1)}")
        k(f"s_mul_i32 {s(t2)}, {s(t2)}, {8 * 3840}")
        k(f"s_lshl_b32 {s(t0)}, {s(sCG)}, 8")
        k(f"s_add_u32 {s(t2)}, {s(t2)}, {s(t0)}")
        k(f"v_lshrrev_b32 {v(vt[2])}, 1, {v(vL)}")
        k(f"v_mul_u32_u24 {v(vt[2])}, 3840, {v(vt[2])}")
        k(f"v_and_b32 {v(vt[3])}, 1, {v(vL)}")
        k(f"v_lshl_add_u32 {v(vt[2])}, {v(vt[3])}, 7, {v(vt[2])}")
        k(f"v_lshl_add_u32 {v(vt[2])}, {v(vt[1])}, 28, {v(vt[2])}")
        k(f"v_add_u32 {v(vt[2])}, {s(t2)}, {v(vt[2])}")
        k(f"s_cmp_ge_u32 {s(sW)}, 6")
        k(f"s_cselect_b64 vcc, -1, 0")
        k(f"v_cndmask_b32 {v(oP)}, {v(vt[0])}, {v(vt[2])}, vcc")
        k(f"s_cselect_b32 {s(sPS)}, {128 * 3840 - 256}, 0")
        k(f"s_add_u32 {s(sPS)}, {s(sPS)}, 256")
        k(f"s_mov_b32 {s(sPO)}, 0")
        k("s_waitcnt lgkmcnt(0)")
        k(f"s_cmp_ge_u32 {s(sW)}, 6")
        k(f"s_cselect_b32 {s(SP)}, {s(pA + 2)}, {s(pA)}")
        k(f"s_cselect_b32 {s(t0)}, {s(pA + 3)}, {s(pA + 1)}")
        k(f"s_cselect_b32 {s(SP + 2)}, 0, {S_ * D_ * 2 - D_ * 3 * D_ * 2}")
        k(f"s_and_b32 {s(SP + 1)}, {s(t0)}, 0xffff")
        k(f"s_add_u32 {s(SP + 2)}, {s(SP + 2)}, {D_ * 3 * D_ * 2}")
        k(f"s_mov_b32 {s(SP + 3)}, 0x00020000")

    def pf_setup1():
        k(f"s_cmp_ge_u32 {s(sW)}, 6")
        k(f"s_cselect_b32 {s(t0)}, {s(pB + 2)}, {s(pB)}")
        k(f"s_cselect_b32 {s(t1)}, {s(pB + 3)}, {s(pB + 1)}")
        srd(k, SP1, t0, D_ * F_ * 2)
        k(f"s_and_b32 {s(t0)}, {s(sW)}, 1")
        k(f"s_lshl_b32 {s(t0)}, {s(t0)}, 4")
        k(f"s_and_b32 {s(t1)}, {s(sRB)}, 7")
        k(f"s_add_u32 {s(t0)}, {s(t0)}, {s(t1)}")
        k(f"s_mul_i32 {s(t0)}, {s(t0)}, {8 * 3072}")
        k(f"s_mul_i32 {s(t1)}, {s(sCG)}, 192")
        k(f"s_and_b32 {s(t1)}, {s(t1)}, 0xffffff80")
        k(f"s_add_u32 {s(t0)}, {s(t0)}, {s(t1)}")
        k(f"v_bfe_u32 {v(vt[0])}, {v(vL)}, 1, 3")
        k(f"v_bfe_u32 {v(vt[1])}, {v(vL)}, 4, 1")
        k(f"v_lshl_add_u32 {v(vt[0])}, {v(vt[1])}, 6, {v(vt[0])}")
        k(f"v_mul_u32_u24 {v(vt[0])}, 3072, {v(vt[0])}")
        k(f"v_and_b32 {v(vt[1])}, 1, {v(vL)}")
        k(f"v_lshl_add_u32 {v(vt[0])}, {v(vt[1])}, 7, {v(vt[0])}")
        k(f"v_lshl_add_u32 {v(vt[0])}, {v(vH)}, 30, {v(vt[0])}")
        k(f"v_add_u32 {v(oP1)}, {s(t0)}, {v(vt[0])}")

    def pf0():
        vq.issue("pf", f"buffer_load_dword {v(vPD)}, {v(oP)}, {s(SP, 4)}, {s(sPO)} offen")
        k(f"s_add_u32 {s(sPO)}, {s(sPO)}, {s(sPS)}")

    def pf1(j):
        def f():
            k(f"s_mov_b32 {s(sPO)}, {j * 256 * 3072}")
            vq.issue("pf", f"buffer_load_dword {v(vPD)}, {v(oP1)}, {s(SP1, 4)}, {s(sPO)} offen")
        return f

    def fill(n, gpath=False, pfw=False):
        slot = (n % NSL) * SL
        base = sW2K
        if n >= X_NOFILL:
            return []
        if n < 20:
            if pfw:
                return []
            c = n // 2
            base = sW4K
            if n % 2 == 0:
                off, sr, so = oX, SX, c * 128
            else:
                if gpath:
                    return []
                off, sr, so = oW0, SW0, c * 64 * 3840
        elif n < 30:
            off, sr, so = oW1, SW1, (n - 20) * 64 * 3072
        elif n < 35:
            off, sr, so = oW2, SW1, (n - 30) * 128 * 3072
        else:
            return []

        def a():
            k(f"s_add_u32 m0, {s(base)}, {slot}")
            k(f"s_mov_b32 {s(sSO)}, {so}")
            vq.issue(f"f{n}", f"buffer_load_dwordx4 {v(off[0])}, {s(sr, 4)}, {s(sSO)} offen lds")
        out = [a]
        for j in range(1, len(off)):
            out.append(lambda j=j: vq.issue(f"f{n}", f"buffer_load_dwordx4 {v(off[j])}, {s(sr, 4)}, {s(sSO)} offen offset:{1024 * j} lds"))
        return out

    def setup2():
        k(f"v_lshlrev_b32 {v(vL16)}, 4, {v(vL)}")
        srd(k, SO, pWS, WS_SIZE)
        k(f"s_cmp_eq_u32 {s(sCH)}, 1")
        k(f"s_cselect_b32 {s(t0)}, {s(pB + 2)}, {s(pB)}")
        k(f"s_cselect_b32 {s(t1)}, {s(pB + 3)}, {s(pB + 1)}")
        srd(k, SW1, t0, D_ * F_ * 2)
        k(f"s_lshl_b32 {s(t0)}, {s(sRG)}, 12")
        k(f"v_lshlrev_b32 {v(vt[4])}, 7, {v(vI)}")
        k(f"v_bfe_u32 {v(vt[5])}, {v(vI)}, 1, 3")
        k(f"v_xor_b32 {v(vt[5])}, {v(vt[5])}, {v(vH)}")
        k(f"v_lshlrev_b32 {v(vt[5])}, 4, {v(vt[5])}")
        k(f"v_add3_u32 {v(vXA[0][0])}, {v(vt[4])}, {v(vt[5])}, {s(t0)}")
        for ks in range(1, 4):
            k(f"v_xor_b32 {v(vXA[0][ks])}, {32 * ks}, {v(vXA[0][0])}")
        for b in range(1, 3):
            for ks in range(4):
                k(f"v_add_u32 {v(vXA[b][ks])}, {65536 * b}, {v(vXA[0][ks])}")
        k(f"v_bfe_u32 {v(vt[0])}, {v(vL)}, 2, 2")
        k(f"v_lshl_add_u32 {v(vt[1])}, {v(vH)}, 3, {v(vt[0])}")
        k(f"v_bfe_u32 {v(vt[2])}, {v(vL)}, 4, 1")
        k(f"v_and_b32 {v(vt[3])}, 1, {v(vL)}")
        k(f"v_bfe_u32 {v(vt[4])}, {v(vL)}, 1, 1")
        k(f"v_lshlrev_b32 {v(vt[4])}, 3, {v(vt[4])}")
        k(f"v_lshl_add_u32 {v(vt[5])}, {v(vt[2])}, 1, {v(vt[3])}")
        k(f"v_bfe_u32 {v(vt[6])}, {v(vL)}, 3, 1")
        k(f"v_xor_b32 {v(vt[6])}, {s(sCH)}, {v(vt[6])}")
        k(f"v_lshl_add_u32 {v(vt[6])}, {v(vt[6])}, 2, {v(vt[5])}")
        k(f"v_lshl_add_u32 {v(vt[6])}, {v(vt[6])}, 4, {v(vt[4])}")
        k(f"v_lshl_add_u32 {v(vW[0])}, {v(vt[1])}, 7, {v(vt[6])}")
        k(f"s_lshl_b32 {s(t0)}, {s(sCH)}, 1")
        k(f"v_xor_b32 {v(vt[6])}, {s(t0)}, {v(vt[5])}")
        k(f"v_lshl_add_u32 {v(vt[6])}, {v(vt[6])}, 4, {v(vt[4])}")
        k(f"v_lshl_add_u32 {v(vt[6])}, {v(vt[1])}, 6, {v(vt[6])}")
        k(f"v_lshl_add_u32 {v(vW2[0])}, {v(vt[2])}, 13, {v(vt[6])}")
        for b in range(1, 3):
            k(f"v_add_u32 {v(vW[b])}, {65536 * b}, {v(vW[0])}")
            k(f"v_add_u32 {v(vW2[b])}, {65536 * b}, {v(vW2[0])}")
        k(f"v_lshrrev_b32 {v(vt[5])}, 4, {v(vL)}")
        k(f"v_lshlrev_b32 {v(vt[5])}, 5, {v(vt[5])}")
        k(f"v_lshl_add_u32 {v(vt[5])}, {v(vt[0])}, 7, {v(vt[5])}")
        k(f"v_and_b32 {v(vt[6])}, 3, {v(vL)}")
        k(f"v_lshl_add_u32 {v(vt[5])}, {v(vt[6])}, 3, {v(vt[5])}")
        k(f"s_add_u32 {s(t0)}, {s(sW2K)}, {SIDE}")
        k(f"v_add_u32 {v(vJR)}, {s(t0)}, {v(vt[5])}")

    def setup3():
        g = []
        g.append([f"v_lshrrev_b32 {v(vt[0])}, 3, {v(vL)}",
                  f"v_and_b32 {v(vt[1])}, 7, {v(vL)}",
                  f"v_bfe_u32 {v(vt[2])}, {v(vL)}, 4, 1",
                  f"v_lshlrev_b32 {v(vt[2])}, 2, {v(vt[2])}"])
        g.append([f"v_xor_b32 {v(vt[2])}, {v(vt[2])}, {v(vt[1])}",
                  f"v_lshlrev_b32 {v(vt[2])}, 4, {v(vt[2])}",
                  f"s_lshl_b32 {s(t0)}, {s(sRG)}, 4",
                  f"v_add_u32 {v(vt[3])}, {s(t0)}, {v(vt[0])}"])
        g.append([f"s_mul_i32 {s(t0)}, {s(sCG)}, 192",
                  f"s_bitcmp1_b32 {s(sCG)}, 0",
                  f"s_cselect_b32 {s(t2)}, 64, 0",
                  f"s_cselect_b32 {s(t3)}, 0, 128",
                  f"s_add_u32 {s(t2)}, {s(t2)}, {s(t0)}",
                  f"s_add_u32 {s(t3)}, {s(t3)}, {s(t0)}"])
        g.append([f"v_mul_u32_u24 {v(vt[4])}, 3072, {v(vt[3])}",
                  f"v_add3_u32 {v(oW1[0])}, {v(vt[4])}, {v(vt[2])}, {s(t2)}",
                  f"v_add_u32 {v(oW1[1])}, {8 * 3072 - 1024}, {v(oW1[0])}"])
        g.append([f"v_lshrrev_b32 {v(vt[4])}, 2, {v(vL)}",
                  f"s_lshl_b32 {s(t0)}, {s(sRG)}, 5",
                  f"v_add_u32 {v(vt[4])}, {s(t0)}, {v(vt[4])}",
                  f"v_mul_u32_u24 {v(vt[4])}, 3072, {v(vt[4])}"])
        g.append([f"v_and_b32 {v(vt[5])}, 3, {v(vL)}",
                  f"s_lshl_b32 {s(t0)}, {s(sCH)}, 1",
                  f"v_xor_b32 {v(vt[5])}, {s(t0)}, {v(vt[5])}",
                  f"v_lshlrev_b32 {v(vt[5])}, 4, {v(vt[5])}"])
        g.append([f"v_add3_u32 {v(oW2[0])}, {v(vt[4])}, {v(vt[5])}, {s(t3)}",
                  f"v_add_u32 {v(oW2[1])}, {16 * 3072 - 1024}, {v(oW2[0])}",
                  f"v_mul_u32_u24 {v(vt[5])}, 1280, {v(vt[0])}",
                  f"v_lshl_add_u32 {v(oJ[0])}, {v(vt[1])}, 4, {v(vt[5])}"])
        g.append([f"v_add_u32 {v(oJ[1])}, {8 * 1280 - 1024}, {v(oJ[0])}",
                  f"v_mov_b32 {v(vK1)}, {f32(GK1)}",
                  f"s_lshl_b32 {s(t0)}, {s(sRB)}, 2",
                  f"s_add_u32 {s(t0)}, {s(t0)}, {s(sRG)}",
                  f"s_mul_i32 {s(sQO)}, {s(t0)}, {TT_QKV}"])
        g.append([f"s_lshl_b32 {s(t1)}, {s(sCG)}, 13",
                  f"s_add_u32 {s(sQO)}, {s(sQO)}, {s(t1)}",
                  f"s_lshl_b32 {s(t1)}, {s(sCH)}, 11",
                  f"s_add_u32 {s(sQO)}, {s(sQO)}, {s(t1)}"])
        g.append([f"s_cmp_eq_u32 {s(sCG)}, 15",
                  f"s_cselect_b32 {s(sQO)}, {OOB}, {s(sQO)}",
                  f"s_add_u32 {s(sQO2)}, {s(sQO)}, 4096",
                  f"s_cmp_lt_u32 {s(sCG)}, 5",
                  f"s_cselect_b32 {s(sSC)}, {f32(QSCALE)}, 1.0"])
        g.append([f"s_mul_i32 {s(t0)}, {s(t0)}, {TT_H}",
                  f"s_add_u32 {s(t0)}, {s(t0)}, {WS_H}",
                  f"s_lshl_b32 {s(t2)}, {s(t2)}, 5",
                  f"s_add_u32 {s(sHO1)}, {s(t0)}, {s(t2)}",
                  f"s_add_u32 {s(sHO1)}, {s(sHO1)}, {s(t1)}"])
        g.append([f"s_lshl_b32 {s(t3)}, {s(t3)}, 5",
                  f"s_add_u32 {s(sHO2)}, {s(t0)}, {s(t3)}",
                  f"s_lshr_b32 {s(t1)}, {s(t1)}, 1",
                  f"s_add_u32 {s(sHO2)}, {s(sHO2)}, {s(t1)}",
                  f"s_mov_b32 {s(sK2)}, {f32(GK2)}"])
        g.append([f"s_lshl_b32 {s(t0)}, {s(sW)}, 8",
                  f"s_add_u32 {s(t0)}, {s(t0)}, s2",
                  f"s_mul_i32 {s(t1)}, {s(t0)}, 52429",
                  f"s_lshr_b32 {s(t1)}, {s(t1)}, 19",
                  f"s_mul_i32 {s(t2)}, {s(t1)}, 10"])
        g.append([f"s_sub_u32 {s(t2)}, {s(t0)}, {s(t2)}",
                  f"s_mul_i32 {s(sJD)}, {s(t1)}, {2 * KP}",
                  f"s_lshl_b32 {s(t3)}, {s(t2)}, 10",
                  f"s_add_u32 {s(sJD)}, {s(sJD)}, {s(t3)}",
                  f"s_add_u32 {s(sJD)}, {s(sJD)}, {WS_WT}"])
        g.append([f"s_cmp_ge_u32 {s(t1)}, 40",
                  f"s_cselect_b32 {s(SJ)}, {s(pB + 4)}, {s(pWO)}",
                  f"s_cselect_b32 {s(t3)}, {s(pB + 5)}, {s(pWO + 1)}",
                  f"s_cselect_b32 {s(SJ + 2)}, {(F_ - D_) * D_ * 2}, 0",
                  f"s_cselect_b32 {s(sJS)}, 40, 0"])
        g.append([f"s_and_b32 {s(SJ + 1)}, {s(t3)}, 0xffff",
                  f"s_add_u32 {s(SJ + 2)}, {s(SJ + 2)}, {D_ * D_ * 2}",
                  f"s_mov_b32 {s(SJ + 3)}, 0x00020000",
                  f"s_sub_u32 {s(t1)}, {s(t1)}, {s(sJS)}",
                  f"s_mul_i32 {s(sJS)}, {s(t1)}, {16 * 1280}"])
        g.append([f"s_lshl_b32 {s(t2)}, {s(t2)}, 7",
                  f"s_add_u32 {s(sJS)}, {s(sJS)}, {s(t2)}",
                  f"s_cmp_ge_u32 {s(t0)}, 1360",
                  f"s_cselect_b32 {s(sJS)}, {OOB}, {s(sJS)}",
                  f"s_cselect_b32 {s(sJD)}, {OOB}, {s(sJD)}"])
        return ["\n".join(x) for x in g]

    def lds(regs, n, off):
        a = (n % NSL) * SL + off
        return regs[a >> 16], a & 0xffff

    class Step:
        pass

    FS = K1_FILLS
    used_at = {n: (n // 2 if n < 20 else n - 10) for n in range(35)}
    seen = set()
    for st_, lst in sorted(FS.items()):
        for n in lst:
            seen.add(n)
            assert st_ < used_at[n] or st_ == 0, (st_, n)
            if n >= NSL:
                assert used_at[n - NSL] < st_, (st_, n)
    assert seen == set(range(35))

    def wreads(st, n, ks):
        out = []
        for sub in range(2):
            for e in range(2):
                r, o = lds(vW, n, ks * 2048 + e * 512 + sub * 8192)
                out.append((f"w{st}{sub}", f"ds_read_b64_tr_b16 {v(WF[st][sub] + 2 * e, 2)}, {v(r)} offset:{o}"))
        return out

    def xread(c, ks):
        r, o = lds([vXA[b][ks] for b in range(3)], 2 * c, 0)
        return (f"x{c}_{ks}", f"ds_read_b128 {v(X + 16 * c + 4 * ks, 4)}, {v(r)} offset:{o}")

    def p0_steps(gpath):
        out = []
        for c in range(10):
            for ks in range(4):
                p = Step()
                st = ks % 2
                xr = X + 16 * c + 4 * ks
                first = c == 0 and ks == 0
                if not gpath:
                    w = wreads(st, 2 * c + 1, ks)
                    p.reads = w[:2] + [xread(c, ks)] + w[2:]
                    p.mf = [(f"{MF32} {v(ACC[t], 16)}, {v(WF[st][t], 4)}, {v(xr, 4)}, " + ("0" if first else v(ACC[t], 16)),
                             (f"w{st}{t}", f"x{c}_{ks}")) for t in range(2)]
                    p.need = (f"f{2 * c}", f"f{2 * c + 1}") if ks == 0 else None
                else:
                    p.reads = [(f"w{st}0", f"ds_read_b128 {v(WF[st][0], 4)}, {v(vGW)} offset:{(4 * c + ks) * 32}"), xread(c, ks)]
                    p.mf = [(f"{MF32} {v(ACC[0], 16)}, {v(WF[st][0], 4)}, {v(xr, 4)}, " + ("0" if first else v(ACC[0], 16)),
                             (f"w{st}0", f"x{c}_{ks}"))]
                    p.need = (f"f{2 * c}", "gw") if ks == 0 else None
                p.fills = FS.get(c, []) if ks == 0 else []
                out.append(p)
        return out

    def p12_steps():
        out = []
        for c in range(10):
            for ks in range(4):
                p = Step()
                st = ks % 2
                xr = X + 16 * c + 4 * ks
                first = c == 0 and ks == 0
                p.reads = wreads(st, 20 + c, ks)
                p.mf = [(f"{MF32} {v(ACC[2 + t], 16)}, {v(WF[st][t], 4)}, {v(xr, 4)}, " + ("0" if first else v(ACC[2 + t], 16)),
                         (f"w{st}{t}",)) for t in range(2)]
                p.need = (f"f{20 + c}",) if ks == 0 else None
                p.fills = FS.get(10 + c, []) if ks == 0 else []
                out.append(p)
        for c in range(5):
            for d in range(4):
                p = Step()
                st = d % 2
                p.reads, p.mf = [], []
                for t in range(2):
                    ks = 2 * d + t
                    for e in range(2):
                        r, o = lds(vW2, 30 + c, ks * 1024 + e * 256)
                        p.reads.append((f"w{st}{t}", f"ds_read_b64_tr_b16 {v(WF[st][t] + 2 * e, 2)}, {v(r)} offset:{o}"))
                    xr = X + 32 * c + 4 * ks
                    first = c == 0 and ks == 0
                    p.mf.append((f"{MF32} {v(ACC[0], 16)}, {v(WF[st][t], 4)}, {v(xr, 4)}, " + ("0" if first else v(ACC[0], 16)),
                                 (f"w{st}{t}",)))
                p.need = (f"f{30 + c}",) if d == 0 else None
                p.fills = FS.get(20 + c, []) if d == 0 else []
                out.append(p)
        return out

    def emit(steps, after, fillers, gpath=False, pfw=False, flush_dm=True):
        fq = []
        dm = []
        for i, p in enumerate(steps):
            nx = steps[i + 1] if i + 1 < len(steps) else after
            last = i + 1 == len(steps)
            fq += fillers.get(i, [])
            fq = fillers.get(("pri", i), []) + fq
            rate = fillers.get(("rate", i), fillers.get("rate", 3))
            rd = list(nx.reads) if nx else []
            for mi, (txt, tags) in enumerate(p.mf):
                bar = nx is not None and nx.need is not None and mi == 0
                if bar and not X_NOBAR:
                    assert not dm
                    waits(k, lg=lq.all(), vm=vq.need(*nx.need))
                else:
                    lq.wait(*tags)
                k(txt)
                if bar:
                    if not X_NOBAR:
                        k("s_barrier")
                    for n in nx.fills:
                        dm += fill(n, gpath, pfw)
                nr = len(rd) if mi == len(p.mf) - 1 else (len(rd) + 1) // 2
                for _ in range(nr):
                    lq.issue(*rd.pop(0))
                nd = 4 // len(p.mf)
                if last and mi == len(p.mf) - 1:
                    nd = len(dm)
                for _ in range(nd):
                    if dm:
                        dm.pop(0)()
                for _ in range(rate):
                    if fq:
                        f = fq.pop(0)
                        if callable(f):
                            f()
                        else:
                            k(f)
        assert not fq, len(fq)

    P12 = p12_steps()
    merge = {}

    def p0_path(gpath, pfw):
        lq.q, vq.q = [], []
        if pfw:
            if not gpath:
                pf_setup()
                for _ in range(K1_PF_INIT):
                    pf0()
                setup2()
                pf_setup1()
                k(f"s_cmp_eq_u32 {s(sCG)}, 15")
                k("s_cbranch_scc1 L_k1_pfg")
            else:
                vq.q = ["pf"] * K1_PF_INIT
        else:
            if not gpath:
                k(f"s_cmp_eq_u32 {s(sCG)}, 15")
                k("s_cbranch_scc1 L_k1_g")
            loader_setup(gpath)
            k("s_waitcnt lgkmcnt(0)")
            srd(k, SX, pA, S_ * D_ * 2)
            if not gpath:
                srd(k, SW0, pA + 2, D_ * 3 * D_ * 2)
            if K1_SETUP_FIRST:
                setup2()
            for n in FS[0]:
                for f in fill(n, gpath, pfw):
                    f()
            if not K1_SETUP_FIRST:
                setup2()
            if gpath:
                srd(k, SW0, pB + 6, D_ * 2)
                k(f"s_mov_b32 m0, {SIDE}")
                vq.issue("gw", f"buffer_load_dwordx4 {v(vL16)}, {s(SW0, 4)}, 0 offen lds")
                vq.issue("gw", f"buffer_load_dwordx4 {v(vL16)}, {s(SW0, 4)}, 0 offen offset:1024 lds")
        if gpath:
            k(f"v_lshlrev_b32 {v(vGW)}, 4, {v(vH)}")
            k(f"v_add_u32 {v(vGW)}, {SIDE}, {v(vGW)}")
        P0 = p0_steps(gpath)
        stamp(k, 1)
        waits(k, vm=vq.need(*P0[0].need))
        k("s_barrier")
        stamp(k, 2)
        for r in P0[0].reads:
            lq.issue(*r)
        fl = {"rate": 1, 1: setup3()}
        if pfw:
            for i, stp in enumerate(K1_PF0_STEPS):
                fl[("pri", 4 * stp)] = [pf0] + fl.get(("pri", 4 * stp), [])
            for j, stp in enumerate(K1_PF1_STEPS):
                fl[("pri", 4 * stp + 2)] = [pf1(j)] + fl.get(("pri", 4 * stp + 2), [])
        emit(P0, P12[0], fl, gpath, pfw)
        q = [x for x in vq.q if x != "pf"]
        if not merge:
            merge["l"], merge["v"] = list(lq.q), q
        assert X_NOBAR or lq.q == merge["l"] and q == merge["v"], (lq.q, merge["l"], vq.q, merge["v"])
        if gpath:
            g = ACC[0]
            k(f"s_mov_b32 {s(t1)}, {f32(-LOG2E)}")
            k(f"s_lshl_b32 {s(t0)}, {s(sRB)}, 2")
            k(f"s_add_u32 {s(t0)}, {s(t0)}, {s(sRG)}")
            k(f"s_lshl_b32 {s(t0)}, {s(t0)}, 7")
            k(f"s_add_u32 {s(t0)}, {s(t0)}, {WS_G}")
            k(f"v_lshlrev_b32 {v(g + 1)}, 2, {v(vI)}")
            k(f"v_cvt_pk_bf16_f32 {v(g)}, {v(g)}, {v(g)}")
            k(f"v_lshlrev_b32 {v(g)}, 16, {v(g)}")
            k(f"v_mul_f32 {v(g)}, {s(t1)}, {v(g)}")
            k(f"v_exp_f32 {v(g)}, {v(g)}")
            k(f"v_add_f32 {v(g)}, 1.0, {v(g)}")
            k(f"v_rcp_f32 {v(g)}, {v(g)}")
            k(f"v_cvt_pk_bf16_f32 {v(g)}, {v(g)}, {v(g)}")
            k(f"v_lshlrev_b32 {v(g)}, 16, {v(g)}")
            k(f"buffer_store_dword {v(g)}, {v(g + 1)}, {s(SO, 4)}, {s(t0)} offen")

    p0_path(False, False)
    k.label("L_k1_p1")
    if DIAG:
        stamp(k, 3, lq)

    fl = {"rate": 3}
    ep = []
    for t in range(2):
        for hf in range(2):
            A = ACC[t] + 8 * hf
            ep += [f"v_mul_f32 {v(A + r)}, {s(sSC)}, {v(A + r)}" for r in range(8)]
            ep += [f"v_cvt_pk_bf16_f32 {v(A + c)}, {v(A + 2 * c)}, {v(A + 2 * c + 1)}" for c in range(4)]
            ep.append(lambda A=A, t=t, hf=hf: vq.issue("st", f"buffer_store_dwordx4 {v(A, 4)}, {v(vL16)}, {s(SO, 4)}, {s(sQO + t)} offen offset:{1024 * hf}{ST_FLAG}"))
    fl[1] = ep if not X_NOEP else []

    def job_dma():
        k(f"s_add_u32 m0, {s(sW2K)}, {SIDE}")
        vq.issue("job", f"buffer_load_dwordx4 {v(oJ[0])}, {s(SJ, 4)}, {s(sJS)} offen lds")
        vq.issue("job", f"buffer_load_dwordx4 {v(oJ[1])}, {s(SJ, 4)}, {s(sJS)} offen offset:1024 lds")
    lastfill = max(FS)
    fl[4 * (lastfill - 10) + 2] = [job_dma]
    J = X

    def job_rd():
        vq.wait("job")
        for q in range(4):
            lq.issue("jr", f"ds_read_b64_tr_b16 {v(J + 2 * q, 2)}, {v(vJR)} offset:{512 * q}")

    def job_st():
        lq.wait("jr")
        vq.issue("st", f"buffer_store_dwordx4 {v(J, 4)}, {v(vL16)}, {s(SO, 4)}, {s(sJD)} offen{ST_FLAG}")
        k(f"s_add_u32 {s(sJD)}, {s(sJD)}, {KP}")
        vq.issue("st", f"buffer_store_dwordx4 {v(J + 4, 4)}, {v(vL16)}, {s(SO, 4)}, {s(sJD)} offen{ST_FLAG}")
    ge = []
    for hf in range(2):
        G, U = ACC[2] + 8 * hf, ACC[3] + 8 * hf
        ge += gelu_ops(G, U, ACC[1] + 8 * hf, 8, sK2, vK1)
        ge += [f"v_cvt_pk_bf16_f32 {v(G + c)}, {v(G + 2 * c)}, {v(G + 2 * c + 1)}" for c in range(4)]
        ge.append(lambda G=G, hf=hf: vq.issue("st", f"buffer_store_dwordx4 {v(G, 4)}, {v(vL16)}, {s(SO, 4)}, {s(sHO1)} offen offset:{1024 * hf}{ST_FLAG}"))
    ge = ge[:40] + [job_rd] + ge[40:56] + [job_st] + ge[56:]
    fl[41] = ge
    for i in range(40, 60):
        fl[("rate", i)] = 4
    if DIAG:
        fl[40] = [lambda: stamp(k, 4, lq)]
    emit(P12, None, fl)
    stamp(k, 5, lq)
    G = ACC[0]
    for t in gelu_ops(G, G + 8, ACC[1], 8, sK2, vK1):
        k(t)
    for c in range(4):
        k(f"v_cvt_pk_bf16_f32 {v(G + c)}, {v(G + 2 * c)}, {v(G + 2 * c + 1)}")
    k(f"buffer_store_dwordx4 {v(G, 4)}, {v(vL16)}, {s(SO, 4)}, {s(sHO2)} offen{ST_FLAG}")
    endpgm(k, 0, 8)

    k.label("L_k1_pf")
    p0_path(False, True)
    k("s_branch L_k1_p1")
    k.label("L_k1_g")
    p0_path(True, False)
    k("s_branch L_k1_p1")
    k.label("L_k1_pfg")
    p0_path(True, True)
    k("s_branch L_k1_p1")
    k.label("L_k1_end")
    k("s_endpgm")
    return name, 256, 60


def gen_k2(k):
    name = "k2_kernel"
    TS = 3136
    CH = 8 * TS
    STG = 2 * CH
    FLG = STG + 65536
    SW_ = 8
    sW, sKH, sQG, sHEAD, sQB, sODD = 12, 13, 14, 15, 16, 17
    sKO, sKO2, sM0, sPASS, sWD, sWDc, sBO, sHO, sQO = 18, 19, 20, 21, 22, 23, 24, 25, 26
    t0, t1, t2, t3 = 28, 29, 30, 31
    sMASK, sTMP = 32, 34
    sCNT = 36
    kernel_head(k, name)
    k("s_cmp_ge_u32 s2, 256")
    k("s_cbranch_scc1 L_k2_end")
    diag_begin(k)
    k(f"s_load_dwordx2 s[4:5], s[0:1], {KA_WS}")
    ticket(k, "k2", KA_WS, WS_TK, 128, WS_SIZE, FLG + 32)
    va = Alloc(1, 256)
    vL = va(); vI = va(); vH = va(); vL16 = va()
    vt = [va() for _ in range(6)]
    vD = [va() for _ in range(3)]
    vK1 = va(); vK2 = va()
    vV = [va() for _ in range(4)]
    vWD = va(); vSW = va(); vSR = va(); vBS = va(); vQ2 = va()
    MXP = [va(2) for _ in range(2)]
    Q1 = [va(4) for _ in range(2)]
    Q2 = [va(2) for _ in range(2)]
    KF1 = va(4); KF2 = va(2)
    VF = [va(4) for _ in range(2)]
    P = [va(8, 4) for _ in range(2)]
    SS = [va(16, 4) for _ in range(2)]
    O = [va(16, 4) for _ in range(2)]
    HF = [va(4) for _ in range(12)]
    WDF = [va(4) for _ in range(6)]
    BA = va(16, 4)
    RT = va(16, 4)
    vPF = va()
    k(f"v_lshrrev_b32 {v(vt[0])}, 6, v0")
    k(f"v_and_b32 {v(vL)}, 63, v0")
    k(f"v_readfirstlane_b32 {s(sW)}, {v(vt[0])}")
    k(f"v_and_b32 {v(vI)}, 31, v0")
    k(f"v_bfe_u32 {v(vH)}, v0, 5, 1")
    k(f"v_lshlrev_b32 {v(vL16)}, 4, {v(vL)}")
    k(f"s_and_b32 {s(t0)}, s2, 7")
    k(f"s_lshl_b32 {s(t0)}, {s(t0)}, 2")
    k(f"s_lshr_b32 {s(t1)}, s2, 6")
    k(f"s_add_u32 {s(sHEAD)}, {s(t0)}, {s(t1)}")
    k(f"s_bfe_u32 {s(sQB)}, s2, 0x30003")
    k(f"s_lshr_b32 {s(sKH)}, {s(sW)}, 2")
    k(f"s_and_b32 {s(sQG)}, {s(sW)}, 3")
    k(f"s_and_b32 {s(sODD)}, {s(sHEAD)}, 1")
    k(f"s_lshr_b32 {s(t2)}, {s(sHEAD)}, 1")
    k(f"s_mul_i32 {s(t2)}, {s(t2)}, 5")
    k(f"s_lshl_b32 {s(t3)}, {s(sODD)}, 1")
    k(f"s_add_u32 {s(t2)}, {s(t2)}, {s(t3)}")
    k(f"s_lshl_b32 {s(t2)}, {s(t2)}, 9")
    k(f"s_lshl_b32 {s(t0)}, {s(sQB)}, 3")
    k(f"s_lshl_b32 {s(t1)}, {s(sQG)}, 1")
    k(f"s_add_u32 {s(t0)}, {s(t0)}, {s(t1)}")
    k(f"s_mul_i32 {s(sQO)}, {s(t0)}, {TT_QKV}")
    k(f"s_add_u32 {s(sQO)}, {s(sQO)}, {s(t2)}")
    k(f"s_lshl_b32 {s(t0)}, {s(sODD)}, 9")
    k(f"v_add_u32 {v(vK1)}, {s(t0)}, {v(vL16)}")
    k(f"s_cmp_eq_u32 {s(sODD)}, 1")
    k(f"s_cselect_b32 {s(t1)}, 8, 1024")
    k(f"v_lshlrev_b32 {v(vt[0])}, 4, {v(vI)}")
    k(f"v_add_u32 {v(vQ2)}, {s(t1)}, {v(vt[0])}")
    k(f"s_mul_i32 {s(t0)}, {s(sW)}, {TT_QKV}")
    k(f"s_add_u32 {s(t0)}, {s(t0)}, {s(t2)}")
    k(f"s_add_u32 {s(t0)}, {s(t0)}, {80 * 512}")
    k(f"v_add_u32 {v(vD[0])}, {s(t0)}, {v(vL16)}")
    k(f"v_mul_u32_u24 {v(vt[1])}, {80 * 512 - 1024}, {v(vH)}")
    k(f"v_add3_u32 {v(vD[1])}, {v(vt[0])}, {v(vt[1])}, {s(t0)}")
    k(f"v_lshlrev_b32 {v(vt[1])}, 6, {v(vH)}")
    k(f"v_add_u32 {v(vt[1])}, 64, {v(vt[1])}")
    k(f"v_xor_b32 {v(vt[1])}, {v(vt[1])}, {v(vL16)}")
    k(f"s_add_u32 {s(t0)}, {s(t0)}, {80 * 512 + 512 - 2048}")
    k(f"v_add_u32 {v(vD[2])}, {s(t0)}, {v(vt[1])}")
    k(f"s_mul_i32 {s(sM0)}, {s(sW)}, {TS}")
    k(f"s_mov_b32 {s(sPASS)}, 0")
    for qt in range(2):
        for r in range(2):
            k(f"v_mov_b32 {v(MXP[qt] + r)}, 0")
    k("s_waitcnt lgkmcnt(0)")
    srd(k, SW_, 4, WS_SIZE)
    lq = Q(k, "lgkmcnt", 15)
    vq = Q(k, "vmcnt", 63)

    def dma_chunk(c):
        def a():
            k(f"s_add_u32 m0, {s(sM0)}, {(c % 2) * CH}")
            k(f"s_mov_b32 {s(sKO)}, {c * 8 * TT_QKV}")
            vq.issue(f"c{c}", f"buffer_load_dwordx4 {v(vD[0])}, {s(SW_, 4)}, {s(sKO)} offen lds")
        out = [a]
        for j in (1, 2):
            out.append(lambda j=j: vq.issue(f"c{c}", f"buffer_load_dwordx4 {v(vD[j])}, {s(SW_, 4)}, {s(sKO)} offen offset:{1024 * j} lds"))
        return out

    k.label("L_k2_start")
    k(f"s_add_u32 {s(t1)}, {s(sQO)}, {TT_QKV}")
    k(f"s_lshl_b32 {s(t0)}, {s(sODD)}, 9")
    k(f"v_add_u32 {v(vt[0])}, {s(t0)}, {v(vL16)}")
    for qt in range(2):
        so = sQO if qt == 0 else t1
        vq.issue("q", f"buffer_load_dwordx4 {v(Q1[qt], 4)}, {v(vt[0])}, {s(SW_, 4)}, {s(so)} offen")
        vq.issue("q", f"buffer_load_dwordx2 {v(Q2[qt], 2)}, {v(vQ2)}, {s(SW_, 4)}, {s(so)} offen")
    for c in range(2):
        for f in dma_chunk(c):
            f()
    k(f"s_and_b32 {s(t0)}, s2, 7")
    k(f"s_lshl_b32 {s(t0)}, {s(t0)}, 3")
    k(f"s_add_u32 {s(t0)}, {s(t0)}, {s(sQB)}")
    k(f"s_mul_i32 {s(sHO)}, {s(t0)}, {TT_H}")
    k(f"s_mul_i32 {s(t1)}, {s(sW)}, 12288")
    k(f"s_add_u32 {s(sHO)}, {s(sHO)}, {s(t1)}")
    k(f"s_add_u32 {s(sHO)}, {s(sHO)}, {WS_H}")
    k(f"s_lshr_b32 {s(t2)}, s2, 6")
    k(f"s_mul_i32 {s(sWD)}, {s(sW)}, {24 * KP}")
    k(f"s_mul_i32 {s(t1)}, {s(t2)}, 2560")
    k(f"s_add_u32 {s(sWD)}, {s(sWD)}, {s(t1)}")
    k(f"s_add_u32 {s(sWD)}, {s(sWD)}, {WS_WT + 80 * KP}")
    k(f"v_mul_u32_u24 {v(vt[0])}, {KP}, {v(vH)}")
    k(f"v_lshl_add_u32 {v(vWD)}, {v(vI)}, 4, {v(vt[0])}")
    k(f"s_lshl_b32 {s(t0)}, {s(t0)}, 3")
    k(f"s_add_u32 {s(t0)}, {s(t0)}, {s(sW)}")
    k(f"s_mul_i32 {s(sBO)}, {s(t0)}, {4 * 1280}")
    k(f"s_mul_i32 {s(t1)}, {s(t2)}, 320")
    k(f"s_add_u32 {s(sBO)}, {s(sBO)}, {s(t1)}")
    k(f"s_add_u32 {s(sBO)}, {s(sBO)}, {WS_B}")

    def wd_load(i):
        if i >= 60:
            return
        t, ks = divmod(i, 12)
        k(f"s_add_u32 {s(sWDc)}, {s(sWD)}, {ks * 2 * KP}")
        vq.issue(f"wd{i}", f"buffer_load_dwordx4 {v(WDF[i % 6], 4)}, {v(vWD)}, {s(SW_, 4)}, {s(sWDc)} offen offset:{512 * t}")

    for j in range(12):
        if j % 4 == 0 and j:
            k(f"s_add_u32 {s(sHO)}, {s(sHO)}, 4096")
        vq.issue(f"h{j}", f"buffer_load_dwordx4 {v(HF[j], 4)}, {v(vL16)}, {s(SW_, 4)}, {s(sHO)} offen offset:{1024 * (j % 4)}")
    for i in range(6):
        wd_load(i)
    k(f"s_mul_i32 {s(t3)}, {s(sKH)}, {TS}")
    k(f"s_lshl_b32 {s(t0)}, {s(sODD)}, 9")
    k(f"s_add_u32 {s(t0)}, {s(t0)}, {s(t3)}")
    k(f"v_add_u32 {v(vK1)}, {s(t0)}, {v(vL16)}")
    k(f"v_cmp_eq_u32 {s(sMASK, 2)}, 1, {v(vH)}")
    k(f"v_mov_b32 {v(vt[1])}, 3072")
    k(f"v_cndmask_b32 {v(vK2)}, {v(vQ2)}, {v(vt[1])}, {s(sMASK, 2)}")
    k(f"v_add_u32 {v(vK2)}, {s(t3)}, {v(vK2)}")
    k(f"v_and_b32 {v(vt[0])}, 1, {v(vL)}")
    k(f"v_add_u32 {v(vt[0])}, {s(sODD)}, {v(vt[0])}")
    k(f"v_bfe_u32 {v(vt[1])}, {v(vL)}, 1, 1")
    k(f"v_bfe_u32 {v(vt[2])}, {v(vL)}, 4, 1")
    k(f"v_cmp_eq_u32 vcc, 1, {v(vt[2])}")
    k(f"s_lshl_b32 {s(t0)}, {s(sODD)}, 1")
    k(f"s_sub_u32 {s(t0)}, 2, {s(t0)}")
    k(f"v_mov_b32 {v(vt[3])}, {s(t0)}")
    k(f"v_cndmask_b32 {v(vt[0])}, {v(vt[0])}, {v(vt[3])}, vcc")
    k(f"v_mov_b32 {v(vt[3])}, {s(sODD)}")
    k(f"v_cndmask_b32 {v(vt[1])}, {v(vt[1])}, {v(vt[3])}, vcc")
    k(f"v_bfe_u32 {v(vt[3])}, {v(vL)}, 2, 2")
    k(f"v_lshl_add_u32 {v(vt[3])}, {v(vH)}, 2, {v(vt[3])}")
    k(f"v_lshlrev_b32 {v(vt[4])}, 2, {v(vt[0])}")
    k(f"v_xor_b32 {v(vt[3])}, {v(vt[3])}, {v(vt[4])}")
    k(f"v_lshlrev_b32 {v(vt[3])}, 4, {v(vt[3])}")
    k(f"v_lshl_add_u32 {v(vt[3])}, {v(vt[1])}, 3, {v(vt[3])}")
    k(f"v_lshl_add_u32 {v(vt[3])}, {v(vt[0])}, 9, {v(vt[3])}")
    k(f"v_and_b32 {v(vt[4])}, 19, {v(vL)}")
    k(f"v_cmp_lt_u32 vcc, 16, {v(vt[4])}")
    k(f"v_mov_b32 {v(vt[5])}, {3072 - 1536}")
    k(f"s_add_u32 {s(t0)}, {s(t3)}, 1536")
    for q in range(4):
        k(f"v_xor_b32 {v(vt[4])}, {128 * q}, {v(vt[3])}")
        k(f"v_cndmask_b32 {v(vt[4])}, {v(vt[4])}, {v(vt[5])}, vcc")
        k(f"v_add_u32 {v(vV[q])}, {s(t0)}, {v(vt[4])}")
    k(f"v_and_b32 {v(vt[0])}, 15, {v(vL)}")
    k(f"v_mul_u32_u24 {v(vt[0])}, {TS}, {v(vt[0])}")
    k(f"v_mov_b32 {v(RT)}, 0x3f803f80")
    k(f"v_mov_b32 {v(RT + 1)}, 0x3f803f80")
    lq.issue("one", f"ds_write_b64 {v(vt[0])}, {v(RT, 2)} offset:3072")
    k(f"v_lshlrev_b32 {v(vt[0])}, 5, {v(vH)}")
    k(f"v_xor_b32 {v(vt[0])}, {v(vt[0])}, {v(vL16)}")
    k(f"s_lshl_b32 {s(t0)}, {s(sW)}, 12")
    k(f"s_add_u32 {s(t0)}, {s(t0)}, {STG}")
    k(f"v_add_u32 {v(vSW)}, {s(t0)}, {v(vt[0])}")
    k(f"v_lshrrev_b32 {v(vt[0])}, 4, {v(vL)}")
    k(f"s_lshl_b32 {s(t0)}, {s(sW)}, 2")
    k(f"v_add_u32 {v(vt[1])}, {s(t0)}, {v(vt[0])}")
    k(f"v_and_b32 {v(vt[2])}, 14, {v(vL)}")
    k(f"v_xor_b32 {v(vt[1])}, {v(vt[1])}, {v(vt[2])}")
    k(f"v_lshlrev_b32 {v(vt[1])}, 4, {v(vt[1])}")
    k(f"v_lshl_add_u32 {v(vt[1])}, {v(vt[2])}, 8, {v(vt[1])}")
    k(f"v_and_b32 {v(vt[2])}, 1, {v(vL)}")
    k(f"v_lshl_add_u32 {v(vt[1])}, {v(vt[2])}, 3, {v(vt[1])}")
    k(f"v_add_u32 {v(vSR)}, {STG}, {v(vt[1])}")
    k(f"v_mul_u32_u24 {v(vt[0])}, 1280, {v(vt[0])}")
    k(f"v_and_b32 {v(vt[2])}, 15, {v(vL)}")
    k(f"v_lshl_add_u32 {v(vBS)}, {v(vt[2])}, 2, {v(vt[0])}")
    stamp(k, 1, lq)
    waits(k, lg=lq.all(), vm=vq.need("q", "c0"))
    for qt in range(2):
        for r in range(2):
            k(f"v_cndmask_b32 {v(Q2[qt] + r)}, {v(Q2[qt] + r)}, {v(MXP[qt] + r)}, {s(sMASK, 2)}")
    k("s_barrier")
    stamp(k, 2, lq)

    def toff(n):
        c, j = divmod(n, 4)
        return (c % 2) * CH + 2 * j * TS

    def kread(n):
        lq.issue("k", f"ds_read_b128 {v(KF1, 4)}, {v(vK1)} offset:{toff(n)}")
        lq.issue("k", f"ds_read_b64 {v(KF2, 2)}, {v(vK2)} offset:{toff(n)}")

    def vread(n):
        for q in range(4):
            lq.issue(f"v{q // 2}", f"ds_read_b64_tr_b16 {v(VF[q // 2] + 2 * (q % 2), 2)}, {v(vV[q])} offset:{toff(n)}")

    def qk(qt):
        return [f"{MF32} {v(SS[qt], 16)}, {v(KF1, 4)}, {v(Q1[qt], 4)}, 0",
                f"v_mfma_f32_32x32x8_bf16 {v(SS[qt], 16)}, {v(KF2, 2)}, {v(Q2[qt], 2)}, {v(SS[qt], 16)}"]

    def pv(qt, first=False):
        return [f"{MF32} {v(O[qt], 16)}, {v(VF[t], 4)}, {v(P[qt] + 4 * t, 4)}, " + ("0" if first and t == 0 else v(O[qt], 16))
                for t in range(2)]

    def softmax_ops(qt):
        ops = []
        for r in range(16):
            ops.append(f"v_exp_f32 {v(SS[qt] + r)}, {v(SS[qt] + r)}")
            if r >= 3 and r % 2 == 1:
                c = (r - 3) // 2
                ops.append(f"v_cvt_pk_bf16_f32 {v(P[qt] + c)}, {v(SS[qt] + 2 * c)}, {v(SS[qt] + 2 * c + 1)}")
        ops.append(f"v_cvt_pk_bf16_f32 {v(P[qt] + 7)}, {v(SS[qt] + 14)}, {v(SS[qt] + 15)}")
        return ops

    PTS = [0, 5, 9, 13, 17, 21, 23]

    def phase(valu, slots):
        for i, t in enumerate(valu):
            if i in PTS:
                for x in slots[PTS.index(i)]:
                    if callable(x):
                        x()
                    else:
                        k(x)
            k(t)

    def gm(i):
        t, ks = divmod(i, 12)

        def f():
            waits(k, vm=vq.need(f"wd{i}", f"h{ks}"), lg=(lq.need("sw") if ks == 0 else None))
            k(f"{MF32} {v(BA, 16)}, {v(WDF[i % 6], 4)}, {v(HF[ks], 4)}, " + ("0" if ks == 0 else v(BA, 16)))
            wd_load(i + 6)
        return f

    def stg_write(t):
        def f():
            for g in range(4):
                if g:
                    k(f"v_xor_b32 {v(vt[g])}, {64 * g}, {v(vSW)}")
            for g in range(4):
                lq.issue("sw", f"ds_write_b128 {v(vt[g] if g else vSW)}, {v(BA + 4 * g, 4)} offset:{(t % 2) * 32768 + 1024 * g}")
        return f

    def stg_read(t):
        def f():
            for p in range(8):
                lq.issue("sr", f"ds_read_b64 {v(RT + 2 * p, 2)}, {v(vSR)} offset:{(t % 2) * 32768 + 4096 * p}")
        return f

    def stg_sum(t, part):
        def f():
            if part == 0:
                lq.wait("sr")
                for p in range(4):
                    for r in range(2):
                        k(f"v_add_f32 {v(RT + 2 * p + r)}, {v(RT + 2 * p + r)}, {v(RT + 8 + 2 * p + r)}")
            else:
                for p in range(2):
                    for r in range(2):
                        k(f"v_add_f32 {v(RT + 2 * p + r)}, {v(RT + 2 * p + r)}, {v(RT + 4 + 2 * p + r)}")
                for r in range(2):
                    k(f"v_add_f32 {v(RT + r)}, {v(RT + r)}, {v(RT + 2 + r)}")
                k(f"v_cvt_pk_bf16_f32 {v(RT)}, {v(RT)}, {v(RT + 1)}")
                vq.issue("st", f"buffer_store_dword {v(RT)}, {v(vBS)}, {s(SW_, 4)}, {s(sBO)} offen offset:{64 * t}")
        return f

    def wo_prefetch():
        k(f"s_lshr_b32 {s(t0)}, s2, 3")
        k(f"s_lshl_b32 {s(t0)}, {s(t0)}, 3")
        k(f"s_add_u32 {s(t0)}, {s(t0)}, {s(sW)}")
        k(f"s_mul_i32 {s(t0)}, {s(t0)}, {25 * 128}")
        k(f"s_add_u32 {s(t0)}, {s(t0)}, {WS_WT}")
        k(f"v_min_u32 {v(vt[0])}, 24, {v(vL)}")
        k(f"v_lshlrev_b32 {v(vt[0])}, 7, {v(vt[0])}")
        vq.issue("pf", f"buffer_load_dword {v(vPF)}, {v(vt[0])}, {s(SW_, 4)}, {s(t0)} offen")

    kread(0)
    lq.wait("k")
    for t in qk(0):
        k(t)
    NT = 32
    for n in range(NT):
        it, j = divmod(n, 4)
        ex = [[[], [], []], [[], [], []]]
        tg = it - 1
        if 0 <= tg < 5:
            ex[0][1].append(gm(12 * tg + 3 * j))
            ex[1][0].append(gm(12 * tg + 3 * j + 1))
            ex[1][1].append(gm(12 * tg + 3 * j + 2))
        head = []
        if j == 0 and 0 <= it - 2 < 5:
            head.append(stg_write(it - 2))
        if 0 <= it - 3 < 5:
            if j == 1:
                ex[0][0].append(stg_read(it - 3))
            if j == 2:
                ex[0][0].append(stg_sum(it - 3, 0))
            if j == 3:
                ex[0][0].append(stg_sum(it - 3, 1))
        if n == 25:
            ex[1][2].append(wo_prefetch)
        q = qk(1)
        p = pv(1, n == 1) if n > 0 else [None, None]
        kr = []
        if n + 1 < NT:
            if j == 3:
                kr.append(lambda it=it: waits(k, lg=lq.all(), vm=vq.need(f"c{it + 1}")))
                kr.append("s_barrier")
            kr.append(lambda n=n: kread(n + 1))
            if j == 3 and it + 2 < 8:
                d = dma_chunk(it + 2)
                ex[0][1] += d[:1]
                ex[0][2] += d[1:2]
                ex[1][2] += d[2:]
        s0 = [p[0]] if p[0] else []
        s1 = ([p[1]] if p[1] else []) + [lambda n=n: vread(n)] + head
        phase(softmax_ops(0), [s0, s1, [q[0]], [q[1]] + kr] + ex[0])
        p = pv(0, n == 0)
        q = qk(0)
        sq = [[lambda: lq.wait("k"), q[0]], [q[1]]] if n + 1 < NT else [[], []]
        phase(softmax_ops(1), [[lambda: lq.wait("v0"), p[0]], [lambda: lq.wait("v1"), p[1]]] + sq + ex[1])
        if DIAG and n in (3, 7, 23):
            stamp(k, 3 + (3, 7, 23).index(n), lq)
    for t in pv(1):
        k(t)
    stamp(k, 6, lq)
    k(f"s_mov_b32 {s(t0)}, {f32(2.0 ** 60)}")
    k(f"s_mov_b32 {s(t1)}, {f32(2.0 ** -60)}")
    k(f"v_mul_f32 {v(vt[0])}, 0, {v(O[0])}")
    for r in range(1, 12):
        k(f"v_fma_f32 {v(vt[0])}, {v(O[0] + r)}, 0, {v(vt[0])}")
    for r in range(12):
        k(f"v_fma_f32 {v(vt[0])}, {v(O[1] + r)}, 0, {v(vt[0])}")
    k(f"v_max_f32 {v(vt[1])}, {v(O[0] + 12)}, {v(O[1] + 12)}")
    k(f"v_min_f32 {v(vt[2])}, {v(O[0] + 12)}, {v(O[1] + 12)}")
    k(f"v_add_f32 {v(vt[1])}, {v(vt[1])}, {v(vt[0])}")
    k(f"v_cmp_nle_f32 vcc, {v(vt[1])}, {s(t0)}")
    k(f"v_cmp_nge_f32 {s(sTMP, 2)}, {v(vt[2])}, {s(t1)}")
    k(f"s_or_b64 vcc, vcc, {s(sTMP, 2)}")
    k(f"s_cmp_lg_u64 vcc, 0")
    k(f"s_cselect_b32 {s(t0)}, 1, 0")
    k(f"s_lshl_b32 {s(t1)}, {s(sW)}, 2")
    k(f"s_add_u32 {s(t1)}, {s(t1)}, {FLG}")
    k(f"v_mov_b32 {v(vt[0])}, {s(t0)}")
    k(f"v_mov_b32 {v(vt[1])}, {s(t1)}")
    k(f"ds_write_b32 {v(vt[1])}, {v(vt[0])}")
    k(f"s_lshl_b32 {s(t0)}, {s(sW)}, 12")
    k(f"s_add_u32 {s(t0)}, {s(t0)}, {STG + 32768}")
    k(f"v_add_u32 {v(vt[2])}, {s(t0)}, {v(vL16)}")
    k(f"s_xor_b32 {s(t0)}, {s(sW)}, 4")
    k(f"s_lshl_b32 {s(t0)}, {s(t0)}, 12")
    k(f"s_add_u32 {s(t0)}, {s(t0)}, {STG + 32768}")
    k(f"v_add_u32 {v(vt[3])}, {s(t0)}, {v(vL16)}")
    k(f"s_cmp_eq_u32 {s(sKH)}, 0")
    k("s_cbranch_scc1 L_k2_m0")
    for r in range(4):
        k(f"ds_write_b128 {v(vt[2])}, {v(O[0] + 4 * r, 4)} offset:{1024 * r}")
    for r in range(13):
        k(f"v_mov_b32 {v(O[0] + r)}, {v(O[1] + r)}")
    k("s_branch L_k2_m1")
    k.label("L_k2_m0")
    for r in range(4):
        k(f"ds_write_b128 {v(vt[2])}, {v(O[1] + 4 * r, 4)} offset:{1024 * r}")
    k.label("L_k2_m1")
    k(f"v_and_b32 {v(vt[4])}, 7, {v(vL)}")
    k(f"v_lshlrev_b32 {v(vt[4])}, 2, {v(vt[4])}")
    k(f"v_add_u32 {v(vt[4])}, {FLG}, {v(vt[4])}")
    k(f"s_lshl_b32 {s(t0)}, {s(sQB)}, 3")
    k(f"s_lshl_b32 {s(t1)}, {s(sQG)}, 1")
    k(f"s_add_u32 {s(t0)}, {s(t0)}, {s(t1)}")
    k(f"s_add_u32 {s(t0)}, {s(t0)}, {s(sKH)}")
    k(f"s_mul_i32 {s(t0)}, {s(t0)}, {TT_O}")
    k(f"s_lshr_b32 {s(t2)}, {s(sHEAD)}, 1")
    k(f"s_mul_i32 {s(t2)}, {s(t2)}, 5")
    k(f"s_lshl_b32 {s(t3)}, {s(sODD)}, 1")
    k(f"s_add_u32 {s(t2)}, {s(t2)}, {s(t3)}")
    k(f"s_lshl_b32 {s(t2)}, {s(t2)}, 9")
    k(f"s_add_u32 {s(t0)}, {s(t0)}, {s(t2)}")
    k(f"s_add_u32 {s(t0)}, {s(t0)}, {WS_O}")
    k(f"s_lshl_b32 {s(t1)}, {s(sODD)}, 9")
    k(f"s_add_u32 {s(t1)}, {s(t1)}, {s(t0)}")
    k("s_waitcnt lgkmcnt(0)")
    k("s_barrier")
    k(f"ds_read_b32 {v(vt[0])}, {v(vt[4])}")
    for r in range(4):
        k(f"ds_read_b128 {v(SS[0] + 4 * r, 4)}, {v(vt[3])} offset:{1024 * r}")
    k("s_waitcnt lgkmcnt(4)")
    k(f"v_cmp_ne_u32 vcc, 0, {v(vt[0])}")
    k(f"s_cmp_lg_u32 {s(sPASS)}, 0")
    k("s_cbranch_scc1 L_k2_fin")
    k("s_cbranch_vccnz L_k2_fb")
    k.label("L_k2_fin")
    k("s_waitcnt lgkmcnt(0)")
    k(f"v_add_f32 {v(vt[1])}, {v(O[0] + 12)}, {v(SS[0] + 12)}")
    k(f"v_rcp_f32 {v(vt[1])}, {v(vt[1])}")
    for r in range(12):
        k(f"v_add_f32 {v(O[0] + r)}, {v(O[0] + r)}, {v(SS[0] + r)}")
    for r in range(12):
        k(f"v_mul_f32 {v(O[0] + r)}, {v(O[0] + r)}, {v(vt[1])}")
    for c in range(6):
        k(f"v_cvt_pk_bf16_f32 {v(P[0] + c)}, {v(O[0] + 2 * c)}, {v(O[0] + 2 * c + 1)}")
    k(f"buffer_store_dwordx4 {v(P[0], 4)}, {v(vL16)}, {s(SW_, 4)}, {s(t1)} offen")
    k("s_mov_b64 exec, 0xffffffff")
    k(f"buffer_store_dwordx2 {v(P[0] + 4, 2)}, {v(vQ2)}, {s(SW_, 4)}, {s(t0)} offen")
    endpgm(k, 1, 8)

    k.label("L_k2_fb")
    MX = [O[0], O[1]]
    k("s_waitcnt vmcnt(0) lgkmcnt(0)")
    k(f"s_mov_b32 {s(sPASS)}, 1")
    for qt in range(2):
        k(f"v_mov_b32 {v(MX[qt])}, 0xff800000")
    k(f"s_mov_b32 {s(sCNT)}, 0")
    k(f"s_mov_b32 {s(sKO)}, 0")
    k.label("L_k2_mx")
    k("s_barrier")
    k(f"s_mov_b32 m0, {s(sM0)}")
    for j in range(3):
        k(f"buffer_load_dwordx4 {v(vD[j])}, {s(SW_, 4)}, {s(sKO)} offen offset:{1024 * j} lds")
    k(f"s_add_u32 {s(sKO)}, {s(sKO)}, {8 * TT_QKV}")
    k("s_waitcnt vmcnt(0)")
    k("s_barrier")
    for j in range(4):
        k(f"ds_read_b128 {v(KF1, 4)}, {v(vK1)} offset:{2 * j * TS}")
        k(f"ds_read_b64 {v(KF2, 2)}, {v(vK2)} offset:{2 * j * TS}")
        k("s_waitcnt lgkmcnt(0)")
        for qt in range(2):
            for t in qk(qt):
                k(t)
        for qt in range(2):
            for r in range(0, 16, 2):
                k(f"v_max3_f32 {v(MX[qt])}, {v(MX[qt])}, {v(SS[qt] + r)}, {v(SS[qt] + r + 1)}")
    k(f"s_add_u32 {s(sCNT)}, {s(sCNT)}, 1")
    k(f"s_cmp_lt_u32 {s(sCNT)}, 8")
    k("s_cbranch_scc1 L_k2_mx")
    k(f"ds_write_b32 {v(vt[2])}, {v(MX[0])}")
    k(f"ds_write_b32 {v(vt[2])}, {v(MX[1])} offset:4")
    k("s_waitcnt lgkmcnt(0)")
    k("s_barrier")
    k(f"ds_read_b64 {v(KF2, 2)}, {v(vt[3])}")
    k("s_waitcnt lgkmcnt(0)")
    for qt in range(2):
        m = MX[qt]
        k(f"v_max_f32 {v(m)}, {v(m)}, {v(KF2 + qt)}")
        k(f"v_mov_b32 {v(vt[0])}, {v(m)}")
        k(f"v_permlane32_swap_b32 {v(vt[0])}, {v(m)}")
        k(f"v_max_f32 {v(m)}, {v(m)}, {v(vt[0])}")
        k(f"v_sub_f32 {v(m)}, 0, {v(m)}")
        k(f"v_and_b32 {v(vt[0])}, 0xffff0000, {v(m)}")
        k(f"v_sub_f32 {v(vt[1])}, {v(m)}, {v(vt[0])}")
        k(f"v_and_b32 {v(vt[4])}, 0xffff0000, {v(vt[1])}")
        k(f"v_sub_f32 {v(vt[1])}, {v(vt[1])}, {v(vt[4])}")
        k(f"v_lshrrev_b32 {v(vt[0])}, 16, {v(vt[0])}")
        k(f"v_or_b32 {v(MXP[qt])}, {v(vt[0])}, {v(vt[4])}")
        k(f"v_lshrrev_b32 {v(MXP[qt] + 1)}, 16, {v(vt[1])}")
    k("s_barrier")
    k("s_branch L_k2_start")
    k.label("L_k2_end")
    k("s_endpgm")
    return name, va.hi, 52


def gen_k3(k):
    name = "k3_kernel"
    SWS, SOUT = 8, 12
    sW, sRT, sCT, sSO, sAO, sM = 16, 17, 18, 19, 20, 21
    t0, t1, t2, t3 = 24, 25, 26, 27
    kernel_head(k, name)
    k("s_cmp_ge_u32 s2, 256")
    k("s_cbranch_scc1 L_k3_end")
    diag_begin(k)
    k(f"s_load_dwordx2 s[4:5], s[0:1], {KA_WS}")
    k(f"s_load_dwordx2 s[6:7], s[0:1], {KA_OUT}")
    ticket(k, "k3", KA_WS, WS_TK + 4096, 128, WS_SIZE, 102400)
    va = Alloc(1, 256)
    vL = va()
    vt = [va() for _ in range(6)]
    vD = [va() for _ in range(5)]
    vA = va(); vB = [va(), va()]; vG = va(); vO = va(); vO2 = va()
    AF = [va(4) for _ in range(20)]
    BF = [[va(4) for _ in range(5)] for _ in range(2)]
    ACC = [va(4) for _ in range(5)]
    BB = va(12, 4)
    k(f"v_lshrrev_b32 {v(vt[0])}, 6, v0")
    k(f"v_and_b32 {v(vL)}, 63, v0")
    k(f"v_readfirstlane_b32 {s(sW)}, {v(vt[0])}")
    k(f"s_and_b32 {s(t0)}, s2, 7")
    k(f"s_lshl_b32 {s(t0)}, {s(t0)}, 2")
    k(f"s_lshr_b32 {s(t1)}, s2, 6")
    k(f"s_add_u32 {s(sRT)}, {s(t0)}, {s(t1)}")
    k(f"s_bfe_u32 {s(sCT)}, s2, 0x30003")
    k(f"v_lshrrev_b32 {v(vt[0])}, 4, {v(vL)}")
    k(f"v_and_b32 {v(vt[1])}, 15, {v(vL)}")
    k(f"v_lshlrev_b32 {v(vt[2])}, 4, {v(vt[1])}")
    k(f"v_lshl_add_u32 {v(vA)}, {v(vt[0])}, 9, {v(vt[2])}")
    k(f"s_lshl_b32 {s(t0)}, {s(sRT)}, 1")
    k(f"s_lshr_b32 {s(t1)}, {s(sW)}, 1")
    k(f"s_add_u32 {s(t0)}, {s(t0)}, {s(t1)}")
    k(f"s_mul_i32 {s(sAO)}, {s(t0)}, {TT_O}")
    k(f"s_and_b32 {s(t1)}, {s(sW)}, 1")
    k(f"s_lshl_b32 {s(t1)}, {s(t1)}, 8")
    k(f"s_add_u32 {s(sAO)}, {s(sAO)}, {s(t1)}")
    k(f"s_add_u32 {s(sAO)}, {s(sAO)}, {WS_O}")
    k(f"v_and_b32 {v(vt[3])}, 12, {v(vL)}")
    k(f"v_add_u32 {v(vt[3])}, {v(vt[3])}, {v(vt[1])}")
    k(f"s_mul_i32 {s(t0)}, {s(sCT)}, 1280")
    for j in range(5):
        k(f"v_add_u32 {v(vt[4])}, {4 * j}, {v(vt[0])}")
        k(f"v_mul_u32_u24 {v(vt[5])}, 205, {v(vt[4])}")
        k(f"v_lshrrev_b32 {v(vt[5])}, 10, {v(vt[5])}")
        k(f"v_mad_i32_i24 {v(vt[4])}, {v(vt[5])}, -5, {v(vt[4])}")
        k(f"v_mul_u32_u24 {v(vD[j])}, {KP}, {v(vt[5])}")
        k(f"v_cmp_eq_u32 vcc, 4, {v(vt[4])}")
        k(f"v_cndmask_b32 {v(vt[5])}, {v(vt[3])}, {v(vt[1])}, vcc")
        k(f"v_lshl_add_u32 {v(vD[j])}, {v(vt[5])}, 4, {v(vD[j])}")
        k(f"v_lshrrev_b32 {v(vt[5])}, 1, {v(vt[4])}")
        k(f"v_lshl_add_u32 {v(vD[j])}, {v(vt[5])}, 9, {v(vD[j])}")
        k(f"v_and_b32 {v(vt[5])}, 1, {v(vt[4])}")
        k(f"v_lshl_add_u32 {v(vD[j])}, {v(vt[5])}, 6, {v(vD[j])}")
    k(f"s_mul_i32 {s(sSO)}, {s(sW)}, {4 * KP}")
    k(f"s_add_u32 {s(sSO)}, {s(sSO)}, {s(t0)}")
    k(f"s_add_u32 {s(sSO)}, {s(sSO)}, {WS_WT}")
    k(f"s_mul_i32 {s(sM)}, {s(sW)}, 5120")
    k("s_waitcnt lgkmcnt(0)")
    srd(k, SWS, 4, WS_SIZE)
    lq = Q(k, "lgkmcnt", 15)
    vq = Q(k, "vmcnt", 63)
    for G in range(5):
        for j in range(5):
            k(f"s_add_u32 m0, {s(sM)}, {G * 20480 + j * 1024}")
            vq.issue(f"g{G}", f"buffer_load_dwordx4 {v(vD[j])}, {s(SWS, 4)}, {s(sSO)} offen lds")
        k(f"s_add_u32 {s(sSO)}, {s(sSO)}, {16 * KP}")
        for q in range(4):
            vq.issue(f"g{G}", f"buffer_load_dwordx4 {v(AF[4 * G + q], 4)}, {v(vA)}, {s(SWS, 4)}, {s(sAO)} offen offset:{2048 * (q % 2)}")
            if q % 2:
                k(f"s_add_u32 {s(sAO)}, {s(sAO)}, 4096")
    srd(k, SOUT, 6, S_ * D_ * 2)
    k(f"s_lshl_b32 {s(t0)}, {s(sRT)}, 2")
    k(f"s_add_u32 {s(t0)}, {s(t0)}, {s(sW)}")
    k(f"s_lshl_b32 {s(t0)}, {s(t0)}, 4")
    k(f"v_add_u32 {v(vt[2])}, {s(t0)}, {v(vt[1])}")
    k(f"v_lshlrev_b32 {v(vt[3])}, 2, {v(vt[2])}")
    k(f"v_mul_u32_u24 {v(vt[2])}, 1280, {v(vt[2])}")
    k(f"v_lshl_add_u32 {v(vO)}, {v(vt[0])}, 4, {v(vt[2])}")
    k(f"v_lshl_add_u32 {v(vO2)}, {v(vt[0])}, 3, {v(vt[2])}")
    k(f"s_mul_i32 {s(t1)}, {s(sCT)}, 160")
    k(f"s_add_u32 {s(t2)}, {s(t1)}, {WS_B}")
    k(f"s_mov_b32 {s(t3)}, {WS_G}")
    vq.issue("e", f"buffer_load_dword {v(vG)}, {v(vt[3])}, {s(SWS, 4)}, {s(t3)} offen")
    vq.issue("e", f"buffer_load_dwordx4 {v(BB, 4)}, {v(vO)}, {s(SWS, 4)}, {s(t2)} offen")
    vq.issue("e", f"buffer_load_dwordx4 {v(BB + 4, 4)}, {v(vO)}, {s(SWS, 4)}, {s(t2)} offen offset:64")
    vq.issue("e", f"buffer_load_dwordx2 {v(BB + 8, 2)}, {v(vO2)}, {s(SWS, 4)}, {s(t2)} offen offset:128")
    k(f"v_mul_u32_u24 {v(vt[2])}, 1280, {v(vt[0])}")
    k(f"v_lshl_add_u32 {v(vB[0])}, {v(vt[1])}, 4, {v(vt[2])}")
    k(f"v_add_u32 {v(vB[1])}, {12 * 5120}, {v(vB[0])}")
    stamp(k, 1, lq)

    def b_reads(ks):
        st = ks % 2
        r, o = (vB[0], ks * 5120) if ks < 12 else (vB[1], (ks - 12) * 5120)
        return [(f"b{st}{t}", f"ds_read_b128 {v(BF[st][t], 4)}, {v(r)} offset:{o + 256 * t}") for t in range(5)]

    vq.wait("g0")
    k("s_barrier")
    stamp(k, 2, lq)
    for r in b_reads(0):
        lq.issue(*r)
    for ks in range(20):
        st = ks % 2
        nxt = b_reads(ks + 1) if ks + 1 < 20 else []
        for t in range(5):
            if t == 0 and (ks + 1) % 4 == 0 and nxt:
                waits(k, lg=lq.need(f"b{st}{t}"), vm=vq.need(f"g{(ks + 1) // 4}"))
            else:
                lq.wait(f"b{st}{t}")
            k(f"v_mfma_f32_16x16x32_bf16 {v(ACC[t], 4)}, {v(BF[st][t], 4)}, {v(AF[ks], 4)}, " + ("0" if ks == 0 else v(ACC[t], 4)))
            if t == 0 and (ks + 1) % 4 == 0 and nxt:
                k("s_barrier")
            if nxt:
                lq.issue(*nxt.pop(0))
    stamp(k, 3, lq)
    vq.wait("e")
    k(f"v_sub_f32 {v(vt[0])}, 1.0, {v(vG)}")
    T = AF[0]
    for c in range(10):
        k(f"v_lshlrev_b32 {v(T + 2 * c)}, 16, {v(BB + c)}")
        k(f"v_and_b32 {v(T + 2 * c + 1)}, 0xffff0000, {v(BB + c)}")
    for c in range(20):
        k(f"v_mul_f32 {v(T + c)}, {v(T + c)}, {v(vt[0])}")
    for c in range(20):
        k(f"v_fmac_f32 {v(T + c)}, {v(ACC[c // 4] + c % 4)}, {v(vG)}")
    for c in range(10):
        k(f"v_cvt_pk_bf16_f32 {v(BB + c)}, {v(T + 2 * c)}, {v(T + 2 * c + 1)}")
    k(f"buffer_store_dwordx4 {v(BB, 4)}, {v(vO)}, {s(SOUT, 4)}, {s(t1)} offen")
    k(f"buffer_store_dwordx4 {v(BB + 4, 4)}, {v(vO)}, {s(SOUT, 4)}, {s(t1)} offen offset:64")
    k(f"buffer_store_dwordx2 {v(BB + 8, 2)}, {v(vO2)}, {s(SOUT, 4)}, {s(t1)} offen offset:128")
    endpgm(k, 2, 4)
    k.label("L_k3_end")
    k("s_endpgm")
    return name, va.hi, 52


if __name__ == "__main__":
    launches = [
        "; @launch kernel=k1_kernel grid=(256,1,1) block=(512,1,1) lds=163840",
        "; @launch kernel=k2_kernel grid=(256,1,1) block=(512,1,1) lds=115776",
        "; @launch kernel=k3_kernel grid=(256,1,1) block=(256,1,1) lds=102400",
    ]
    write(sys.argv[1] if len(sys.argv) > 1 else f"cdna_kernels/{NAME}.s", launches, (gen_k1, gen_k2, gen_k3))
```

```python
from common import *
from gen3 import WS_QKV, TT_QKV, WS_H, TT_H, WS_WT, KP, WS_G, WS_TK, WS_SIZE, MF32, GK1, GK2, gelu_ops

ST = os.environ.get("ST_FLAG", " sc1")
E = lambda n, d: eval(os.environ.get(n, d))
LD_INIT = E("LD_INIT", "{-2: ['x0', 's0', 's1'], -1: ['x1', 's2'], 0: ['s3', 's4'], 1: ['x2', 's5']}")
LDX = os.environ.get("LDX", "")
LDW = os.environ.get("LDW", "")
LEAD = E("LEAD", "4")
ROT = E("ROT", "1")
JOB0 = E("JOB0", "9")
JOBL = E("JOBL", "5")
NOJOB = E("X_NOJOB", "0")
NOLD = E("X_NOLD", "0")
LAG = 3
NW = 12
PFD = E("PFD", "7")
PFMIN = E("PFMIN", "11")
PFD0 = E("PFD0", "3")
PFR = E("PFR", "0.5")
PFSL = E("PFSL", "0")
PFU = E("PFU", "{1: -2, 2: -2, 3: -1}")
LDP = os.environ.get("LDP", "")


def gen_k1(k):
    name = "k1_kernel"
    SLW, NSW = 20480, 5
    XB, SLX, NSX = 102400, 16384, 3
    SIDE = XB + NSX * SLX
    NSTG = 20 + LAG
    pA, pB, pWO, pWS = 4, 8, 16, 18
    sW, sRB, sCG, sCP = 20, 21, 22, 23
    t0, t1, t2, t3 = 24, 25, 26, 27
    vt = [2 + i for i in range(8)]
    vL = 1

    kernel_head(k, name)
    k("s_cmp_ge_u32 s2, 256")
    k("s_cbranch_scc1 L_k1_end")
    diag_begin(k)
    k(f"s_load_dwordx4 {s(pA, 4)}, s[0:1], {KA_X}")
    k(f"s_load_dwordx8 {s(pB, 8)}, s[0:1], {KA_WG}")
    k(f"s_load_dwordx2 {s(pWO, 2)}, s[0:1], {KA_WO}")
    k(f"s_load_dwordx2 {s(pWS, 2)}, s[0:1], {KA_WS}")
    ticket(k, "k1", KA_DBG, 0, 8, 256, SIDE + 2048 * 5)
    k(f"v_lshrrev_b32 {v(vt[0])}, 6, v0")
    k(f"v_and_b32 {v(vL)}, 63, v0")
    k(f"v_readfirstlane_b32 {s(sW)}, {v(vt[0])}")
    k(f"s_bfe_u32 {s(t0)}, s2, 0x10002")
    k(f"s_lshl_b32 {s(t0)}, {s(t0)}, 3")
    k(f"s_bfe_u32 {s(t1)}, s2, 0x30003")
    k(f"s_add_u32 {s(sRB)}, {s(t0)}, {s(t1)}")
    k(f"s_and_b32 {s(t0)}, s2, 3")
    k(f"s_lshl_b32 {s(t0)}, {s(t0)}, 2")
    k(f"s_lshr_b32 {s(t1)}, s2, 6")
    k(f"s_add_u32 {s(sCG)}, {s(t0)}, {s(t1)}")
    k(f"s_lshr_b32 {s(sCP)}, {s(sCG)}, 1")
    k(f"s_cmp_ge_u32 {s(sW)}, 8")
    k("s_cbranch_scc1 L_k1_aux")

    def subtile_cols(sC):
        k(f"s_mul_i32 {s(t0)}, {s(sCP)}, 384")
        k(f"s_lshl_b32 {s(t1)}, {s(sCP)}, 9")
        k(f"s_add_u32 {s(t2)}, {s(t0)}, 256")
        k(f"s_add_u32 {s(t3)}, {s(t0)}, 128")
        k(f"s_add_u32 {s(sC[2])}, {s(t1)}, 128")
        k(f"s_add_u32 {s(sC[3])}, {s(t1)}, 256")
        k(f"s_add_u32 {s(sC[4])}, {s(t1)}, 384")
        k(f"s_bitcmp1_b32 {s(sCG)}, 0")
        k(f"s_cselect_b32 {s(sC[0])}, {s(t2)}, {s(t0)}")
        k(f"s_cselect_b32 {s(sC[2])}, {s(sC[2])}, {s(t3)}")
        k(f"s_cselect_b32 {s(sC[3])}, {s(sC[3])}, {s(t3)}")
        k(f"s_cselect_b32 {s(sC[4])}, {s(sC[4])}, {s(t1)}")
        k(f"s_mov_b32 {s(sC[1])}, {s(sC[0])}")

    def subtile_oob(sC):
        k(f"s_cmp_eq_u32 {s(sCG)}, 15")
        k(f"s_cselect_b32 {s(sC[3])}, {OOB}, {s(sC[3])}")
        k(f"s_cselect_b32 {s(sC[4])}, {OOB}, {s(sC[4])}")

    def subtile_srds(SR, sST):
        srd(k, SR[0], pB, D_ * F_ * 2)
        srd(k, SR[1], pB + 2, D_ * F_ * 2)
        srd(k, SR[4], pA + 2, D_ * 3 * D_ * 2)
        k(f"s_bitcmp1_b32 {s(sCG)}, 0")
        for j in (2, 3):
            for r in range(3):
                k(f"s_cselect_b32 {s(SR[j] + r)}, {s(SR[4] + r)}, {s(SR[j - 2] + r)}")
            k(f"s_mov_b32 {s(SR[j] + 3)}, 0x00020000")
        k(f"s_cselect_b32 {s(sST)}, 768, 0")
        k(f"s_add_u32 {s(sST)}, {s(sST)}, 3072")

    lq = Q(k, "lgkmcnt", 12)
    vq = Q(k, "vmcnt", 63)
    sRG, sCH = 28, 29
    SO = 32
    sC = [36, 37, 38, 39, 40]
    sSC = [41, 42, 43]
    sK2 = 44
    vL16, vK1 = 10, 11
    vW = [12, 13]
    vX = [0, 14, 15, 9]
    WF = [[16 + 20 * b + 4 * j for j in range(5)] for b in range(2)]
    XF = [56 + 4 * i for i in range(8)]
    ACC = [88 + 16 * j for j in range(5)]
    vI, vH = vt[6], vt[5]
    k(f"s_and_b32 {s(sRG)}, {s(sW)}, 3")
    k(f"s_lshr_b32 {s(sCH)}, {s(sW)}, 2")
    k(f"v_and_b32 {v(vI)}, 31, v0")
    k(f"v_bfe_u32 {v(vH)}, v0, 5, 1")
    k(f"v_lshlrev_b32 {v(vL16)}, 4, {v(vL)}")
    k(f"s_lshl_b32 {s(t0)}, {s(sRG)}, 12")
    k(f"s_add_u32 {s(t0)}, {s(t0)}, {XB}")
    k(f"v_lshlrev_b32 {v(vt[0])}, 7, {v(vI)}")
    k(f"v_bfe_u32 {v(vt[1])}, {v(vI)}, 1, 3")
    k(f"v_xor_b32 {v(vt[1])}, {v(vt[1])}, {v(vH)}")
    k(f"v_lshlrev_b32 {v(vt[1])}, 4, {v(vt[1])}")
    k(f"v_add3_u32 {v(vX[0])}, {v(vt[0])}, {v(vt[1])}, {s(t0)}")
    for ks in range(1, 4):
        k(f"v_xor_b32 {v(vX[ks])}, {32 * ks}, {v(vX[0])}")
    k(f"v_bfe_u32 {v(vt[0])}, {v(vL)}, 2, 2")
    k(f"v_lshl_add_u32 {v(vt[1])}, {v(vH)}, 3, {v(vt[0])}")
    k(f"v_bfe_u32 {v(vt[2])}, {v(vL)}, 4, 1")
    k(f"v_and_b32 {v(vt[3])}, 1, {v(vL)}")
    k(f"v_bfe_u32 {v(vt[4])}, {v(vL)}, 1, 1")
    k(f"v_lshlrev_b32 {v(vt[4])}, 3, {v(vt[4])}")
    k(f"v_lshl_add_u32 {v(vt[2])}, {v(vt[2])}, 1, {v(vt[3])}")
    k(f"v_bfe_u32 {v(vt[3])}, {v(vL)}, 3, 1")
    k(f"v_xor_b32 {v(vt[3])}, {s(sCH)}, {v(vt[3])}")
    k(f"v_lshl_add_u32 {v(vt[3])}, {v(vt[3])}, 2, {v(vt[2])}")
    k(f"v_lshl_add_u32 {v(vt[3])}, {v(vt[3])}, 4, {v(vt[4])}")
    k(f"v_lshl_add_u32 {v(vW[0])}, {v(vt[1])}, 7, {v(vt[3])}")
    k(f"v_add_u32 {v(vW[1])}, 65536, {v(vW[0])}")
    k(f"v_mov_b32 {v(vK1)}, {f32(GK1)}")
    k(f"s_mov_b32 {s(sK2)}, {f32(GK2)}")
    subtile_cols(sC)
    for j in (2, 3, 4):
        k(f"s_cmp_lt_u32 {s(sC[j])}, 1280")
        k(f"s_cselect_b32 {s(sSC[j - 2])}, {f32(QSCALE)}, 1.0")
    for j in range(5):
        k(f"s_lshl_b32 {s(sC[j])}, {s(sC[j])}, 5")
    k(f"s_lshl_b32 {s(t0)}, {s(sRB)}, 2")
    k(f"s_add_u32 {s(t0)}, {s(t0)}, {s(sRG)}")
    k(f"s_lshl_b32 {s(t3)}, {s(sCH)}, 11")
    k(f"s_mul_i32 {s(t1)}, {s(t0)}, {TT_QKV}")
    k(f"s_add_u32 {s(t1)}, {s(t1)}, {s(t3)}")
    k(f"s_mul_i32 {s(t2)}, {s(t0)}, {TT_H}")
    k(f"s_add_u32 {s(t2)}, {s(t2)}, {s(t3)}")
    k(f"s_add_u32 {s(t2)}, {s(t2)}, {WS_H}")
    k(f"s_add_u32 {s(sC[0])}, {s(sC[0])}, {s(t2)}")
    k(f"s_bitcmp1_b32 {s(sCG)}, 0")
    k(f"s_cselect_b32 {s(t2)}, {s(t1)}, {s(t2)}")
    k(f"s_add_u32 {s(sC[2])}, {s(sC[2])}, {s(t2)}")
    k(f"s_add_u32 {s(sC[3])}, {s(sC[3])}, {s(t1)}")
    k(f"s_add_u32 {s(sC[4])}, {s(sC[4])}, {s(t1)}")
    subtile_oob(sC)
    k("s_waitcnt lgkmcnt(0)")
    srd(k, SO, pWS, WS_SIZE)

    NS = 2 * NSTG

    def tiles(n):
        return ([2, 3, 4] if n >= 2 * LAG else []) + ([0, 1] if n < 40 else [])

    def wread(n, j):
        out = []
        for e in range(2):
            a_ = (n // 2 % NSW) * SLW + j * 4096 + (n % 2) * 2048 + e * 512
            out.append((f"w{n}_{j}", f"ds_read_b64_tr_b16 {v(WF[n % 2][j] + 2 * e, 2)}, {v(vW[a_ >> 16])} offset:{a_ & 0xffff}"))
        return out

    def xread(n):
        return [(f"x{n}", f"ds_read_b128 {v(XF[n % 8], 4)}, {v(vX[n % 4])} offset:{(n // 4 % NSX) * SLX}")]

    def gelu_tile(jg, ju, Z, so):
        ge = []
        for hf in range(2):
            G, U = ACC[jg] + 8 * hf, ACC[ju] + 8 * hf
            ge += gelu_ops(G, U, Z, 8, sK2, vK1)
            ge += [f"v_cvt_pk_bf16_f32 {v(G + c)}, {v(G + 2 * c)}, {v(G + 2 * c + 1)}" for c in range(4)]
            ge.append(f"buffer_store_dwordx4 {v(G, 4)}, {v(vL16)}, {s(SO, 4)}, {s(so)} offen offset:{1024 * hf}{ST}")
        return ge

    def qkv_tile(j):
        ep = []
        for hf in range(2):
            A = ACC[j] + 8 * hf
            ep += [f"v_mul_f32 {v(A + r)}, {s(sSC[j - 2])}, {v(A + r)}" for r in range(8)]
            ep += [f"v_cvt_pk_bf16_f32 {v(A + c)}, {v(A + 2 * c)}, {v(A + 2 * c + 1)}" for c in range(4)]
            ep.append(f"buffer_store_dwordx4 {v(A, 4)}, {v(vL16)}, {s(SO, 4)}, {s(sC[j])} offen offset:{1024 * hf}{ST}")
        return ep

    stamp(k, 1)
    k("s_barrier")
    stamp(k, 2)
    seq = [(n, j) for n in range(NS) for j in tiles(n)]
    idx = {x: i for i, x in enumerate(seq)}
    first = {n: idx[(n, tiles(n)[0])] for n in range(NS)}
    att = {}
    for n, j in seq:
        lo = -1 if n < 2 else first[n - 2]
        if j == 0:
            e_ = max(lo, idx.get((n - 8 + 2 * LAG, 4), -2) + 1)
            att.setdefault(e_, []).extend(xread(n))
        e_ = max(lo, idx.get((n - 2, j), -2) + 1)
        att.setdefault(e_, []).extend(wread(n, j))
    for r in att[-1]:
        lq.issue(*r)
    fq = []
    for i, (n, j) in enumerate(seq):
        if i == first[40] + 1:
            fq = gelu_tile(0, 1, WF[0][0], sC[0])
            fn = (len(fq) + 16) // 17
        xs = n if j < 2 else n - 2 * LAG
        lq.wait(f"w{n}_{j}", f"x{xs}")
        k(f"{MF32} {v(ACC[j], 16)}, {v(WF[n % 2][j], 4)}, {v(XF[xs % 8], 4)}, " + ("0" if xs == 0 else v(ACC[j], 16)))
        if i == first[n] and n % 2 == 0 and n + 2 < NS:
            k("s_barrier")
        for r in att.get(i, []):
            lq.issue(*r)
        for _ in range(fn if fq else 0):
            if fq:
                k(fq.pop(0))
    assert not fq
    stamp(k, 7, lq)
    k(f"s_bitcmp1_b32 {s(sCG)}, 0")
    k("s_cbranch_scc1 L_k1_odd")
    ge = gelu_tile(2, 3, WF[0][0], sC[2])
    ep = qkv_tile(4)
    for t in ge[:37] + ep + ge[37:]:
        k(t)
    endpgm(k, 0, NW)
    k.label("L_k1_odd")
    for j in (2, 3, 4):
        for t in qkv_tile(j):
            k(t)
    endpgm(k, 0, NW)

    k.label("L_k1_aux")
    k("s_setprio 3")
    k(f"s_cmp_eq_u32 {s(sW)}, 10")
    k("s_cbranch_scc1 L_k1_job")
    SR = [28, 32, 36, 40, 44]
    SX = 48
    sC = [52, 53, 54, 55, 56]
    sST, sXO, sLW = 57, 58, 59
    subtile_cols(sC)
    subtile_oob(sC)

    k(f"s_cmp_eq_u32 {s(sW)}, 11")
    k("s_cbranch_scc1 L_k1_pf")
    vq.q = []
    oX = [10, 11, 12, 13]
    oF = [14, 15]
    oQ = [16, 17]
    oM = [18, 19]
    sS32 = 3
    k(f"s_and_b32 {s(sLW)}, {s(sW)}, 1")
    k(f"v_lshrrev_b32 {v(vt[0])}, 3, {v(vL)}")
    k(f"v_and_b32 {v(vt[1])}, 7, {v(vL)}")
    k(f"v_lshrrev_b32 {v(vt[2])}, 4, {v(vL)}")
    k(f"s_lshl_b32 {s(t0)}, {s(sRB)}, 1")
    k(f"s_add_u32 {s(t0)}, {s(t0)}, {s(sLW)}")
    k(f"s_mul_i32 {s(sXO)}, {s(t0)}, {64 * 1280}")
    k(f"v_mul_u32_u24 {v(vt[3])}, 1280, {v(vt[0])}")
    k(f"v_xor_b32 {v(vt[4])}, {v(vt[1])}, {v(vt[2])}")
    k(f"v_lshl_add_u32 {v(oX[0])}, {v(vt[4])}, 4, {v(vt[3])}")
    k(f"v_xor_b32 {v(oX[1])}, 64, {v(oX[0])}")
    k(f"v_add_u32 {v(oX[1])}, {8 * 1280 - 1024}, {v(oX[1])}")
    k(f"v_add_u32 {v(oX[2])}, {16 * 1280 - 2048}, {v(oX[0])}")
    k(f"v_add_u32 {v(oX[3])}, {16 * 1280 - 2048}, {v(oX[1])}")
    k(f"v_and_b32 {v(vt[2])}, 1, {v(vt[2])}")
    k(f"v_lshlrev_b32 {v(vt[2])}, 2, {v(vt[2])}")
    k(f"v_xor_b32 {v(vt[2])}, {v(vt[2])}, {v(vt[1])}")
    k(f"v_lshlrev_b32 {v(vt[2])}, 4, {v(vt[2])}")
    k(f"s_lshl_b32 {s(t0)}, {s(sLW)}, 4")
    k(f"v_add_u32 {v(vt[3])}, {s(t0)}, {v(vt[0])}")
    k(f"v_mul_u32_u24 {v(vt[4])}, 3072, {v(vt[3])}")
    k(f"v_add_u32 {v(oF[0])}, {v(vt[4])}, {v(vt[2])}")
    k(f"v_add_u32 {v(oF[1])}, {8 * 3072 - 1024}, {v(oF[0])}")
    k(f"v_mul_u32_u24 {v(vt[4])}, 3840, {v(vt[3])}")
    k(f"v_add_u32 {v(oQ[0])}, {v(vt[4])}, {v(vt[2])}")
    k(f"v_add_u32 {v(oQ[1])}, {8 * 3840 - 1024}, {v(oQ[0])}")
    k(f"s_bitcmp1_b32 {s(sCG)}, 0")
    k("s_cselect_b64 vcc, -1, 0")
    for q in range(2):
        k(f"v_cndmask_b32 {v(oM[q])}, {v(oF[q])}, {v(oQ[q])}, vcc")
    k(f"s_lshl_b32 {s(t3)}, {s(sLW)}, 13")
    k(f"s_lshl_b32 {s(sLW)}, {s(sLW)}, 11")
    k("s_waitcnt lgkmcnt(0)")
    srd(k, SX, pA, S_ * D_ * 2)
    subtile_srds(SR, sST)
    sKX, sKA, sKB = 3, 20, 23
    k(f"s_and_b32 {s(t0)}, {s(sCG)}, 3")
    k(f"s_mul_i32 {s(t0)}, {s(t0)}, 5")
    k(f"s_add_u32 {s(t0)}, {s(t0)}, 1")
    k(f"s_lshr_b32 {s(t0)}, {s(t0)}, 1")
    k(f"s_and_b32 {s(t1)}, {s(sRB)}, 7")
    k(f"s_add_u32 {s(t0)}, {s(t0)}, {s(t1)}")
    k(f"s_cmp_ge_u32 {s(t0)}, 10")
    k(f"s_cselect_b32 {s(t1)}, 10, 0")
    k(f"s_sub_u32 {s(t0)}, {s(t0)}, {s(t1)}")
    if not ROT:
        k(f"s_mov_b32 {s(t0)}, 0")
    elif ROT > 1:
        tab = sum((((i % ROT) * 10 + ROT // 2) // ROT if i % ROT else 0) << (4 * i) for i in range(11))
        k(f"s_and_b32 {s(t0)}, {s(sCG)}, 3")
        k(f"s_and_b32 {s(t1)}, {s(sRB)}, 7")
        k(f"s_add_u32 {s(t0)}, {s(t0)}, {s(t1)}")
        k(f"s_lshl_b32 {s(t0)}, {s(t0)}, 2")
        k(f"s_mov_b32 {s(pWO)}, {tab & 0xffffffff}")
        k(f"s_mov_b32 {s(pWO + 1)}, {tab >> 32}")
        k(f"s_lshr_b64 {s(pWO, 2)}, {s(pWO, 2)}, {s(t0)}")
        k(f"s_and_b32 {s(t0)}, {s(pWO)}, 15")
    k(f"s_lshl_b32 {s(sKX)}, {s(t0)}, 7")
    k(f"s_lshl_b32 {s(sKA)}, {s(t0)}, 6")
    k(f"s_lshl_b32 {s(sKB)}, {s(t0)}, 6")

    def adv(r, step, lim):
        k(f"s_add_u32 {s(r)}, {s(r)}, {step}")
        k(f"s_cmp_ge_u32 {s(r)}, {lim}")
        k(f"s_cselect_b32 {s(r)}, 0, {s(r)}")
    OFF = [oF, oF, oM, oM, oQ]
    if E("LD_SLEEP", "0"):
        k(f"s_sleep {E('LD_SLEEP', '0')}")

    def fill(nm):
        if nm[0] == "x":
            c = int(nm[1:])
            k(f"s_add_u32 {s(t0)}, {s(sXO)}, {s(sKX)}")
            for hq in range(2):
                k(f"s_add_u32 m0, {s(t3)}, {XB + (c % NSX) * SLX + hq * 4096}")
                if hq:
                    k(f"s_add_u32 {s(t0)}, {s(t0)}, {32 * 1280}")
                else:
                    adv(sKX, 128, 1280)
                for q in range(4):
                    vq.issue(nm, f"buffer_load_dwordx4 {v(oX[q])}, {s(SX, 4)}, {s(t0)} offen offset:{1024 * q}{LDX} lds")
        else:
            t = int(nm[1:])
            for j in tiles(2 * t):
                k(f"s_add_u32 m0, {s(sLW)}, {(t % NSW) * SLW + j * 4096}")
                st = {0: "3072", 1: "3072", 2: s(sST), 3: s(sST), 4: "3840"}[j]
                k(f"s_mul_i32 {s(t0)}, {s(sKA if j < 2 else sKB)}, {st}")
                k(f"s_add_u32 {s(t0)}, {s(t0)}, {s(sC[j])}")
                for q in range(2):
                    vq.issue(nm, f"buffer_load_dwordx4 {v(OFF[j][q])}, {s(SR[j], 4)}, {s(t0)} offen offset:{1024 * q}{LDW} lds")
                if j in (1, 4):
                    adv(sKA if j < 2 else sKB, 32, 640)

    sched = {u: list(l) for u, l in LD_INIT.items()}
    done = set(x for l in sched.values() for x in l)
    for u in range(max(sched) + 1, NSTG):
        l = []
        if (u + LEAD) % 2 == 0 and (u + LEAD) // 2 < 10:
            l.append(f"x{(u + LEAD) // 2}")
        if u + LEAD < NSTG:
            l.append(f"s{u + LEAD}")
        sched[u] = [x for x in l if x not in done]
        done |= set(l)
    assert done == {f"x{c}" for c in range(10)} | {f"s{t}" for t in range(NSTG)}, sorted(done)
    order = [x for u in sorted(sched) for x in sched[u] if x[0] == "s"]
    assert order == sorted(order, key=lambda x: int(x[1:]))
    order = [x for u in sorted(sched) for x in sched[u] if x[0] == "x"]
    assert order == sorted(order, key=lambda x: int(x[1:]))
    for u, l in sched.items():
        for x in l:
            i = int(x[1:])
            if x[0] == "x":
                assert u < 2 * i - 1 and (i < NSX or u >= 2 * (i - NSX) + 2), (u, x)
            else:
                assert u < i - 1 and (i < NSW or u >= i - NSW + 1), (u, x)
    for u in range(-2, NSTG - 1):
        if u >= -1:
            vq.wait(f"s{u + 1}", f"x{(u + 1) // 2}" if u % 2 else "-")
            k("s_barrier")
            if DIAG and u >= 17:
                stamp(k, u - 15)
        for x in sched.get(u, []):
            if not (NOLD and u >= NOLD):
                fill(x)
        if u == -2:
            stamp(k, 1)
    endpgm(k, 0, NW)

    k.label("L_k1_pf")
    oPX, oPF, oPQ, oPM = 10, 11, 12, 13
    sCL = 3
    k(f"s_sub_u32 {s(sCL)}, {s(sCG)}, {s(sRB)}")
    k(f"s_and_b32 {s(sCL)}, {s(sCL)}, 3")
    k(f"s_mul_i32 {s(sXO)}, {s(sRB)}, {128 * 1280}")
    k(f"s_add_u32 {s(sLW)}, {s(sXO)}, {64 * 1280}")
    k(f"v_mul_u32_u24 {v(oPX)}, 1280, {v(vL)}")
    k(f"s_and_b32 {s(t0)}, {s(sRB)}, 4")
    k(f"s_lshl_b32 {s(t0)}, {s(t0)}, 3")
    k(f"v_add_u32 {v(vt[0])}, {s(t0)}, {v(vL)}")
    k(f"v_lshrrev_b32 {v(vt[1])}, 5, {v(vL)}")
    k(f"v_mul_u32_u24 {v(oPF)}, 3072, {v(vt[0])}")
    k(f"v_lshl_add_u32 {v(oPF)}, {v(vt[1])}, 30, {v(oPF)}")
    k(f"v_mul_u32_u24 {v(oPQ)}, 3840, {v(vt[0])}")
    k(f"v_lshl_add_u32 {v(oPQ)}, {v(vt[1])}, 30, {v(oPQ)}")
    k(f"s_bitcmp1_b32 {s(sCG)}, 0")
    k("s_cselect_b64 vcc, -1, 0")
    k(f"v_cndmask_b32 {v(oPM)}, {v(oPF)}, {v(oPQ)}, vcc")
    k("s_waitcnt lgkmcnt(0)")
    srd(k, SX, pA, S_ * D_ * 2)
    subtile_srds(SR, sST)
    POFF = [oPF, oPF, oPM, oPM, oPQ]

    def batch(c):
        k(f"s_cmp_eq_u32 {s(sCL)}, {c % 4}")
        k(f"s_cbranch_scc0 L_k1_pb{c}")
        if c < 10:
            for so in (sXO, sLW):
                k(f"buffer_load_dword {v(20)}, {v(oPX)}, {s(SX, 4)}, {s(so)} offen offset:{128 * c}{LDP}")
        for j in range(5):
            cc = c if j < 2 else c - 1
            if cc >= 10:
                continue
            if j in (2, 3):
                k(f"s_mul_i32 {s(t0)}, {s(sST)}, {64 * cc}")
                k(f"s_add_u32 {s(t0)}, {s(t0)}, {s(sC[j])}")
            else:
                k(f"s_add_u32 {s(t0)}, {s(sC[j])}, {64 * cc * (3072 if j < 2 else 3840)}")
            k(f"buffer_load_dword {v(20)}, {v(POFF[j])}, {s(SR[j], 4)}, {s(t0)} offen{LDP}")
        k.label(f"L_k1_pb{c}")
    if PFSL:
        k(f"s_sleep {PFSL}")
    for u in range(-2, NSTG - 1):
        if u >= -1:
            k("s_barrier")
            if u <= 7:
                stamp(k, u + 2)
        for c in range(PFMIN, 11):
            if PFU.get(c, 2 * c - PFD) == u:
                batch(c)
    endpgm(k, 0, NW)

    k.label("L_k1_job")
    vq.q, lq.q = [], []
    SO, SJ, SG = 28, 32, 36
    sJS, sJD = 40, 50
    oJ = [10, 11]
    vJR, vL16, vGX, vG, vGO = 12, 13, 14, 15, 9
    GW = 16
    XG = 56
    J = 60
    k(f"v_lshrrev_b32 {v(vt[0])}, 3, {v(vL)}")
    k(f"v_and_b32 {v(vt[1])}, 7, {v(vL)}")
    k(f"v_lshlrev_b32 {v(vL16)}, 4, {v(vL)}")
    k(f"v_mul_u32_u24 {v(vt[2])}, 1280, {v(vt[0])}")
    k(f"v_lshl_add_u32 {v(oJ[0])}, {v(vt[1])}, 4, {v(vt[2])}")
    k(f"v_add_u32 {v(oJ[1])}, {8 * 1280 - 1024}, {v(oJ[0])}")
    k(f"v_bfe_u32 {v(vt[2])}, {v(vL)}, 2, 2")
    k(f"v_lshrrev_b32 {v(vt[3])}, 4, {v(vL)}")
    k(f"v_lshlrev_b32 {v(vt[3])}, 5, {v(vt[3])}")
    k(f"v_lshl_add_u32 {v(vt[3])}, {v(vt[2])}, 7, {v(vt[3])}")
    k(f"v_and_b32 {v(vt[4])}, 3, {v(vL)}")
    k(f"v_lshl_add_u32 {v(vt[3])}, {v(vt[4])}, 3, {v(vt[3])}")
    k(f"v_add_u32 {v(vJR)}, {SIDE}, {v(vt[3])}")
    SXG = 44
    sGX = 48
    k(f"s_lshl_b32 {s(t0)}, {s(sRB)}, 4")
    k(f"s_add_u32 {s(t0)}, {s(t0)}, {s(sCG)}")
    k(f"s_mul_i32 {s(sGX)}, {s(t0)}, {8 * 1280}")
    k(f"v_lshlrev_b32 {v(vt[2])}, 4, {v(vt[1])}")
    k(f"v_lshlrev_b32 {v(vGO)}, 2, {v(vt[0])}")
    k(f"v_lshl_add_u32 {v(vGO)}, {v(vt[1])}, 27, {v(vGO)}")
    k(f"v_mov_b32 {v(vG)}, 0")
    k("s_waitcnt lgkmcnt(0)")
    srd(k, SG, pB + 6, D_ * 2)
    srd(k, SO, pWS, WS_SIZE)
    srd(k, SXG, pA, S_ * D_ * 2)
    k(f"s_cmp_eq_u32 s2, 0")
    k(f"s_cselect_b32 {s(t0)}, {WS_TK}, {OOB}")
    k(f"v_lshlrev_b32 {v(vt[3])}, 7, {v(vL)}")
    vq.issue("st", f"buffer_store_dword {v(vG)}, {v(vt[3])}, {s(SO, 4)}, {s(t0)} offen{ST}")

    def job_dma(j):
        k(f"s_add_u32 {s(t0)}, s2, {256 * j}")
        k(f"s_mul_i32 {s(t1)}, {s(t0)}, 52429")
        k(f"s_lshr_b32 {s(t1)}, {s(t1)}, 19")
        k(f"s_mul_i32 {s(t2)}, {s(t1)}, 10")
        k(f"s_sub_u32 {s(t2)}, {s(t0)}, {s(t2)}")
        k(f"s_mul_i32 {s(sJD + j)}, {s(t1)}, {2 * KP}")
        k(f"s_lshl_b32 {s(t3)}, {s(t2)}, 10")
        k(f"s_add_u32 {s(sJD + j)}, {s(sJD + j)}, {s(t3)}")
        k(f"s_add_u32 {s(sJD + j)}, {s(sJD + j)}, {WS_WT}")
        k(f"s_cmp_ge_u32 {s(t1)}, 40")
        k(f"s_cselect_b32 {s(SJ)}, {s(pB + 4)}, {s(pWO)}")
        k(f"s_cselect_b32 {s(t3)}, {s(pB + 5)}, {s(pWO + 1)}")
        k(f"s_cselect_b32 {s(SJ + 2)}, {(F_ - D_) * D_ * 2}, 0")
        k(f"s_cselect_b32 {s(sJS)}, 40, 0")
        k(f"s_and_b32 {s(SJ + 1)}, {s(t3)}, 0xffff")
        k(f"s_add_u32 {s(SJ + 2)}, {s(SJ + 2)}, {D_ * D_ * 2}")
        k(f"s_mov_b32 {s(SJ + 3)}, 0x00020000")
        k(f"s_sub_u32 {s(t1)}, {s(t1)}, {s(sJS)}")
        k(f"s_mul_i32 {s(sJS)}, {s(t1)}, {16 * 1280}")
        k(f"s_lshl_b32 {s(t2)}, {s(t2)}, 7")
        k(f"s_add_u32 {s(sJS)}, {s(sJS)}, {s(t2)}")
        if 256 * j + 255 >= 1360:
            k(f"s_cmp_ge_u32 {s(t0)}, 1360")
            k(f"s_cselect_b32 {s(sJS)}, {OOB}, {s(sJS)}")
            k(f"s_cselect_b32 {s(sJD + j)}, {OOB}, {s(sJD + j)}")
        k(f"s_mov_b32 m0, {SIDE + 2048 * j}")
        vq.issue(f"j{j}", f"buffer_load_dwordx4 {v(oJ[0])}, {s(SJ, 4)}, {s(sJS)} offen lds")
        vq.issue(f"j{j}", f"buffer_load_dwordx4 {v(oJ[1])}, {s(SJ, 4)}, {s(sJS)} offen offset:1024 lds")

    def job_out(j):
        vq.wait(f"j{j}")
        R = J + 8 * (j % 2)
        for q in range(4):
            lq.issue("jr", f"ds_read_b64_tr_b16 {v(R + 2 * q, 2)}, {v(vJR)} offset:{2048 * j + 512 * q}")
        lq.wait("jr")
        vq.issue("st", f"buffer_store_dwordx4 {v(R, 4)}, {v(vL16)}, {s(SO, 4)}, {s(sJD + j)} offen{ST}")
        k(f"s_add_u32 {s(sJD + j)}, {s(sJD + j)}, {KP}")
        vq.issue("st", f"buffer_store_dwordx4 {v(R + 4, 4)}, {v(vL16)}, {s(SO, 4)}, {s(sJD + j)} offen{ST}")

    for u in range(-1, NSTG - 1):
        k("s_barrier")
        if 8 <= u <= 16:
            stamp(k, u - 7)
        if NOJOB:
            continue
        if u == JOB0 - 2:
            for c in range(10):
                vq.issue("gw", f"buffer_load_dwordx4 {v(GW + 4 * c, 4)}, {v(vt[2])}, {s(SG, 4)}, 0 offen offset:{128 * c}")
        if u == JOB0 - 1:
            for c in range(10):
                vq.issue("gx", f"buffer_load_dwordx4 {v(76 + 4 * c, 4)}, {v(oJ[0])}, {s(SXG, 4)}, {s(sGX)} offen offset:{128 * c}")
        if 0 <= u - JOB0 - JOBL < 6:
            job_out(u - JOB0 - JOBL)
        if 0 <= u - JOB0 < 6:
            job_dma(u - JOB0)
        if u == JOB0 + 3:
            g = vG
            vq.wait("gx", "gw")
            for c in range(40):
                k(f"v_dot2c_f32_bf16 {v(vG)}, {v(76 + c)}, {v(GW + c)}")
            k(f"v_add_f32_dpp {v(g)}, {v(g)}, {v(g)} quad_perm:[1,0,3,2] row_mask:0xf bank_mask:0xf")
            k(f"v_add_f32_dpp {v(g)}, {v(g)}, {v(g)} quad_perm:[2,3,0,1] row_mask:0xf bank_mask:0xf")
            k(f"v_add_f32_dpp {v(g)}, {v(g)}, {v(g)} row_half_mirror row_mask:0xf bank_mask:0xf")
            k(f"s_mov_b32 {s(t1)}, {f32(-LOG2E)}")
            k(f"s_lshl_b32 {s(t0)}, {s(sRB)}, 4")
            k(f"s_add_u32 {s(t0)}, {s(t0)}, {s(sCG)}")
            k(f"s_lshl_b32 {s(t0)}, {s(t0)}, 5")
            k(f"s_add_u32 {s(t0)}, {s(t0)}, {WS_G}")
            k(f"v_cvt_pk_bf16_f32 {v(g)}, {v(g)}, {v(g)}")
            k(f"v_lshlrev_b32 {v(g)}, 16, {v(g)}")
            k(f"v_mul_f32 {v(g)}, {s(t1)}, {v(g)}")
            k(f"v_exp_f32 {v(g)}, {v(g)}")
            k(f"v_add_f32 {v(g)}, 1.0, {v(g)}")
            k(f"v_rcp_f32 {v(g)}, {v(g)}")
            k(f"v_cvt_pk_bf16_f32 {v(g)}, {v(g)}, {v(g)}")
            k(f"v_lshlrev_b32 {v(g)}, 16, {v(g)}")
            vq.issue("st", f"buffer_store_dword {v(g)}, {v(vGO)}, {s(SO, 4)}, {s(t0)} offen{ST}")
    assert JOB0 + JOBL + 5 < NSTG - 1
    endpgm(k, 0, NW)
    k.label("L_k1_end")
    k("s_endpgm")
    return name, 168, 60
```

```python
from common import *
from gen3 import WS_QKV, TT_QKV, WS_H, TT_H, WS_O, TT_O, WS_WT, KP, WS_B, WS_G, WS_TK, WS_SIZE, MF32
E = lambda n, d: eval(os.environ.get(n, d))
STO = os.environ.get("K2_STO", "")
STB = os.environ.get("K2_STB", " sc1")
GLD = E("K2_GLD", "[(n, p, s_) for n in range(1, 7) for p in range(2) for s_ in ((0, 2) if n < 4 else (2,))][:18]")
PRIO = E("K2_PRIO", "2")
C1 = E("K2_C1", "[(0, 0, 0), (0, 0, 2), (0, 1, 0)]")
PFW = E("K2_PFW", "[None] * 5")
PFH = E("K2_PFH", "0")
XS = os.environ.get("K2_X", "")
STN = E("K2_STN", "(3, 7, 23)")
BASE = E("K2_BASE", "(0, 5, 9, 13)")
SLOT = (17, 21, 23)
GM_POS = E("K2_GM", "[(j, p, i) for j in range(4) for p, i in ((0, 21), (1, 17), (1, 21))]")
SW_POS = E("K2_SW", "[(0, 0, 5)] * 4")
SR_POS = E("K2_SR", "[(1, 0, 17)] * 8")
SA_POS = E("K2_SA", "[(2, 0, 17)] * 4 + [(3, 0, 17)] * 4")
DM_POS = E("K2_DM", "[(3, 0, 21), (3, 0, 23), (3, 1, 23)]")
NRING = E("K2_NRING", "2")
ZPAD = E("K2_ZPAD", "1")
PRP = E("K2_PRP", "(0, 0, 14)")


def gen_k2(k):
    name = "k2_kernel"
    TS = 3136
    CH = 8 * TS
    STG = NRING * CH
    FLG = STG + 65536
    SW_ = 8
    sW, sKH, sQG, sHEAD, sQB, sODD = 12, 13, 14, 15, 16, 17
    sKO, sKO2, sM0, sPASS, sWD, sWDc, sBO, sHO, sQO = 18, 19, 20, 21, 22, 23, 24, 25, 26
    t0, t1, t2, t3 = 28, 29, 30, 31
    sMASK, sTMP = 32, 34
    sCNT = 36
    sTT, sQO0, sOO = 37, 38, 39
    kernel_head(k, name)
    k("s_cmp_ge_u32 s2, 256")
    k("s_cbranch_scc1 L_k2_end")
    diag_begin(k)
    k(f"s_load_dwordx2 s[4:5], s[0:1], {KA_WS}")
    ticket(k, "k2", KA_WS, WS_TK, 128, WS_SIZE, FLG + 32)
    va = Alloc(1, 256)
    vL = va(); vI = va(); vH = va(); vL16 = va()
    vt = [va() for _ in range(6)]
    vD = [va() for _ in range(3)]
    vK1 = va(); vK2 = va()
    vV = [va() for _ in range(4)]
    vWD = va(); vSW = va(); vSR = va(); vBS = va(); vQ2 = va(); vQ1 = va(); vXW = va(); vXR = va(); vPW = va()
    MXP = [va(2) for _ in range(2)]
    Q1 = [va(4) for _ in range(2)]
    Q2 = [va(2) for _ in range(2)]
    KF1 = va(4); KF2 = va(2)
    VF = [va(4) for _ in range(2)]
    P = [va(8, 4) for _ in range(2)]
    SS = [va(16, 4) for _ in range(2)]
    O = [va(16, 4) for _ in range(2)]
    HF = [va(4) for _ in range(12)]
    WDF = [va(4) for _ in range(6)]
    BA = va(16, 4)
    RT = va(16, 4)
    vPF = va()
    k(f"v_lshrrev_b32 {v(vt[0])}, 6, v0")
    k(f"v_and_b32 {v(vL)}, 63, v0")
    k(f"v_readfirstlane_b32 {s(sW)}, {v(vt[0])}")
    k(f"v_and_b32 {v(vI)}, 31, v0")
    k(f"v_bfe_u32 {v(vH)}, v0, 5, 1")
    k(f"v_lshlrev_b32 {v(vL16)}, 4, {v(vL)}")
    k(f"s_and_b32 {s(t0)}, s2, 7")
    k(f"s_lshl_b32 {s(t0)}, {s(t0)}, 2")
    k(f"s_lshr_b32 {s(t1)}, s2, 6")
    k(f"s_add_u32 {s(sHEAD)}, {s(t0)}, {s(t1)}")
    k(f"s_bfe_u32 {s(sQB)}, s2, 0x30003")
    k(f"s_lshr_b32 {s(sKH)}, {s(sW)}, 2")
    k(f"s_and_b32 {s(sQG)}, {s(sW)}, 3")
    k(f"s_and_b32 {s(sODD)}, {s(sHEAD)}, 1")
    k(f"s_lshr_b32 {s(t2)}, {s(sHEAD)}, 1")
    k(f"s_mul_i32 {s(t2)}, {s(t2)}, 5")
    k(f"s_lshl_b32 {s(t3)}, {s(sODD)}, 1")
    k(f"s_add_u32 {s(t2)}, {s(t2)}, {s(t3)}")
    k(f"s_lshl_b32 {s(t2)}, {s(t2)}, 9")
    k(f"s_lshl_b32 {s(t0)}, {s(sQB)}, 3")
    k(f"s_lshl_b32 {s(t1)}, {s(sQG)}, 1")
    k(f"s_add_u32 {s(t0)}, {s(t0)}, {s(t1)}")
    k(f"s_add_u32 {s(sTT)}, {s(t0)}, {s(sKH)}")
    k(f"s_mul_i32 {s(sQO)}, {s(sTT)}, {TT_QKV}")
    k(f"s_add_u32 {s(sQO)}, {s(sQO)}, {s(t2)}")
    k(f"s_xor_b32 {s(t0)}, {s(sTT)}, 1")
    k(f"s_mul_i32 {s(sQO0)}, {s(t0)}, {TT_QKV}")
    k(f"s_add_u32 {s(sQO0)}, {s(sQO0)}, {s(t2)}")
    k(f"s_mul_i32 {s(sOO)}, {s(sTT)}, {TT_O}")
    k(f"s_add_u32 {s(sOO)}, {s(sOO)}, {s(t2)}")
    k(f"s_add_u32 {s(sOO)}, {s(sOO)}, {WS_O}")
    k(f"s_lshl_b32 {s(t0)}, {s(sODD)}, 9")
    k(f"v_add_u32 {v(vQ1)}, {s(t0)}, {v(vL16)}")
    k(f"s_cmp_eq_u32 {s(sODD)}, 1")
    k(f"s_cselect_b32 {s(t1)}, 8, 1024")
    k(f"v_lshlrev_b32 {v(vt[0])}, 4, {v(vI)}")
    k(f"v_add_u32 {v(vQ2)}, {s(t1)}, {v(vt[0])}")
    k(f"s_mul_i32 {s(t0)}, {s(sW)}, {TT_QKV}")
    k(f"s_add_u32 {s(t0)}, {s(t0)}, {s(t2)}")
    k(f"s_add_u32 {s(t0)}, {s(t0)}, {80 * 512}")
    k(f"v_add_u32 {v(vD[0])}, {s(t0)}, {v(vL16)}")
    k(f"v_mul_u32_u24 {v(vt[1])}, {80 * 512 - 1024}, {v(vH)}")
    k(f"v_add3_u32 {v(vD[1])}, {v(vt[0])}, {v(vt[1])}, {s(t0)}")
    k(f"v_lshlrev_b32 {v(vt[1])}, 6, {v(vH)}")
    k(f"v_add_u32 {v(vt[1])}, 64, {v(vt[1])}")
    k(f"v_xor_b32 {v(vt[1])}, {v(vt[1])}, {v(vL16)}")
    k(f"s_add_u32 {s(t0)}, {s(t0)}, {80 * 512 + 512 - 2048}")
    k(f"v_add_u32 {v(vD[2])}, {s(t0)}, {v(vt[1])}")
    k(f"s_and_b32 {s(t0)}, {s(sW)}, 1")
    k(f"s_mul_i32 {s(t0)}, {s(t0)}, {4 * NRING}")
    k(f"s_lshr_b32 {s(t1)}, {s(sW)}, 1")
    k(f"s_add_u32 {s(t0)}, {s(t0)}, {s(t1)}")
    k(f"s_mul_i32 {s(sM0)}, {s(t0)}, {TS}")
    k(f"s_mov_b32 {s(sPASS)}, 0")
    for qt in range(2):
        for r in range(2):
            k(f"v_mov_b32 {v(MXP[qt] + r)}, 0")
    k("s_waitcnt lgkmcnt(0)")
    srd(k, SW_, 4, WS_SIZE)
    lq = Q(k, "lgkmcnt", 15)
    vq = Q(k, "vmcnt", 63)

    def dma_chunk(c):
        def a():
            k(f"s_add_u32 m0, {s(sM0)}, {(c % NRING) * 4 * TS}")
            k(f"s_mov_b32 {s(sKO)}, {c * 8 * TT_QKV}")
            vq.issue(f"c{c}", f"buffer_load_dwordx4 {v(vD[0])}, {s(SW_, 4)}, {s(sKO)} offen lds")
        out = [a]
        for j in (1, 2):
            out.append(lambda j=j: vq.issue(f"c{c}", f"buffer_load_dwordx4 {v(vD[j])}, {s(SW_, 4)}, {s(sKO)} offen offset:{1024 * j} lds"))
        return out

    k.label("L_k2_start")
    for qt in range(2):
        so = sQO0 if qt == 0 else sQO
        vq.issue("q", f"buffer_load_dwordx4 {v(Q1[qt], 4)}, {v(vQ1)}, {s(SW_, 4)}, {s(so)} offen")
        vq.issue("q", f"buffer_load_dwordx2 {v(Q2[qt], 2)}, {v(vQ2)}, {s(SW_, 4)}, {s(so)} offen")
        if qt == 0:
            for f in dma_chunk(0):
                f()
    if C1 is None:
        for f in dma_chunk(1):
            f()
    k(f"s_and_b32 {s(t0)}, s2, 7")
    k(f"s_lshl_b32 {s(t0)}, {s(t0)}, 3")
    k(f"s_add_u32 {s(t0)}, {s(t0)}, {s(sQB)}")
    k(f"s_mul_i32 {s(sHO)}, {s(t0)}, {TT_H}")
    k(f"s_mul_i32 {s(t1)}, {s(sW)}, 12288")
    k(f"s_add_u32 {s(sHO)}, {s(sHO)}, {s(t1)}")
    k(f"s_add_u32 {s(sHO)}, {s(sHO)}, {WS_H}")
    k(f"s_lshr_b32 {s(t2)}, s2, 6")
    k(f"s_mul_i32 {s(sWD)}, {s(sW)}, {24 * KP}")
    k(f"s_mul_i32 {s(t1)}, {s(t2)}, 2560")
    k(f"s_add_u32 {s(sWD)}, {s(sWD)}, {s(t1)}")
    k(f"s_add_u32 {s(sWD)}, {s(sWD)}, {WS_WT + 80 * KP}")
    k(f"v_mul_u32_u24 {v(vt[0])}, {KP}, {v(vH)}")
    k(f"v_lshl_add_u32 {v(vWD)}, {v(vI)}, 4, {v(vt[0])}")
    k(f"s_lshl_b32 {s(t0)}, {s(t0)}, 3")
    k(f"s_add_u32 {s(t0)}, {s(t0)}, {s(sW)}")
    k(f"s_mul_i32 {s(sBO)}, {s(t0)}, {4 * 1280}")
    k(f"s_mul_i32 {s(t1)}, {s(t2)}, 320")
    k(f"s_add_u32 {s(sBO)}, {s(sBO)}, {s(t1)}")
    k(f"s_add_u32 {s(sBO)}, {s(sBO)}, {WS_B}")

    if PFH:
        k(f"s_mul_i32 {s(t1)}, {s(t2)}, {192 * 128}")
        k(f"s_mul_i32 {s(t3)}, {s(sW)}, {24 * 128 - 12288}")
        k(f"s_add_u32 {s(t1)}, {s(t1)}, {s(t3)}")
        k(f"s_add_u32 {s(t1)}, {s(t1)}, {s(sHO)}")
        k(f"v_min_u32 {v(vt[1])}, 23, {v(vL)}")
        k(f"v_lshlrev_b32 {v(vt[1])}, 7, {v(vt[1])}")
        vq.issue("pf", f"buffer_load_dword {v(vPF)}, {v(vt[1])}, {s(SW_, 4)}, {s(t1)} offen")
    if any(x is not None for x in PFW):
        k(f"v_min_u32 {v(vt[1])}, 11, {v(vL)}")
        k(f"v_lshrrev_b32 {v(vt[2])}, 2, {v(vt[1])}")
        k(f"s_mul_i32 {s(t1)}, {s(sQB)}, 3")
        k(f"v_add_u32 {v(vt[2])}, {s(t1)}, {v(vt[2])}")
        k(f"v_mul_u32_u24 {v(vt[2])}, {KP}, {v(vt[2])}")
        k(f"v_and_b32 {v(vt[1])}, 3, {v(vt[1])}")
        k(f"v_lshl_add_u32 {v(vPW)}, {v(vt[1])}, 7, {v(vt[2])}")

    def wd_pf(t):
        vq.issue("pf", f"buffer_load_dword {v(vPF)}, {v(vPW)}, {s(SW_, 4)}, {s(sWD)} offen offset:{512 * t}")

    def wd_load(i):
        if i >= 60:
            return
        t, ks = divmod(i, 12)
        k(f"s_add_u32 {s(sWDc)}, {s(sWD)}, {ks * 2 * KP}")
        vq.issue(f"wd{i}", f"buffer_load_dwordx4 {v(WDF[i % 6], 4)}, {v(vWD)}, {s(SW_, 4)}, {s(sWDc)} offen offset:{512 * t}")

    def h_load(j):
        if j % 4 == 0 and j:
            k(f"s_add_u32 {s(sHO)}, {s(sHO)}, 4096")
        vq.issue(f"h{j}", f"buffer_load_dwordx4 {v(HF[j], 4)}, {v(vL16)}, {s(SW_, 4)}, {s(sHO)} offen offset:{1024 * (j % 4)}")
    gl = []
    for j in range(12):
        gl.append(lambda j=j: h_load(j))
        if j < 6:
            gl.append(lambda j=j: wd_load(j))
    assert len(GLD) == 18 and GLD == sorted(GLD)
    glpos = {}
    for pos, f in zip(GLD, gl):
        glpos.setdefault(pos, []).append(f)
    if C1 is not None:
        for pos, f in zip(C1, dma_chunk(1)):
            glpos.setdefault(pos, []).insert(0, f)
    for t_, pos in enumerate(PFW):
        if pos is not None:
            glpos.setdefault(pos, []).append(lambda t_=t_: wd_pf(t_))
    for f in glpos.pop(-1, []):
        f()
    k(f"s_mul_i32 {s(t3)}, {s(sKH)}, {4 * NRING * TS}")
    k(f"s_lshl_b32 {s(t0)}, {s(sODD)}, 9")
    k(f"s_add_u32 {s(t0)}, {s(t0)}, {s(t3)}")
    k(f"v_add_u32 {v(vK1)}, {s(t0)}, {v(vL16)}")
    k(f"v_cmp_eq_u32 {s(sMASK, 2)}, 1, {v(vH)}")
    k(f"v_mov_b32 {v(vt[1])}, 3072")
    k(f"v_cndmask_b32 {v(vK2)}, {v(vQ2)}, {v(vt[1])}, {s(sMASK, 2)}")
    k(f"v_add_u32 {v(vK2)}, {s(t3)}, {v(vK2)}")
    k(f"v_and_b32 {v(vt[0])}, 1, {v(vL)}")
    k(f"v_add_u32 {v(vt[0])}, {s(sODD)}, {v(vt[0])}")
    k(f"v_bfe_u32 {v(vt[1])}, {v(vL)}, 1, 1")
    k(f"v_bfe_u32 {v(vt[2])}, {v(vL)}, 4, 1")
    k(f"v_cmp_eq_u32 vcc, 1, {v(vt[2])}")
    k(f"s_lshl_b32 {s(t0)}, {s(sODD)}, 1")
    k(f"s_sub_u32 {s(t0)}, 2, {s(t0)}")
    k(f"v_mov_b32 {v(vt[3])}, {s(t0)}")
    k(f"v_cndmask_b32 {v(vt[0])}, {v(vt[0])}, {v(vt[3])}, vcc")
    k(f"v_mov_b32 {v(vt[3])}, {s(sODD)}")
    k(f"v_cndmask_b32 {v(vt[1])}, {v(vt[1])}, {v(vt[3])}, vcc")
    k(f"v_bfe_u32 {v(vt[3])}, {v(vL)}, 2, 2")
    k(f"v_lshl_add_u32 {v(vt[3])}, {v(vH)}, 2, {v(vt[3])}")
    k(f"v_lshlrev_b32 {v(vt[4])}, 2, {v(vt[0])}")
    k(f"v_xor_b32 {v(vt[3])}, {v(vt[3])}, {v(vt[4])}")
    k(f"v_lshlrev_b32 {v(vt[3])}, 4, {v(vt[3])}")
    k(f"v_lshl_add_u32 {v(vt[3])}, {v(vt[1])}, 3, {v(vt[3])}")
    k(f"v_lshl_add_u32 {v(vt[3])}, {v(vt[0])}, 9, {v(vt[3])}")
    k(f"v_and_b32 {v(vt[4])}, 19, {v(vL)}")
    k(f"v_cmp_lt_u32 vcc, 16, {v(vt[4])}")
    if ZPAD:
        k(f"v_and_b32 {v(vt[5])}, 2, {v(vL)}")
        k(f"v_mad_i32_i24 {v(vt[5])}, {v(vt[5])}, -4, {v(vt[2])}")
        k(f"v_add_u32 {v(vt[5])}, {3072 - 1536 + 15}, {v(vt[5])}")
    else:
        k(f"v_mov_b32 {v(vt[5])}, {3072 - 1536}")
    k(f"s_add_u32 {s(t0)}, {s(t3)}, 1536")
    for q in range(4):
        k(f"v_xor_b32 {v(vt[4])}, {128 * q}, {v(vt[3])}")
        k(f"v_cndmask_b32 {v(vt[4])}, {v(vt[4])}, {v(vt[5])}, vcc")
        k(f"v_add_u32 {v(vV[q])}, {s(t0)}, {v(vt[4])}")
    k(f"v_min_u32 {v(vt[0])}, {8 * NRING - 1}, {v(vL)}")
    k(f"v_mul_u32_u24 {v(vt[0])}, {TS}, {v(vt[0])}")
    k(f"v_mov_b32 {v(RT)}, 0x3f803f80")
    k(f"v_mov_b32 {v(RT + 1)}, 0x3f803f80")
    k(f"v_mov_b32 {v(RT + 2)}, 0x3f80")
    for r in range(3, 6):
        k(f"v_mov_b32 {v(RT + r)}, 0")
    lq.issue("one", f"ds_write_b128 {v(vt[0])}, {v(RT, 4)} offset:3072")
    lq.issue("one", f"ds_write_b64 {v(vt[0])}, {v(RT + 4, 2)} offset:3088")
    k(f"v_lshlrev_b32 {v(vt[0])}, 5, {v(vH)}")
    k(f"v_xor_b32 {v(vt[0])}, {v(vt[0])}, {v(vL16)}")
    k(f"s_lshl_b32 {s(t0)}, {s(sW)}, 12")
    k(f"s_add_u32 {s(t0)}, {s(t0)}, {STG}")
    k(f"v_add_u32 {v(vSW)}, {s(t0)}, {v(vt[0])}")
    k(f"v_lshrrev_b32 {v(vt[0])}, 4, {v(vL)}")
    k(f"s_lshl_b32 {s(t0)}, {s(sW)}, 2")
    k(f"v_add_u32 {v(vt[1])}, {s(t0)}, {v(vt[0])}")
    k(f"v_and_b32 {v(vt[2])}, 14, {v(vL)}")
    k(f"v_xor_b32 {v(vt[1])}, {v(vt[1])}, {v(vt[2])}")
    k(f"v_lshlrev_b32 {v(vt[1])}, 4, {v(vt[1])}")
    k(f"v_lshl_add_u32 {v(vt[1])}, {v(vt[2])}, 8, {v(vt[1])}")
    k(f"v_and_b32 {v(vt[2])}, 1, {v(vL)}")
    k(f"v_lshl_add_u32 {v(vt[1])}, {v(vt[2])}, 3, {v(vt[1])}")
    k(f"v_add_u32 {v(vSR)}, {STG}, {v(vt[1])}")
    k(f"v_mul_u32_u24 {v(vt[0])}, 1280, {v(vt[0])}")
    k(f"v_and_b32 {v(vt[2])}, 15, {v(vL)}")
    k(f"v_lshl_add_u32 {v(vBS)}, {v(vt[2])}, 2, {v(vt[0])}")
    k(f"s_lshl_b32 {s(t0)}, {s(sW)}, 12")
    k(f"s_add_u32 {s(t0)}, {s(t0)}, {STG + 32768}")
    k(f"v_add_u32 {v(vXW)}, {s(t0)}, {v(vL16)}")
    k(f"s_xor_b32 {s(t0)}, {s(sW)}, 4")
    k(f"s_lshl_b32 {s(t0)}, {s(t0)}, 12")
    k(f"s_add_u32 {s(t0)}, {s(t0)}, {STG + 32768}")
    k(f"v_add_u32 {v(vXR)}, {s(t0)}, {v(vL16)}")
    for g in range(1, 4):
        k(f"v_xor_b32 {v(vt[g])}, {64 * g}, {v(vSW)}")
    if PRIO == 2:
        k("s_setprio 3")
    if PRIO == 1:
        k(f"s_setprio 0")
        k(f"s_cmp_eq_u32 {s(sKH)}, 0")
        k("s_cbranch_scc1 L_k2_np")
        k(f"s_setprio {PRIO}")
        k.label("L_k2_np")
    stamp(k, 1, lq)
    waits(k, lg=lq.all(), vm=vq.need("q", "c0"))
    for qt in range(2):
        for r in range(2):
            k(f"v_cndmask_b32 {v(Q2[qt] + r)}, {v(Q2[qt] + r)}, {v(MXP[qt] + r)}, {s(sMASK, 2)}")
    k("s_barrier")
    stamp(k, 2, lq)

    def toff(n):
        c, j = divmod(n, 4)
        return ((c % NRING) * 4 + j) * TS

    def kread(n):
        lq.issue("k", f"ds_read_b128 {v(KF1, 4)}, {v(vK1)} offset:{toff(n)}")
        lq.issue("k", f"ds_read_b64 {v(KF2, 2)}, {v(vK2)} offset:{toff(n)}")

    def vread(n):
        for q in range(4):
            lq.issue(f"v{q // 2}", f"ds_read_b64_tr_b16 {v(VF[q // 2] + 2 * (q % 2), 2)}, {v(vV[q])} offset:{toff(n)}")

    def qk(qt):
        if "q" in XS:
            return ["s_nop 0", "s_nop 0"]
        return [f"{MF32} {v(SS[qt], 16)}, {v(KF1, 4)}, {v(Q1[qt], 4)}, 0",
                f"v_mfma_f32_32x32x8_bf16 {v(SS[qt], 16)}, {v(KF2, 2)}, {v(Q2[qt], 2)}, {v(SS[qt], 16)}"]

    def pv(qt, first=False):
        if "p" in XS and not first:
            return ["s_nop 0", "s_nop 0"]
        return [f"{MF32} {v(O[qt], 16)}, {v(VF[t], 4)}, {v(P[qt] + 4 * t, 4)}, " + ("0" if first and t == 0 else v(O[qt], 16))
                for t in range(2)]

    def softmax_ops(qt):
        ops = []
        for r in range(16):
            if "q" in XS:
                ops.append(f"v_exp_f32 {v(SS[qt] + r)}, {v(HF[r % 12] + qt + (r // 12) * 2)}")
            elif "e" in XS:
                ops.append(f"v_exp_f32 {v(RT + r)}, 1.0")
            else:
                ops.append(f"v_exp_f32 {v(SS[qt] + r)}, {v(SS[qt] + r)}")
            if r >= 3 and r % 2 == 1:
                c = (r - 3) // 2
                ops.append(f"v_cvt_pk_bf16_f32 {v(P[qt] + c)}, {v(SS[qt] + 2 * c)}, {v(SS[qt] + 2 * c + 1)}")
        ops.append(f"v_cvt_pk_bf16_f32 {v(P[qt] + 7)}, {v(SS[qt] + 14)}, {v(SS[qt] + 15)}")
        return ops

    def phase(valu, ins):
        for i, t in enumerate(valu):
            for x in ins.get(i, []):
                if callable(x):
                    x()
                else:
                    k(x)
            k(t)

    def gm(i):
        t, ks = divmod(i, 12)

        def f():
            waits(k, vm=vq.need(f"wd{i}", f"h{ks}"), lg=(lq.need("sw") if ks == 0 else None))
            if "m" not in XS:
                k(f"{MF32} {v(BA, 16)}, {v(WDF[i % 6], 4)}, {v(HF[ks], 4)}, " + ("0" if ks == 0 else v(BA, 16)))
            if "d" not in XS:
                wd_load(i + 6)
        return f

    def stg_write(t, g):
        def f():
            if "w" not in XS:
                lq.issue("sw", f"ds_write_b128 {v(vt[g] if g else vSW)}, {v(BA + 4 * g, 4)} offset:{(t % 2) * 32768 + 1024 * g}")
        return f

    def stg_read(t, p):
        def f():
            if "r" not in XS:
                lq.issue(f"sr{p}", f"ds_read_b64 {v(RT + 2 * p, 2)}, {v(vSR)} offset:{(t % 2) * 32768 + 4096 * p}")
        return f

    def stg_sum(t, p):
        def f():
            if "a" in XS:
                return
            if p < 7:
                lq.wait(f"sr{p + 1}")
                for r in range(2):
                    k(f"v_add_f32 {v(RT + r)}, {v(RT + r)}, {v(RT + 2 * p + 2 + r)}")
            else:
                k(f"v_cvt_pk_bf16_f32 {v(RT)}, {v(RT)}, {v(RT + 1)}")
                vq.issue("st", f"buffer_store_dword {v(RT)}, {v(vBS)}, {s(SW_, 4)}, {s(sBO)} offen offset:{64 * t}{STB}")
        return f

    def wo_prefetch():
        k(f"s_lshr_b32 {s(t0)}, s2, 3")
        k(f"s_lshl_b32 {s(t0)}, {s(t0)}, 3")
        k(f"s_add_u32 {s(t0)}, {s(t0)}, {s(sW)}")
        k(f"s_mul_i32 {s(t0)}, {s(t0)}, {25 * 128}")
        k(f"s_add_u32 {s(t0)}, {s(t0)}, {WS_WT}")
        k(f"v_min_u32 {v(vt[0])}, 24, {v(vL)}")
        k(f"v_lshlrev_b32 {v(vt[0])}, 7, {v(vt[0])}")
        vq.issue("pf", f"buffer_load_dword {v(vPF)}, {v(vt[0])}, {s(SW_, 4)}, {s(t0)} offen")

    kread(0)
    lq.wait("k")
    for t in qk(0):
        k(t)
    NT = 32
    X = {}

    def put(n, ph, idx, f):
        X.setdefault((n, ph), {}).setdefault(idx, []).append(f)
    for (n_, p_, s_), fs in sorted(glpos.items()):
        for f in fs:
            put(n_, p_, SLOT[s_], f)
    for tg in range(5):
        for i, (j, ph, idx) in enumerate(GM_POS):
            put(4 * (tg + 1) + j, ph, idx, gm(12 * tg + i))
        for g, (j, ph, idx) in enumerate(SW_POS):
            put(4 * (tg + 2) + j, ph, idx, stg_write(tg, g))
        for p_, (j, ph, idx) in enumerate(SR_POS):
            put(4 * (tg + 3) + j, ph, idx, stg_read(tg, p_))
        for p_, (j, ph, idx) in enumerate(SA_POS):
            put(4 * (tg + 3) + j, ph, idx, stg_sum(tg, p_))
    for c in range(2, 8):
        for f, (j, ph, idx) in zip(dma_chunk(c), DM_POS):
            put(4 * (c - 2) + j, ph, idx, f)
    put(25, 1, 23, wo_prefetch)
    if PRIO == 2:
        for n in range(NT):
            if n % 4 == 3:
                if n < 31:
                    put(n, 0, BASE[3], "s_setprio 3")
            else:
                put(n + PRP[0], PRP[1], PRP[2], f"s_setprio {2 - n % 4}")

    def merge(base, extra):
        out = {i: list(l) for i, l in base.items()}
        for i, l in extra.items():
            out.setdefault(i, []).extend(l)
        return out
    for n in range(NT):
        it, j = divmod(n, 4)
        q = qk(1)
        p = pv(1, n == 1) if n > 0 else [None, None]
        kr = []
        if n + 1 < NT:
            if j == 3:
                kr.append(lambda it=it: waits(k, lg=(lq.all() if NRING == 2 else lq.need("sw")), vm=vq.need(f"c{it + 1}")))
                kr.append("s_barrier")
            kr.append(lambda n=n: kread(n + 1))
        s0 = [p[0]] if p[0] else []
        s1 = ([p[1]] if p[1] else []) + [lambda n=n: vread(n)]
        phase(softmax_ops(0), merge(dict(zip(BASE, [s0, s1, [q[0]], [q[1]] + kr])), X.get((n, 0), {})))
        p = pv(0, n == 0)
        q = qk(0)
        sq = [[lambda: lq.wait("k"), q[0]], [q[1]]] if n + 1 < NT else [[], []]
        phase(softmax_ops(1), merge(dict(zip(BASE, [[lambda: lq.wait("v0"), p[0]], [lambda: lq.wait("v1"), p[1]]] + sq)), X.get((n, 1), {})))
        if DIAG and n in STN:
            stamp(k, (3, 4, 5, 7, 8, 9)[STN.index(n)], lq)
    p = pv(1)
    k(p[0])
    for r in range(3):
        lq.issue("x", f"ds_write_b128 {v(vXW)}, {v(O[0] + 4 * r, 4)} offset:{1024 * r}")
    lq.issue("x", f"ds_write_b32 {v(vXW)}, {v(O[0] + 12)} offset:3072")
    k(p[1])
    stamp(k, 6, lq)
    k(f"s_lshl_b32 {s(t1)}, {s(sODD)}, 9")
    k(f"s_add_u32 {s(t1)}, {s(t1)}, {s(sOO)}")
    k(f"s_mov_b32 {s(t2)}, {f32(2.0 ** 60)}")
    k(f"s_mov_b32 {s(t3)}, {f32(2.0 ** -60)}")
    k("s_waitcnt lgkmcnt(0)")
    k("s_barrier")
    k(f"ds_read_b32 {v(SS[0] + 12)}, {v(vXR)} offset:3072")
    for r in range(3):
        k(f"ds_read_b128 {v(SS[0] + 4 * r, 4)}, {v(vXR)} offset:{1024 * r}")
    X = O[1]
    k("s_waitcnt lgkmcnt(3)")
    k(f"v_add_f32 {v(X + 12)}, {v(X + 12)}, {v(SS[0] + 12)}")
    k(f"v_rcp_f32 {v(vt[1])}, {v(X + 12)}")
    for g in range(3):
        k(f"s_waitcnt lgkmcnt({2 - g})")
        for r in range(4 * g, 4 * g + 4):
            k(f"v_add_f32 {v(X + r)}, {v(X + r)}, {v(SS[0] + r)}")
        for r in range(4 * g, 4 * g + 4):
            k(f"v_mul_f32 {v(X + r)}, {v(X + r)}, {v(vt[1])}")
        for c in range(2 * g, 2 * g + 2):
            k(f"v_cvt_pk_bf16_f32 {v(P[0] + c)}, {v(X + 2 * c)}, {v(X + 2 * c + 1)}")
        if g == 1:
            k(f"buffer_store_dwordx4 {v(P[0], 4)}, {v(vL16)}, {s(SW_, 4)}, {s(t1)} offen{STO}")
    k("s_mov_b64 exec, 0xffffffff")
    k(f"buffer_store_dwordx2 {v(P[0] + 4, 2)}, {v(vQ2)}, {s(SW_, 4)}, {s(sOO)} offen{STO}")
    k("s_mov_b64 exec, -1")
    k(f"s_cmp_lg_u32 {s(sPASS)}, 0")
    k("s_cbranch_scc1 L_k2_fin")
    for r in range(12):
        k(f"v_fma_f32 {v(X + 12)}, {v(X + r)}, 0, {v(X + 12)}")
    k(f"v_cmp_nle_f32 vcc, {v(X + 12)}, {s(t2)}")
    k(f"v_cmp_nge_f32 {s(sTMP, 2)}, {v(X + 12)}, {s(t3)}")
    k(f"s_or_b64 vcc, vcc, {s(sTMP, 2)}")
    k(f"s_cmp_lg_u64 vcc, 0")
    k(f"s_cselect_b32 {s(t0)}, 1, 0")
    k(f"s_lshl_b32 {s(t1)}, {s(sW)}, 2")
    k(f"s_add_u32 {s(t1)}, {s(t1)}, {FLG}")
    k(f"v_mov_b32 {v(vt[0])}, {s(t0)}")
    k(f"v_mov_b32 {v(vt[1])}, {s(t1)}")
    k(f"ds_write_b32 {v(vt[1])}, {v(vt[0])}")
    k(f"v_and_b32 {v(vt[4])}, 7, {v(vL)}")
    k(f"v_lshlrev_b32 {v(vt[4])}, 2, {v(vt[4])}")
    k(f"v_add_u32 {v(vt[4])}, {FLG}, {v(vt[4])}")
    k("s_waitcnt lgkmcnt(0)")
    k("s_barrier")
    k(f"ds_read_b32 {v(vt[0])}, {v(vt[4])}")
    k("s_waitcnt lgkmcnt(0)")
    k(f"v_cmp_ne_u32 vcc, 0, {v(vt[0])}")
    k("s_cbranch_vccnz L_k2_fb")
    k.label("L_k2_fin")
    endpgm(k, 1, 8)

    k.label("L_k2_fb")
    MX = [O[0], O[1]]
    k("s_waitcnt vmcnt(0) lgkmcnt(0)")
    k(f"s_mov_b32 {s(sPASS)}, 1")
    for qt in range(2):
        k(f"v_mov_b32 {v(MX[qt])}, 0xff800000")
    k(f"s_mov_b32 {s(sCNT)}, 0")
    k(f"s_mov_b32 {s(sKO)}, 0")
    k.label("L_k2_mx")
    k("s_barrier")
    k(f"s_mov_b32 m0, {s(sM0)}")
    for j in range(3):
        k(f"buffer_load_dwordx4 {v(vD[j])}, {s(SW_, 4)}, {s(sKO)} offen offset:{1024 * j} lds")
    k(f"s_add_u32 {s(sKO)}, {s(sKO)}, {8 * TT_QKV}")
    k("s_waitcnt vmcnt(0)")
    k("s_barrier")
    for j in range(4):
        k(f"ds_read_b128 {v(KF1, 4)}, {v(vK1)} offset:{j * TS}")
        k(f"ds_read_b64 {v(KF2, 2)}, {v(vK2)} offset:{j * TS}")
        k("s_waitcnt lgkmcnt(0)")
        for qt in range(2):
            for t in qk(qt):
                k(t)
        for qt in range(2):
            for r in range(0, 16, 2):
                k(f"v_max3_f32 {v(MX[qt])}, {v(MX[qt])}, {v(SS[qt] + r)}, {v(SS[qt] + r + 1)}")
    k(f"s_add_u32 {s(sCNT)}, {s(sCNT)}, 1")
    k(f"s_cmp_lt_u32 {s(sCNT)}, 8")
    k("s_cbranch_scc1 L_k2_mx")
    k(f"ds_write_b32 {v(vXW)}, {v(MX[1])}")
    k(f"ds_write_b32 {v(vXW)}, {v(MX[0])} offset:4")
    k("s_waitcnt lgkmcnt(0)")
    k("s_barrier")
    k(f"ds_read_b64 {v(KF2, 2)}, {v(vXR)}")
    k("s_waitcnt lgkmcnt(0)")
    for qt in range(2):
        m = MX[qt]
        k(f"v_max_f32 {v(m)}, {v(m)}, {v(KF2 + qt)}")
        k(f"v_mov_b32 {v(vt[0])}, {v(m)}")
        k(f"v_permlane32_swap_b32 {v(vt[0])}, {v(m)}")
        k(f"v_max_f32 {v(m)}, {v(m)}, {v(vt[0])}")
        k(f"v_sub_f32 {v(m)}, 0, {v(m)}")
        k(f"v_and_b32 {v(vt[0])}, 0xffff0000, {v(m)}")
        k(f"v_sub_f32 {v(vt[1])}, {v(m)}, {v(vt[0])}")
        k(f"v_and_b32 {v(vt[4])}, 0xffff0000, {v(vt[1])}")
        k(f"v_sub_f32 {v(vt[1])}, {v(vt[1])}, {v(vt[4])}")
        k(f"v_lshrrev_b32 {v(vt[0])}, 16, {v(vt[0])}")
        k(f"v_or_b32 {v(MXP[qt])}, {v(vt[0])}, {v(vt[4])}")
        k(f"v_lshrrev_b32 {v(MXP[qt] + 1)}, 16, {v(vt[1])}")
    k("s_barrier")
    k("s_branch L_k2_start")
    k.label("L_k2_end")
    k("s_endpgm")
    return name, va.hi, 52
```

```python
from common import *
from gen3 import WS_QKV, TT_QKV, WS_H, TT_H, WS_O, TT_O, WS_WT, KP, WS_B, WS_G, WS_TK, WS_SIZE, MF32
E = lambda n, d: eval(os.environ.get(n, d))


def gen_k3(k):
    name = "k3_kernel"
    SWS, SOUT = 8, 12
    sW, sRT, sCT, sSO, sAO, sM = 16, 17, 18, 19, 20, 21
    t0, t1, t2, t3 = 24, 25, 26, 27
    kernel_head(k, name)
    k("s_cmp_ge_u32 s2, 256")
    k("s_cbranch_scc1 L_k3_end")
    diag_begin(k)
    k(f"s_load_dwordx2 s[4:5], s[0:1], {KA_WS}")
    k(f"s_load_dwordx2 s[6:7], s[0:1], {KA_OUT}")
    ticket(k, "k3", KA_WS, WS_TK + 4096, 128, WS_SIZE, 102400)
    va = Alloc(1, 256)
    vL = va()
    vt = [va() for _ in range(6)]
    vD = [va() for _ in range(5)]
    vA = va(); vB = [va(), va()]; vG = va(); vO = va(); vO2 = va()
    AF = [va(4) for _ in range(20)]
    BF = [[va(4) for _ in range(5)] for _ in range(2)]
    ACC = [va(4) for _ in range(5)]
    BB = va(12, 4)
    k(f"v_lshrrev_b32 {v(vt[0])}, 6, v0")
    k(f"v_and_b32 {v(vL)}, 63, v0")
    k(f"v_readfirstlane_b32 {s(sW)}, {v(vt[0])}")
    k(f"s_and_b32 {s(t0)}, s2, 7")
    k(f"s_lshl_b32 {s(t0)}, {s(t0)}, 2")
    k(f"s_lshr_b32 {s(t1)}, s2, 6")
    k(f"s_add_u32 {s(sRT)}, {s(t0)}, {s(t1)}")
    k(f"s_bfe_u32 {s(sCT)}, s2, 0x30003")
    k(f"v_lshrrev_b32 {v(vt[0])}, 4, {v(vL)}")
    k(f"v_and_b32 {v(vt[1])}, 15, {v(vL)}")
    k(f"v_lshlrev_b32 {v(vt[2])}, 4, {v(vt[1])}")
    k(f"v_lshl_add_u32 {v(vA)}, {v(vt[0])}, 9, {v(vt[2])}")
    k(f"s_lshl_b32 {s(t0)}, {s(sRT)}, 1")
    k(f"s_lshr_b32 {s(t1)}, {s(sW)}, 1")
    k(f"s_add_u32 {s(t0)}, {s(t0)}, {s(t1)}")
    k(f"s_mul_i32 {s(sAO)}, {s(t0)}, {TT_O}")
    k(f"s_and_b32 {s(t1)}, {s(sW)}, 1")
    k(f"s_lshl_b32 {s(t1)}, {s(t1)}, 8")
    k(f"s_add_u32 {s(sAO)}, {s(sAO)}, {s(t1)}")
    k(f"s_add_u32 {s(sAO)}, {s(sAO)}, {WS_O}")
    k(f"v_and_b32 {v(vt[3])}, 12, {v(vL)}")
    k(f"v_add_u32 {v(vt[3])}, {v(vt[3])}, {v(vt[1])}")
    k(f"s_mul_i32 {s(t0)}, {s(sCT)}, 1280")
    for j in range(5):
        k(f"v_add_u32 {v(vt[4])}, {4 * j}, {v(vt[0])}")
        k(f"v_mul_u32_u24 {v(vt[5])}, 205, {v(vt[4])}")
        k(f"v_lshrrev_b32 {v(vt[5])}, 10, {v(vt[5])}")
        k(f"v_mad_i32_i24 {v(vt[4])}, {v(vt[5])}, -5, {v(vt[4])}")
        k(f"v_mul_u32_u24 {v(vD[j])}, {KP}, {v(vt[5])}")
        k(f"v_cmp_eq_u32 vcc, 4, {v(vt[4])}")
        k(f"v_cndmask_b32 {v(vt[5])}, {v(vt[3])}, {v(vt[1])}, vcc")
        k(f"v_lshl_add_u32 {v(vD[j])}, {v(vt[5])}, 4, {v(vD[j])}")
        k(f"v_lshrrev_b32 {v(vt[5])}, 1, {v(vt[4])}")
        k(f"v_lshl_add_u32 {v(vD[j])}, {v(vt[5])}, 9, {v(vD[j])}")
        k(f"v_and_b32 {v(vt[5])}, 1, {v(vt[4])}")
        k(f"v_lshl_add_u32 {v(vD[j])}, {v(vt[5])}, 6, {v(vD[j])}")
    k(f"s_mul_i32 {s(sSO)}, {s(sW)}, {4 * KP}")
    k(f"s_add_u32 {s(sSO)}, {s(sSO)}, {s(t0)}")
    k(f"s_add_u32 {s(sSO)}, {s(sSO)}, {WS_WT}")
    k(f"s_mul_i32 {s(sM)}, {s(sW)}, 5120")
    k("s_waitcnt lgkmcnt(0)")
    srd(k, SWS, 4, WS_SIZE)
    lq = Q(k, "lgkmcnt", 15)
    vq = Q(k, "vmcnt", 63)
    for G in range(5):
        for j in range(5):
            k(f"s_add_u32 m0, {s(sM)}, {G * 20480 + j * 1024}")
            vq.issue(f"g{G}", f"buffer_load_dwordx4 {v(vD[j])}, {s(SWS, 4)}, {s(sSO)} offen lds")
        k(f"s_add_u32 {s(sSO)}, {s(sSO)}, {16 * KP}")
        for q in range(4):
            vq.issue(f"g{G}", f"buffer_load_dwordx4 {v(AF[4 * G + q], 4)}, {v(vA)}, {s(SWS, 4)}, {s(sAO)} offen offset:{2048 * (q % 2)}")
            if q % 2:
                k(f"s_add_u32 {s(sAO)}, {s(sAO)}, 4096")
    srd(k, SOUT, 6, S_ * D_ * 2)
    k(f"s_lshl_b32 {s(t0)}, {s(sRT)}, 2")
    k(f"s_add_u32 {s(t0)}, {s(t0)}, {s(sW)}")
    k(f"s_lshl_b32 {s(t0)}, {s(t0)}, 4")
    k(f"v_add_u32 {v(vt[2])}, {s(t0)}, {v(vt[1])}")
    k(f"v_lshlrev_b32 {v(vt[3])}, 2, {v(vt[2])}")
    k(f"v_mul_u32_u24 {v(vt[2])}, 1280, {v(vt[2])}")
    k(f"v_lshl_add_u32 {v(vO)}, {v(vt[0])}, 4, {v(vt[2])}")
    k(f"v_lshl_add_u32 {v(vO2)}, {v(vt[0])}, 3, {v(vt[2])}")
    k(f"s_mul_i32 {s(t1)}, {s(sCT)}, 160")
    k(f"s_add_u32 {s(t2)}, {s(t1)}, {WS_B}")
    k(f"s_mov_b32 {s(t3)}, {WS_G}")
    vq.issue("e", f"buffer_load_dword {v(vG)}, {v(vt[3])}, {s(SWS, 4)}, {s(t3)} offen")
    vq.issue("e", f"buffer_load_dwordx4 {v(BB, 4)}, {v(vO)}, {s(SWS, 4)}, {s(t2)} offen")
    vq.issue("e", f"buffer_load_dwordx4 {v(BB + 4, 4)}, {v(vO)}, {s(SWS, 4)}, {s(t2)} offen offset:64")
    vq.issue("e", f"buffer_load_dwordx2 {v(BB + 8, 2)}, {v(vO2)}, {s(SWS, 4)}, {s(t2)} offen offset:128")
    k(f"v_mul_u32_u24 {v(vt[2])}, 1280, {v(vt[0])}")
    k(f"v_lshl_add_u32 {v(vB[0])}, {v(vt[1])}, 4, {v(vt[2])}")
    k(f"v_add_u32 {v(vB[1])}, {12 * 5120}, {v(vB[0])}")
    stamp(k, 1, lq)

    def b_reads(ks):
        st = ks % 2
        r, o = (vB[0], ks * 5120) if ks < 12 else (vB[1], (ks - 12) * 5120)
        return [(f"b{st}{t}", f"ds_read_b128 {v(BF[st][t], 4)}, {v(r)} offset:{o + 256 * t}") for t in range(5)]

    vq.wait("g0")
    k("s_barrier")
    stamp(k, 2, lq)
    for r in b_reads(0):
        lq.issue(*r)
    for ks in range(20):
        st = ks % 2
        nxt = b_reads(ks + 1) if ks + 1 < 20 else []
        for t in range(5):
            if t == 0 and (ks + 1) % 4 == 0 and nxt:
                waits(k, lg=lq.need(f"b{st}{t}"), vm=vq.need(f"g{(ks + 1) // 4}"))
            else:
                lq.wait(f"b{st}{t}")
            k(f"v_mfma_f32_16x16x32_bf16 {v(ACC[t], 4)}, {v(BF[st][t], 4)}, {v(AF[ks], 4)}, " + ("0" if ks == 0 else v(ACC[t], 4)))
            if t == 0 and (ks + 1) % 4 == 0 and nxt:
                k("s_barrier")
            if nxt:
                lq.issue(*nxt.pop(0))
    stamp(k, 3, lq)
    vq.wait("e")
    k(f"v_sub_f32 {v(vt[0])}, 1.0, {v(vG)}")
    T = AF[0]
    for c in range(10):
        k(f"v_lshlrev_b32 {v(T + 2 * c)}, 16, {v(BB + c)}")
        k(f"v_and_b32 {v(T + 2 * c + 1)}, 0xffff0000, {v(BB + c)}")
    for c in range(20):
        k(f"v_mul_f32 {v(T + c)}, {v(T + c)}, {v(vt[0])}")
    for c in range(20):
        k(f"v_fmac_f32 {v(T + c)}, {v(ACC[c // 4] + c % 4)}, {v(vG)}")
    for c in range(10):
        k(f"v_cvt_pk_bf16_f32 {v(BB + c)}, {v(T + 2 * c)}, {v(T + 2 * c + 1)}")
    k(f"buffer_store_dwordx4 {v(BB, 4)}, {v(vO)}, {s(SOUT, 4)}, {s(t1)} offen")
    k(f"buffer_store_dwordx4 {v(BB + 4, 4)}, {v(vO)}, {s(SOUT, 4)}, {s(t1)} offen offset:64")
    k(f"buffer_store_dwordx2 {v(BB + 8, 2)}, {v(vO2)}, {s(SOUT, 4)}, {s(t1)} offen offset:128")
    endpgm(k, 2, 4)
    k.label("L_k3_end")
    k("s_endpgm")
    return name, va.hi, 52
```

```python
from common import *
from k1v6 import gen_k1
from k2v2 import gen_k2, NRING
from k3v2 import gen_k3
if __name__ == "__main__":
    launches = [
        "; @launch kernel=k1_kernel grid=(256,1,1) block=(768,1,1) lds=163840",
        f"; @launch kernel=k2_kernel grid=(256,1,1) block=(512,1,1) lds={NRING * 25088 + 65600}",
        "; @launch kernel=k3_kernel grid=(256,1,1) block=(256,1,1) lds=102464",
    ]
    write(sys.argv[1] if len(sys.argv) > 1 else f"cdna_kernels/{NAME}.s", launches, (gen_k1, gen_k2, gen_k3))
```

```python
from common import *
from gen3 import WS_QKV, TT_QKV, WS_H, TT_H, WS_WT, KP, WS_G, WS_TK, WS_SIZE, MF32, GK1, GK2, gelu_ops, VDELTA
QS16 = QSCALE * 1024.0 / 65535.0

ST = os.environ.get("ST_FLAG", " sc1")
E = lambda n, d: eval(os.environ.get(n, d))
STV = os.environ.get("STV_FLAG", " sc1")
LD_INIT = E("LD_INIT", "{-2: ['x0', 's0', 's1'], -1: ['x1', 's2'], 0: ['s3', 's4'], 1: ['x2', 's5']}")
LDX = os.environ.get("LDX", "")
LDW = os.environ.get("LDW", "")
LEAD = E("LEAD", "4")
ROT = E("ROT", "1")
XROT = E("XROT", "None")
JOB0 = E("JOB0", "9")
JOBL = E("JOBL", "5")
NOJOB = E("X_NOJOB", "0")
NOLD = E("X_NOLD", "0")
LAG = 3
NW = 12
PFD = E("PFD", "7")
PFMIN = E("PFMIN", "11")
PFD0 = E("PFD0", "3")
PFR = E("PFR", "0.5")
PFSL = E("PFSL", "0")
PFU = E("PFU", "{1: -2, 2: -2, 3: -1}")
LDP = os.environ.get("LDP", "")


def gen_k1(k):
    name = "k1_kernel"
    SLW, NSW = 20480, 5
    XB, SLX, NSX = 102400, 16384, 3
    SIDE = XB + NSX * SLX
    NSTG = 20 + LAG
    pA, pB, pWO, pWS = 4, 8, 16, 18
    sW, sRB, sCG, sCP = 20, 21, 22, 23
    t0, t1, t2, t3 = 24, 25, 26, 27
    vt = [2 + i for i in range(8)]
    vL = 1

    kernel_head(k, name)
    k("s_cmp_ge_u32 s2, 256")
    k("s_cbranch_scc1 L_k1_end")
    diag_begin(k)
    k(f"s_load_dwordx4 {s(pA, 4)}, s[0:1], {KA_X}")
    k(f"s_load_dwordx8 {s(pB, 8)}, s[0:1], {KA_WG}")
    k(f"s_load_dwordx2 {s(pWO, 2)}, s[0:1], {KA_WO}")
    k(f"s_load_dwordx2 {s(pWS, 2)}, s[0:1], {KA_WS}")
    ticket(k, "k1", KA_DBG, 0, 8, 256, SIDE + 2048 * 5)
    k(f"v_lshrrev_b32 {v(vt[0])}, 6, v0")
    k(f"v_and_b32 {v(vL)}, 63, v0")
    k(f"v_readfirstlane_b32 {s(sW)}, {v(vt[0])}")
    k(f"s_bfe_u32 {s(t0)}, s2, 0x10002")
    k(f"s_lshl_b32 {s(t0)}, {s(t0)}, 3")
    k(f"s_bfe_u32 {s(t1)}, s2, 0x30003")
    k(f"s_add_u32 {s(sRB)}, {s(t0)}, {s(t1)}")
    k(f"s_and_b32 {s(t0)}, s2, 3")
    k(f"s_lshl_b32 {s(t0)}, {s(t0)}, 2")
    k(f"s_lshr_b32 {s(t1)}, s2, 6")
    k(f"s_add_u32 {s(sCG)}, {s(t0)}, {s(t1)}")
    k(f"s_lshr_b32 {s(sCP)}, {s(sCG)}, 1")
    k(f"s_cmp_ge_u32 {s(sW)}, 8")
    k("s_cbranch_scc1 L_k1_aux")

    def subtile_cols(sC):
        k(f"s_mul_i32 {s(t0)}, {s(sCP)}, 384")
        k(f"s_lshl_b32 {s(t1)}, {s(sCP)}, 9")
        k(f"s_add_u32 {s(t2)}, {s(t0)}, 256")
        k(f"s_add_u32 {s(t3)}, {s(t0)}, 128")
        k(f"s_add_u32 {s(sC[2])}, {s(t1)}, 128")
        k(f"s_add_u32 {s(sC[3])}, {s(t1)}, 256")
        k(f"s_add_u32 {s(sC[4])}, {s(t1)}, 384")
        k(f"s_bitcmp1_b32 {s(sCG)}, 0")
        k(f"s_cselect_b32 {s(sC[0])}, {s(t2)}, {s(t0)}")
        k(f"s_cselect_b32 {s(sC[2])}, {s(sC[2])}, {s(t3)}")
        k(f"s_cselect_b32 {s(sC[3])}, {s(sC[3])}, {s(t3)}")
        k(f"s_cselect_b32 {s(sC[4])}, {s(sC[4])}, {s(t1)}")
        k(f"s_mov_b32 {s(sC[1])}, {s(sC[0])}")

    def subtile_oob(sC):
        k(f"s_cmp_eq_u32 {s(sCG)}, 15")
        k(f"s_cselect_b32 {s(sC[3])}, {OOB}, {s(sC[3])}")
        k(f"s_cselect_b32 {s(sC[4])}, {OOB}, {s(sC[4])}")

    def subtile_srds(SR, sST):
        srd(k, SR[0], pB, D_ * F_ * 2)
        srd(k, SR[1], pB + 2, D_ * F_ * 2)
        srd(k, SR[4], pA + 2, D_ * 3 * D_ * 2)
        k(f"s_bitcmp1_b32 {s(sCG)}, 0")
        for j in (2, 3):
            for r in range(3):
                k(f"s_cselect_b32 {s(SR[j] + r)}, {s(SR[4] + r)}, {s(SR[j - 2] + r)}")
            k(f"s_mov_b32 {s(SR[j] + 3)}, 0x00020000")
        k(f"s_cselect_b32 {s(sST)}, 768, 0")
        k(f"s_add_u32 {s(sST)}, {s(sST)}, 3072")

    lq = Q(k, "lgkmcnt", 12)
    vq = Q(k, "vmcnt", 63)
    sRG, sCH = 28, 29
    SO = 32
    sC = [36, 37, 38, 39, 40]
    sSC = [41, 42, 43]
    sK2 = 44
    vL16, vK1 = 10, 11
    vW = [12, 13]
    vX = [0, 14, 15, 9]
    WF = [[16 + 20 * b + 4 * j for j in range(5)] for b in range(2)]
    XF = [56 + 4 * i for i in range(8)]
    ACC = [88 + 16 * j for j in range(5)]
    vI, vH = vt[6], vt[5]
    k(f"s_and_b32 {s(sRG)}, {s(sW)}, 3")
    k(f"s_lshr_b32 {s(sCH)}, {s(sW)}, 2")
    k(f"v_and_b32 {v(vI)}, 31, v0")
    k(f"v_bfe_u32 {v(vH)}, v0, 5, 1")
    k(f"v_lshlrev_b32 {v(vL16)}, 4, {v(vL)}")
    k(f"s_lshl_b32 {s(t0)}, {s(sRG)}, 12")
    k(f"s_add_u32 {s(t0)}, {s(t0)}, {XB}")
    k(f"v_lshlrev_b32 {v(vt[0])}, 7, {v(vI)}")
    k(f"v_bfe_u32 {v(vt[1])}, {v(vI)}, 1, 3")
    k(f"v_xor_b32 {v(vt[1])}, {v(vt[1])}, {v(vH)}")
    k(f"v_lshlrev_b32 {v(vt[1])}, 4, {v(vt[1])}")
    k(f"v_add3_u32 {v(vX[0])}, {v(vt[0])}, {v(vt[1])}, {s(t0)}")
    for ks in range(1, 4):
        k(f"v_xor_b32 {v(vX[ks])}, {32 * ks}, {v(vX[0])}")
    k(f"v_bfe_u32 {v(vt[0])}, {v(vL)}, 2, 2")
    k(f"v_lshl_add_u32 {v(vt[1])}, {v(vH)}, 3, {v(vt[0])}")
    k(f"v_bfe_u32 {v(vt[2])}, {v(vL)}, 4, 1")
    k(f"v_and_b32 {v(vt[3])}, 1, {v(vL)}")
    k(f"v_bfe_u32 {v(vt[4])}, {v(vL)}, 1, 1")
    k(f"v_lshlrev_b32 {v(vt[4])}, 3, {v(vt[4])}")
    k(f"v_lshl_add_u32 {v(vt[2])}, {v(vt[2])}, 1, {v(vt[3])}")
    k(f"v_bfe_u32 {v(vt[3])}, {v(vL)}, 3, 1")
    k(f"v_xor_b32 {v(vt[3])}, {s(sCH)}, {v(vt[3])}")
    k(f"v_lshl_add_u32 {v(vt[3])}, {v(vt[3])}, 2, {v(vt[2])}")
    k(f"v_lshl_add_u32 {v(vt[3])}, {v(vt[3])}, 4, {v(vt[4])}")
    k(f"v_lshl_add_u32 {v(vW[0])}, {v(vt[1])}, 7, {v(vt[3])}")
    k(f"v_add_u32 {v(vW[1])}, 65536, {v(vW[0])}")
    k(f"v_mov_b32 {v(vK1)}, {f32(GK1)}")
    k(f"s_mov_b32 {s(sK2)}, {f32(GK2)}")
    subtile_cols(sC)
    for j in (2, 3, 4):
        k(f"s_cmp_lt_u32 {s(sC[j])}, 1280")
        k(f"s_cselect_b32 {s(sSC[j - 2])}, {f32(QS16)}, 1.0")
        k(f"s_cmp_ge_u32 {s(sC[j])}, 2560")
        k(f"s_cselect_b32 {s(sSC[j - 2])}, 0, {s(sSC[j - 2])}")
    for j in range(5):
        k(f"s_lshl_b32 {s(sC[j])}, {s(sC[j])}, 5")
    k(f"s_lshl_b32 {s(t0)}, {s(sRB)}, 2")
    k(f"s_add_u32 {s(t0)}, {s(t0)}, {s(sRG)}")
    k(f"s_lshl_b32 {s(t3)}, {s(sCH)}, 11")
    k(f"s_mul_i32 {s(t1)}, {s(t0)}, {TT_QKV}")
    k(f"s_add_u32 {s(t1)}, {s(t1)}, {s(t3)}")
    k(f"s_mul_i32 {s(t2)}, {s(t0)}, {TT_H}")
    k(f"s_add_u32 {s(t2)}, {s(t2)}, {s(t3)}")
    k(f"s_add_u32 {s(t2)}, {s(t2)}, {WS_H}")
    k(f"s_add_u32 {s(sC[0])}, {s(sC[0])}, {s(t2)}")
    k(f"s_bitcmp1_b32 {s(sCG)}, 0")
    k(f"s_cselect_b32 {s(t2)}, {s(t1)}, {s(t2)}")
    k(f"s_add_u32 {s(sC[2])}, {s(sC[2])}, {s(t2)}")
    k(f"s_add_u32 {s(sC[3])}, {s(sC[3])}, {s(t1)}")
    k(f"s_add_u32 {s(sC[4])}, {s(sC[4])}, {s(t1)}")
    subtile_oob(sC)
    k("s_waitcnt lgkmcnt(0)")
    srd(k, SO, pWS, WS_SIZE)

    NS = 2 * NSTG

    def tiles(n):
        return ([2, 3, 4] if n >= 2 * LAG else []) + ([0, 1] if n < 40 else [])

    def wread(n, j):
        out = []
        for e in range(2):
            a_ = (n // 2 % NSW) * SLW + j * 4096 + (n % 2) * 2048 + e * 512
            out.append((f"w{n}_{j}", f"ds_read_b64_tr_b16 {v(WF[n % 2][j] + 2 * e, 2)}, {v(vW[a_ >> 16])} offset:{a_ & 0xffff}"))
        return out

    def xread(n):
        return [(f"x{n}", f"ds_read_b128 {v(XF[n % 8], 4)}, {v(vX[n % 4])} offset:{(n // 4 % NSX) * SLX}")]

    def gelu_tile(jg, ju, Z, so):
        ge = []
        for hf in range(2):
            G, U = ACC[jg] + 8 * hf, ACC[ju] + 8 * hf
            ge += gelu_ops(G, U, Z, 8, sK2, vK1)
            ge += [f"v_cvt_pk_bf16_f32 {v(G + c)}, {v(G + 2 * c)}, {v(G + 2 * c + 1)}" for c in range(4)]
            ge.append(f"buffer_store_dwordx4 {v(G, 4)}, {v(vL16)}, {s(SO, 4)}, {s(so)} offen offset:{1024 * hf}{ST}")
        return ge

    def qkv_tile(j):
        ep = []
        for hf in range(2):
            A = ACC[j] + 8 * hf
            ep += [f"v_mul_f32 {v(A + r)}, {s(sSC[j - 2])}, {v(A + r)}" for r in range(8)]
            ep += [f"v_cvt_pk_bf16_f32 {v(A + c)}, {v(A + 2 * c)}, {v(A + 2 * c + 1)}" for c in range(4)]
            ep.append(f"buffer_store_dwordx4 {v(A, 4)}, {v(vL16)}, {s(SO, 4)}, {s(sC[j])} offen offset:{1024 * hf}{ST}")
        return ep

    def v_tile(j):
        ep = [f"s_add_u32 {s(sSC[j - 2])}, {s(sC[j])}, {VDELTA}"]
        for hf in range(2):
            A, T = ACC[j] + 8 * hf, XF[2 * (j - 2) + hf]
            ep += [f"v_cvt_pk_f16_f32 {v(T + c)}, {v(A + 2 * c)}, {v(A + 2 * c + 1)}" for c in range(4)]
            ep.append(f"buffer_store_dwordx4 {v(T, 4)}, {v(vL16)}, {s(SO, 4)}, {s(sC[j])} offen offset:{1024 * hf}{ST}")
        for hf in range(2):
            A = ACC[j] + 8 * hf
            ep += [f"v_cvt_pk_bf16_f32 {v(A + c)}, {v(A + 2 * c)}, {v(A + 2 * c + 1)}" for c in range(4)]
            ep.append(f"buffer_store_dwordx4 {v(A, 4)}, {v(vL16)}, {s(SO, 4)}, {s(sSC[j - 2])} offen offset:{1024 * hf}{STV}")
        return ep

    def qkv_any(j, tag):
        k(f"s_cmp_eq_u32 {s(sSC[j - 2])}, 0")
        k(f"s_cbranch_scc1 L_k1_v{tag}")
        for t in qkv_tile(j):
            k(t)
        k(f"s_branch L_k1_w{tag}")
        k.label(f"L_k1_v{tag}")
        for t in v_tile(j):
            k(t)
        k.label(f"L_k1_w{tag}")

    stamp(k, 1)
    k("s_barrier")
    stamp(k, 2)
    seq = [(n, j) for n in range(NS) for j in tiles(n)]
    idx = {x: i for i, x in enumerate(seq)}
    first = {n: idx[(n, tiles(n)[0])] for n in range(NS)}
    att = {}
    for n, j in seq:
        lo = -1 if n < 2 else first[n - 2]
        if j == 0:
            e_ = max(lo, idx.get((n - 8 + 2 * LAG, 4), -2) + 1)
            att.setdefault(e_, []).extend(xread(n))
        e_ = max(lo, idx.get((n - 2, j), -2) + 1)
        att.setdefault(e_, []).extend(wread(n, j))
    for r in att[-1]:
        lq.issue(*r)
    fq = []
    for i, (n, j) in enumerate(seq):
        if i == first[40] + 1:
            fq = gelu_tile(0, 1, WF[0][0], sC[0])
            fn = (len(fq) + 16) // 17
        xs = n if j < 2 else n - 2 * LAG
        lq.wait(f"w{n}_{j}", f"x{xs}")
        k(f"{MF32} {v(ACC[j], 16)}, {v(WF[n % 2][j], 4)}, {v(XF[xs % 8], 4)}, " + ("0" if xs == 0 else v(ACC[j], 16)))
        if i == first[n] and n % 2 == 0 and n + 2 < NS:
            k("s_barrier")
        for r in att.get(i, []):
            lq.issue(*r)
        for _ in range(fn if fq else 0):
            if fq:
                k(fq.pop(0))
    assert not fq
    stamp(k, 7, lq)
    k(f"s_bitcmp1_b32 {s(sCG)}, 0")
    k("s_cbranch_scc1 L_k1_odd")
    ge = gelu_tile(2, 3, WF[0][0], sC[2])
    for t in ge[:37]:
        k(t)
    qkv_any(4, "e")
    for t in ge[37:]:
        k(t)
    endpgm(k, 0, NW)
    k.label("L_k1_odd")
    for j in (2, 3, 4):
        qkv_any(j, f"o{j}")
    endpgm(k, 0, NW)

    k.label("L_k1_aux")
    k("s_setprio 3")
    k(f"s_cmp_eq_u32 {s(sW)}, 10")
    k("s_cbranch_scc1 L_k1_job")
    SR = [28, 32, 36, 40, 44]
    SX = 48
    sC = [52, 53, 54, 55, 56]
    sST, sXO, sLW = 57, 58, 59
    subtile_cols(sC)
    subtile_oob(sC)

    k(f"s_cmp_eq_u32 {s(sW)}, 11")
    k("s_cbranch_scc1 L_k1_pf")
    vq.q = []
    oX = [10, 11, 12, 13]
    oF = [14, 15]
    oQ = [16, 17]
    oM = [18, 19]
    sS32 = 3
    k(f"s_and_b32 {s(sLW)}, {s(sW)}, 1")
    k(f"v_lshrrev_b32 {v(vt[0])}, 3, {v(vL)}")
    k(f"v_and_b32 {v(vt[1])}, 7, {v(vL)}")
    k(f"v_lshrrev_b32 {v(vt[2])}, 4, {v(vL)}")
    k(f"s_lshl_b32 {s(t0)}, {s(sRB)}, 1")
    k(f"s_add_u32 {s(t0)}, {s(t0)}, {s(sLW)}")
    k(f"s_mul_i32 {s(sXO)}, {s(t0)}, {64 * 1280}")
    k(f"v_mul_u32_u24 {v(vt[3])}, 1280, {v(vt[0])}")
    k(f"v_xor_b32 {v(vt[4])}, {v(vt[1])}, {v(vt[2])}")
    k(f"v_lshl_add_u32 {v(oX[0])}, {v(vt[4])}, 4, {v(vt[3])}")
    k(f"v_xor_b32 {v(oX[1])}, 64, {v(oX[0])}")
    k(f"v_add_u32 {v(oX[1])}, {8 * 1280 - 1024}, {v(oX[1])}")
    k(f"v_add_u32 {v(oX[2])}, {16 * 1280 - 2048}, {v(oX[0])}")
    k(f"v_add_u32 {v(oX[3])}, {16 * 1280 - 2048}, {v(oX[1])}")
    k(f"v_and_b32 {v(vt[2])}, 1, {v(vt[2])}")
    k(f"v_lshlrev_b32 {v(vt[2])}, 2, {v(vt[2])}")
    k(f"v_xor_b32 {v(vt[2])}, {v(vt[2])}, {v(vt[1])}")
    k(f"v_lshlrev_b32 {v(vt[2])}, 4, {v(vt[2])}")
    k(f"s_lshl_b32 {s(t0)}, {s(sLW)}, 4")
    k(f"v_add_u32 {v(vt[3])}, {s(t0)}, {v(vt[0])}")
    k(f"v_mul_u32_u24 {v(vt[4])}, 3072, {v(vt[3])}")
    k(f"v_add_u32 {v(oF[0])}, {v(vt[4])}, {v(vt[2])}")
    k(f"v_add_u32 {v(oF[1])}, {8 * 3072 - 1024}, {v(oF[0])}")
    k(f"v_mul_u32_u24 {v(vt[4])}, 3840, {v(vt[3])}")
    k(f"v_add_u32 {v(oQ[0])}, {v(vt[4])}, {v(vt[2])}")
    k(f"v_add_u32 {v(oQ[1])}, {8 * 3840 - 1024}, {v(oQ[0])}")
    k(f"s_bitcmp1_b32 {s(sCG)}, 0")
    k("s_cselect_b64 vcc, -1, 0")
    for q in range(2):
        k(f"v_cndmask_b32 {v(oM[q])}, {v(oF[q])}, {v(oQ[q])}, vcc")
    k(f"s_lshl_b32 {s(t3)}, {s(sLW)}, 13")
    k(f"s_lshl_b32 {s(sLW)}, {s(sLW)}, 11")
    k("s_waitcnt lgkmcnt(0)")
    srd(k, SX, pA, S_ * D_ * 2)
    subtile_srds(SR, sST)
    sKX, sKA, sKB = 3, 20, 23
    k(f"s_and_b32 {s(t0)}, {s(sCG)}, 3")
    k(f"s_mul_i32 {s(t0)}, {s(t0)}, 5")
    k(f"s_add_u32 {s(t0)}, {s(t0)}, 1")
    k(f"s_lshr_b32 {s(t0)}, {s(t0)}, 1")
    k(f"s_and_b32 {s(t1)}, {s(sRB)}, 7")
    k(f"s_add_u32 {s(t0)}, {s(t0)}, {s(t1)}")
    k(f"s_cmp_ge_u32 {s(t0)}, 10")
    k(f"s_cselect_b32 {s(t1)}, 10, 0")
    k(f"s_sub_u32 {s(t0)}, {s(t0)}, {s(t1)}")
    if XROT:
        if not ROT:
            k(f"s_mov_b32 {s(t0)}, 0")
        k(f"s_and_b32 {s(t1)}, s2, 7")
        k(f"s_lshl_b32 {s(t1)}, {s(t1)}, 2")
        k(f"s_lshr_b32 {s(t1)}, {sum(x << (4 * i) for i, x in enumerate(XROT))}, {s(t1)}")
        k(f"s_and_b32 {s(t1)}, {s(t1)}, 15")
        k(f"s_add_u32 {s(t0)}, {s(t0)}, {s(t1)}")
        k(f"s_cmp_ge_u32 {s(t0)}, 10")
        k(f"s_cselect_b32 {s(t1)}, 10, 0")
        k(f"s_sub_u32 {s(t0)}, {s(t0)}, {s(t1)}")
    elif not ROT:
        k(f"s_mov_b32 {s(t0)}, 0")
    elif ROT > 1:
        tab = sum((((i % ROT) * 10 + ROT // 2) // ROT if i % ROT else 0) << (4 * i) for i in range(11))
        k(f"s_and_b32 {s(t0)}, {s(sCG)}, 3")
        k(f"s_and_b32 {s(t1)}, {s(sRB)}, 7")
        k(f"s_add_u32 {s(t0)}, {s(t0)}, {s(t1)}")
        k(f"s_lshl_b32 {s(t0)}, {s(t0)}, 2")
        k(f"s_mov_b32 {s(pWO)}, {tab & 0xffffffff}")
        k(f"s_mov_b32 {s(pWO + 1)}, {tab >> 32}")
        k(f"s_lshr_b64 {s(pWO, 2)}, {s(pWO, 2)}, {s(t0)}")
        k(f"s_and_b32 {s(t0)}, {s(pWO)}, 15")
    k(f"s_lshl_b32 {s(sKX)}, {s(t0)}, 7")
    k(f"s_lshl_b32 {s(sKA)}, {s(t0)}, 6")
    k(f"s_lshl_b32 {s(sKB)}, {s(t0)}, 6")

    def adv(r, step, lim):
        k(f"s_add_u32 {s(r)}, {s(r)}, {step}")
        k(f"s_cmp_ge_u32 {s(r)}, {lim}")
        k(f"s_cselect_b32 {s(r)}, 0, {s(r)}")
    OFF = [oF, oF, oM, oM, oQ]
    if E("LD_SLEEP", "0"):
        k(f"s_sleep {E('LD_SLEEP', '0')}")

    def fill(nm):
        if nm[0] == "x":
            c = int(nm[1:])
            k(f"s_add_u32 {s(t0)}, {s(sXO)}, {s(sKX)}")
            for hq in range(2):
                k(f"s_add_u32 m0, {s(t3)}, {XB + (c % NSX) * SLX + hq * 4096}")
                if hq:
                    k(f"s_add_u32 {s(t0)}, {s(t0)}, {32 * 1280}")
                else:
                    adv(sKX, 128, 1280)
                for q in range(4):
                    vq.issue(nm, f"buffer_load_dwordx4 {v(oX[q])}, {s(SX, 4)}, {s(t0)} offen offset:{1024 * q}{LDX} lds")
        else:
            t = int(nm[1:])
            for j in tiles(2 * t):
                k(f"s_add_u32 m0, {s(sLW)}, {(t % NSW) * SLW + j * 4096}")
                st = {0: "3072", 1: "3072", 2: s(sST), 3: s(sST), 4: "3840"}[j]
                k(f"s_mul_i32 {s(t0)}, {s(sKA if j < 2 else sKB)}, {st}")
                k(f"s_add_u32 {s(t0)}, {s(t0)}, {s(sC[j])}")
                for q in range(2):
                    vq.issue(nm, f"buffer_load_dwordx4 {v(OFF[j][q])}, {s(SR[j], 4)}, {s(t0)} offen offset:{1024 * q}{LDW} lds")
                if j in (1, 4):
                    adv(sKA if j < 2 else sKB, 32, 640)

    sched = {u: list(l) for u, l in LD_INIT.items()}
    done = set(x for l in sched.values() for x in l)
    for u in range(max(sched) + 1, NSTG):
        l = []
        if (u + LEAD) % 2 == 0 and (u + LEAD) // 2 < 10:
            l.append(f"x{(u + LEAD) // 2}")
        if u + LEAD < NSTG:
            l.append(f"s{u + LEAD}")
        sched[u] = [x for x in l if x not in done]
        done |= set(l)
    assert done == {f"x{c}" for c in range(10)} | {f"s{t}" for t in range(NSTG)}, sorted(done)
    order = [x for u in sorted(sched) for x in sched[u] if x[0] == "s"]
    assert order == sorted(order, key=lambda x: int(x[1:]))
    order = [x for u in sorted(sched) for x in sched[u] if x[0] == "x"]
    assert order == sorted(order, key=lambda x: int(x[1:]))
    for u, l in sched.items():
        for x in l:
            i = int(x[1:])
            if x[0] == "x":
                assert u < 2 * i - 1 and (i < NSX or u >= 2 * (i - NSX) + 2), (u, x)
            else:
                assert u < i - 1 and (i < NSW or u >= i - NSW + 1), (u, x)
    for u in range(-2, NSTG - 1):
        if u >= -1:
            vq.wait(f"s{u + 1}", f"x{(u + 1) // 2}" if u % 2 else "-")
            k("s_barrier")
            if DIAG and u >= 17:
                stamp(k, u - 15)
        for x in sched.get(u, []):
            if not (NOLD and u >= NOLD):
                fill(x)
        if u == -2:
            stamp(k, 1)
    endpgm(k, 0, NW)

    k.label("L_k1_pf")
    oPX, oPF, oPQ, oPM = 10, 11, 12, 13
    sCL = 3
    k(f"s_sub_u32 {s(sCL)}, {s(sCG)}, {s(sRB)}")
    k(f"s_and_b32 {s(sCL)}, {s(sCL)}, 3")
    k(f"s_mul_i32 {s(sXO)}, {s(sRB)}, {128 * 1280}")
    k(f"s_add_u32 {s(sLW)}, {s(sXO)}, {64 * 1280}")
    k(f"v_mul_u32_u24 {v(oPX)}, 1280, {v(vL)}")
    k(f"s_and_b32 {s(t0)}, {s(sRB)}, 4")
    k(f"s_lshl_b32 {s(t0)}, {s(t0)}, 3")
    k(f"v_add_u32 {v(vt[0])}, {s(t0)}, {v(vL)}")
    k(f"v_lshrrev_b32 {v(vt[1])}, 5, {v(vL)}")
    k(f"v_mul_u32_u24 {v(oPF)}, 3072, {v(vt[0])}")
    k(f"v_lshl_add_u32 {v(oPF)}, {v(vt[1])}, 30, {v(oPF)}")
    k(f"v_mul_u32_u24 {v(oPQ)}, 3840, {v(vt[0])}")
    k(f"v_lshl_add_u32 {v(oPQ)}, {v(vt[1])}, 30, {v(oPQ)}")
    k(f"s_bitcmp1_b32 {s(sCG)}, 0")
    k("s_cselect_b64 vcc, -1, 0")
    k(f"v_cndmask_b32 {v(oPM)}, {v(oPF)}, {v(oPQ)}, vcc")
    k("s_waitcnt lgkmcnt(0)")
    srd(k, SX, pA, S_ * D_ * 2)
    subtile_srds(SR, sST)
    POFF = [oPF, oPF, oPM, oPM, oPQ]

    def batch(c):
        k(f"s_cmp_eq_u32 {s(sCL)}, {c % 4}")
        k(f"s_cbranch_scc0 L_k1_pb{c}")
        if c < 10:
            for so in (sXO, sLW):
                k(f"buffer_load_dword {v(20)}, {v(oPX)}, {s(SX, 4)}, {s(so)} offen offset:{128 * c}{LDP}")
        for j in range(5):
            cc = c if j < 2 else c - 1
            if cc >= 10:
                continue
            if j in (2, 3):
                k(f"s_mul_i32 {s(t0)}, {s(sST)}, {64 * cc}")
                k(f"s_add_u32 {s(t0)}, {s(t0)}, {s(sC[j])}")
            else:
                k(f"s_add_u32 {s(t0)}, {s(sC[j])}, {64 * cc * (3072 if j < 2 else 3840)}")
            k(f"buffer_load_dword {v(20)}, {v(POFF[j])}, {s(SR[j], 4)}, {s(t0)} offen{LDP}")
        k.label(f"L_k1_pb{c}")
    if PFSL:
        k(f"s_sleep {PFSL}")
    for u in range(-2, NSTG - 1):
        if u >= -1:
            k("s_barrier")
            if u <= 7:
                stamp(k, u + 2)
        for c in range(PFMIN, 11):
            if PFU.get(c, 2 * c - PFD) == u:
                batch(c)
    endpgm(k, 0, NW)

    k.label("L_k1_job")
    vq.q, lq.q = [], []
    SO, SJ, SG = 28, 32, 36
    sJS, sJD = 40, 50
    oJ = [10, 11]
    vJR, vL16, vGX, vG, vGO = 12, 13, 14, 15, 9
    GW = 16
    XG = 56
    J = 60
    k(f"v_lshrrev_b32 {v(vt[0])}, 3, {v(vL)}")
    k(f"v_and_b32 {v(vt[1])}, 7, {v(vL)}")
    k(f"v_lshlrev_b32 {v(vL16)}, 4, {v(vL)}")
    k(f"v_mul_u32_u24 {v(vt[2])}, 1280, {v(vt[0])}")
    k(f"v_lshl_add_u32 {v(oJ[0])}, {v(vt[1])}, 4, {v(vt[2])}")
    k(f"v_add_u32 {v(oJ[1])}, {8 * 1280 - 1024}, {v(oJ[0])}")
    k(f"v_bfe_u32 {v(vt[2])}, {v(vL)}, 2, 2")
    k(f"v_lshrrev_b32 {v(vt[3])}, 4, {v(vL)}")
    k(f"v_lshlrev_b32 {v(vt[3])}, 5, {v(vt[3])}")
    k(f"v_lshl_add_u32 {v(vt[3])}, {v(vt[2])}, 7, {v(vt[3])}")
    k(f"v_and_b32 {v(vt[4])}, 3, {v(vL)}")
    k(f"v_lshl_add_u32 {v(vt[3])}, {v(vt[4])}, 3, {v(vt[3])}")
    k(f"v_add_u32 {v(vJR)}, {SIDE}, {v(vt[3])}")
    SXG = 44
    sGX = 48
    k(f"s_lshl_b32 {s(t0)}, {s(sRB)}, 4")
    k(f"s_add_u32 {s(t0)}, {s(t0)}, {s(sCG)}")
    k(f"s_mul_i32 {s(sGX)}, {s(t0)}, {8 * 1280}")
    k(f"v_lshlrev_b32 {v(vt[2])}, 4, {v(vt[1])}")
    k(f"v_lshlrev_b32 {v(vGO)}, 2, {v(vt[0])}")
    k(f"v_lshl_add_u32 {v(vGO)}, {v(vt[1])}, 27, {v(vGO)}")
    k(f"v_mov_b32 {v(vG)}, 0")
    k("s_waitcnt lgkmcnt(0)")
    srd(k, SG, pB + 6, D_ * 2)
    srd(k, SO, pWS, WS_SIZE)
    srd(k, SXG, pA, S_ * D_ * 2)
    k(f"s_cmp_eq_u32 s2, 0")
    k(f"s_cselect_b32 {s(t0)}, {WS_TK}, {OOB}")
    k(f"v_lshlrev_b32 {v(vt[3])}, 7, {v(vL)}")
    vq.issue("st", f"buffer_store_dword {v(vG)}, {v(vt[3])}, {s(SO, 4)}, {s(t0)} offen{ST}")

    def job_dma(j):
        k(f"s_add_u32 {s(t0)}, s2, {256 * j}")
        k(f"s_mul_i32 {s(t1)}, {s(t0)}, 52429")
        k(f"s_lshr_b32 {s(t1)}, {s(t1)}, 19")
        k(f"s_mul_i32 {s(t2)}, {s(t1)}, 10")
        k(f"s_sub_u32 {s(t2)}, {s(t0)}, {s(t2)}")
        k(f"s_mul_i32 {s(sJD + j)}, {s(t1)}, {2 * KP}")
        k(f"s_lshl_b32 {s(t3)}, {s(t2)}, 10")
        k(f"s_add_u32 {s(sJD + j)}, {s(sJD + j)}, {s(t3)}")
        k(f"s_add_u32 {s(sJD + j)}, {s(sJD + j)}, {WS_WT}")
        k(f"s_cmp_ge_u32 {s(t1)}, 40")
        k(f"s_cselect_b32 {s(SJ)}, {s(pB + 4)}, {s(pWO)}")
        k(f"s_cselect_b32 {s(t3)}, {s(pB + 5)}, {s(pWO + 1)}")
        k(f"s_cselect_b32 {s(SJ + 2)}, {(F_ - D_) * D_ * 2}, 0")
        k(f"s_cselect_b32 {s(sJS)}, 40, 0")
        k(f"s_and_b32 {s(SJ + 1)}, {s(t3)}, 0xffff")
        k(f"s_add_u32 {s(SJ + 2)}, {s(SJ + 2)}, {D_ * D_ * 2}")
        k(f"s_mov_b32 {s(SJ + 3)}, 0x00020000")
        k(f"s_sub_u32 {s(t1)}, {s(t1)}, {s(sJS)}")
        k(f"s_mul_i32 {s(sJS)}, {s(t1)}, {16 * 1280}")
        k(f"s_lshl_b32 {s(t2)}, {s(t2)}, 7")
        k(f"s_add_u32 {s(sJS)}, {s(sJS)}, {s(t2)}")
        if 256 * j + 255 >= 1360:
            k(f"s_cmp_ge_u32 {s(t0)}, 1360")
            k(f"s_cselect_b32 {s(sJS)}, {OOB}, {s(sJS)}")
            k(f"s_cselect_b32 {s(sJD + j)}, {OOB}, {s(sJD + j)}")
        k(f"s_mov_b32 m0, {SIDE + 2048 * j}")
        vq.issue(f"j{j}", f"buffer_load_dwordx4 {v(oJ[0])}, {s(SJ, 4)}, {s(sJS)} offen lds")
        vq.issue(f"j{j}", f"buffer_load_dwordx4 {v(oJ[1])}, {s(SJ, 4)}, {s(sJS)} offen offset:1024 lds")

    def job_out(j):
        vq.wait(f"j{j}")
        R = J + 8 * (j % 2)
        for q in range(4):
            lq.issue("jr", f"ds_read_b64_tr_b16 {v(R + 2 * q, 2)}, {v(vJR)} offset:{2048 * j + 512 * q}")
        lq.wait("jr")
        vq.issue("st", f"buffer_store_dwordx4 {v(R, 4)}, {v(vL16)}, {s(SO, 4)}, {s(sJD + j)} offen{ST}")
        k(f"s_add_u32 {s(sJD + j)}, {s(sJD + j)}, {KP}")
        vq.issue("st", f"buffer_store_dwordx4 {v(R + 4, 4)}, {v(vL16)}, {s(SO, 4)}, {s(sJD + j)} offen{ST}")

    for u in range(-1, NSTG - 1):
        k("s_barrier")
        if 8 <= u <= 16:
            stamp(k, u - 7)
        if NOJOB:
            continue
        if u == JOB0 - 2:
            for c in range(10):
                vq.issue("gw", f"buffer_load_dwordx4 {v(GW + 4 * c, 4)}, {v(vt[2])}, {s(SG, 4)}, 0 offen offset:{128 * c}")
        if u == JOB0 - 1:
            for c in range(10):
                vq.issue("gx", f"buffer_load_dwordx4 {v(76 + 4 * c, 4)}, {v(oJ[0])}, {s(SXG, 4)}, {s(sGX)} offen offset:{128 * c}")
        if 0 <= u - JOB0 - JOBL < 6:
            job_out(u - JOB0 - JOBL)
        if 0 <= u - JOB0 < 6:
            job_dma(u - JOB0)
        if u == JOB0 + 3:
            g = vG
            vq.wait("gx", "gw")
            for c in range(40):
                k(f"v_dot2c_f32_bf16 {v(vG)}, {v(76 + c)}, {v(GW + c)}")
            k(f"v_add_f32_dpp {v(g)}, {v(g)}, {v(g)} quad_perm:[1,0,3,2] row_mask:0xf bank_mask:0xf")
            k(f"v_add_f32_dpp {v(g)}, {v(g)}, {v(g)} quad_perm:[2,3,0,1] row_mask:0xf bank_mask:0xf")
            k(f"v_add_f32_dpp {v(g)}, {v(g)}, {v(g)} row_half_mirror row_mask:0xf bank_mask:0xf")
            k(f"s_mov_b32 {s(t1)}, {f32(-LOG2E)}")
            k(f"s_lshl_b32 {s(t0)}, {s(sRB)}, 4")
            k(f"s_add_u32 {s(t0)}, {s(t0)}, {s(sCG)}")
            k(f"s_lshl_b32 {s(t0)}, {s(t0)}, 5")
            k(f"s_add_u32 {s(t0)}, {s(t0)}, {WS_G}")
            k(f"v_cvt_pk_bf16_f32 {v(g)}, {v(g)}, {v(g)}")
            k(f"v_lshlrev_b32 {v(g)}, 16, {v(g)}")
            k(f"v_mul_f32 {v(g)}, {s(t1)}, {v(g)}")
            k(f"v_exp_f32 {v(g)}, {v(g)}")
            k(f"v_add_f32 {v(g)}, 1.0, {v(g)}")
            k(f"v_rcp_f32 {v(g)}, {v(g)}")
            k(f"v_cvt_pk_bf16_f32 {v(g)}, {v(g)}, {v(g)}")
            k(f"v_lshlrev_b32 {v(g)}, 16, {v(g)}")
            vq.issue("st", f"buffer_store_dword {v(g)}, {v(vGO)}, {s(SO, 4)}, {s(t0)} offen{ST}")
    assert JOB0 + JOBL + 5 < NSTG - 1
    endpgm(k, 0, NW)
    k.label("L_k1_end")
    k("s_endpgm")
    return name, 168, 60
```

```python
from common import *
from gen3 import WS_QKV, TT_QKV, WS_H, TT_H, WS_O, TT_O, WS_WT, KP, WS_B, WS_G, WS_TK, WS_SIZE, MF32, VDELTA
MH32 = "v_mfma_f32_32x32x16_f16"
BIAS = 0x3e50
E = lambda n, d: eval(os.environ.get(n, d))
STO = os.environ.get("K2_STO", "")
STB = os.environ.get("K2_STB", " sc1")
GLD = E("K2_GLD", "[(n, p, s_) for n in range(1, 7) for p in range(2) for s_ in ((0, 2) if n < 4 else (2,))][:18]")
PRIO = E("K2_PRIO", "2")
C1 = E("K2_C1", "[(0, 0, 0), (0, 0, 2), (0, 1, 0)]")
PFW = E("K2_PFW", "[None] * 5")
PFH = E("K2_PFH", "0")
XS = os.environ.get("K2_X", "")
STN = E("K2_STN", "(3, 7, 23)")
BASE = E("K2_BASE", "(0, 5, 9, 13)")
SLOT = (17, 21, 23)
GM_POS = E("K2_GM", "[(j, p, i) for j in range(4) for p, i in ((0, 21), (1, 17), (1, 21))]")
SW_POS = E("K2_SW", "[(0, 0, 5)] * 4")
SR_POS = E("K2_SR", "[(1, 0, 17)] * 8")
SA_POS = E("K2_SA", "[(2, 0, 17)] * 4 + [(3, 0, 17)] * 4")
DM_POS = E("K2_DM", "[(3, 0, 21), (3, 0, 23), (3, 1, 23)]")
NRING = E("K2_NRING", "2")
ZPAD = E("K2_ZPAD", "1")
PRP = E("K2_PRP", "(0, 0, 14)")


def gen_k2(k):
    name = "k2_kernel"
    TS = 3136
    CH = 8 * TS
    STG = NRING * CH
    FLG = STG + 65536
    SW_ = 8
    sW, sKH, sQG, sHEAD, sQB, sODD = 12, 13, 14, 15, 16, 17
    sKO, sKO2, sM0, sPASS, sWD, sWDc, sBO, sHO, sQO = 18, 19, 20, 21, 22, 23, 24, 25, 26
    t0, t1, t2, t3 = 28, 29, 30, 31
    sMASK, sTMP = 32, 34
    sCNT = 36
    sTT, sQO0, sOO = 37, 38, 39
    sKA, sKC = 40, 41
    kernel_head(k, name)
    k("s_cmp_ge_u32 s2, 256")
    k("s_cbranch_scc1 L_k2_end")
    diag_begin(k)
    k(f"s_load_dwordx2 s[4:5], s[0:1], {KA_WS}")
    ticket(k, "k2", KA_WS, WS_TK, 128, WS_SIZE, FLG + 32)
    va = Alloc(1, 256)
    vL = va(); vI = va(); vH = va(); vL16 = va()
    vt = [va() for _ in range(6)]
    vD = [va() for _ in range(3)]
    vK1 = va(); vK2 = va()
    vV = [va() for _ in range(4)]
    vWD = va(); vSW = va(); vSR = va(); vBS = va(); vQ2 = va(); vQ1 = va(); vXW = va(); vXR = va(); vPW = va()
    Q1 = [va(4) for _ in range(2)]
    Q2 = [va(2) for _ in range(2)]
    KF1 = va(4); KF2 = va(2)
    VF = [va(4) for _ in range(2)]
    P = [va(8, 4) for _ in range(2)]
    SS = [va(16, 4) for _ in range(2)]
    O = [va(16, 4) for _ in range(2)]
    HF = [va(4) for _ in range(12)]
    WDF = [va(4) for _ in range(6)]
    BA = va(16, 4)
    RT = va(16, 4)
    vPF = va()
    k(f"v_lshrrev_b32 {v(vt[0])}, 6, v0")
    k(f"v_and_b32 {v(vL)}, 63, v0")
    k(f"v_readfirstlane_b32 {s(sW)}, {v(vt[0])}")
    k(f"v_and_b32 {v(vI)}, 31, v0")
    k(f"v_bfe_u32 {v(vH)}, v0, 5, 1")
    k(f"v_lshlrev_b32 {v(vL16)}, 4, {v(vL)}")
    k(f"s_and_b32 {s(t0)}, s2, 7")
    k(f"s_lshl_b32 {s(t0)}, {s(t0)}, 2")
    k(f"s_lshr_b32 {s(t1)}, s2, 6")
    k(f"s_add_u32 {s(sHEAD)}, {s(t0)}, {s(t1)}")
    k(f"s_bfe_u32 {s(sQB)}, s2, 0x30003")
    k(f"s_lshr_b32 {s(sKH)}, {s(sW)}, 2")
    k(f"s_and_b32 {s(sQG)}, {s(sW)}, 3")
    k(f"s_and_b32 {s(sODD)}, {s(sHEAD)}, 1")
    k(f"s_lshr_b32 {s(t2)}, {s(sHEAD)}, 1")
    k(f"s_mul_i32 {s(t2)}, {s(t2)}, 5")
    k(f"s_lshl_b32 {s(t3)}, {s(sODD)}, 1")
    k(f"s_add_u32 {s(t2)}, {s(t2)}, {s(t3)}")
    k(f"s_lshl_b32 {s(t2)}, {s(t2)}, 9")
    k(f"s_lshl_b32 {s(t0)}, {s(sQB)}, 3")
    k(f"s_lshl_b32 {s(t1)}, {s(sQG)}, 1")
    k(f"s_add_u32 {s(t0)}, {s(t0)}, {s(t1)}")
    k(f"s_add_u32 {s(sTT)}, {s(t0)}, {s(sKH)}")
    k(f"s_mul_i32 {s(sQO)}, {s(sTT)}, {TT_QKV}")
    k(f"s_add_u32 {s(sQO)}, {s(sQO)}, {s(t2)}")
    k(f"s_xor_b32 {s(t0)}, {s(sTT)}, 1")
    k(f"s_mul_i32 {s(sQO0)}, {s(t0)}, {TT_QKV}")
    k(f"s_add_u32 {s(sQO0)}, {s(sQO0)}, {s(t2)}")
    k(f"s_mul_i32 {s(sOO)}, {s(sTT)}, {TT_O}")
    k(f"s_add_u32 {s(sOO)}, {s(sOO)}, {s(t2)}")
    k(f"s_add_u32 {s(sOO)}, {s(sOO)}, {WS_O}")
    k(f"s_lshl_b32 {s(t0)}, {s(sODD)}, 9")
    k(f"v_add_u32 {v(vQ1)}, {s(t0)}, {v(vL16)}")
    k(f"s_cmp_eq_u32 {s(sODD)}, 1")
    k(f"s_cselect_b32 {s(t1)}, 8, 1024")
    k(f"v_lshlrev_b32 {v(vt[0])}, 4, {v(vI)}")
    k(f"v_add_u32 {v(vQ2)}, {s(t1)}, {v(vt[0])}")
    k(f"s_mul_i32 {s(t0)}, {s(sW)}, {TT_QKV}")
    k(f"s_add_u32 {s(t0)}, {s(t0)}, {s(t2)}")
    k(f"s_add_u32 {s(t0)}, {s(t0)}, {80 * 512}")
    k(f"v_add_u32 {v(vD[0])}, {s(t0)}, {v(vL16)}")
    k(f"v_mul_u32_u24 {v(vt[1])}, {80 * 512 - 1024}, {v(vH)}")
    k(f"v_add3_u32 {v(vD[1])}, {v(vt[0])}, {v(vt[1])}, {s(t0)}")
    k(f"v_lshlrev_b32 {v(vt[1])}, 6, {v(vH)}")
    k(f"v_add_u32 {v(vt[1])}, 64, {v(vt[1])}")
    k(f"v_xor_b32 {v(vt[1])}, {v(vt[1])}, {v(vL16)}")
    k(f"s_add_u32 {s(t0)}, {s(t0)}, {80 * 512 + 512 - 2048}")
    k(f"v_add_u32 {v(vD[2])}, {s(t0)}, {v(vt[1])}")
    k(f"s_and_b32 {s(t0)}, {s(sW)}, 1")
    k(f"s_mul_i32 {s(t0)}, {s(t0)}, {4 * NRING}")
    k(f"s_lshr_b32 {s(t1)}, {s(sW)}, 1")
    k(f"s_add_u32 {s(t0)}, {s(t0)}, {s(t1)}")
    k(f"s_mul_i32 {s(sM0)}, {s(t0)}, {TS}")
    k(f"s_mov_b32 {s(sPASS)}, 0")
    k(f"s_mov_b32 {s(sKA)}, 0x82008200")
    k(f"s_mov_b32 {s(sKC)}, 0xb9a4b9a4")
    k("s_waitcnt lgkmcnt(0)")
    srd(k, SW_, 4, WS_SIZE)
    lq = Q(k, "lgkmcnt", 15)
    vq = Q(k, "vmcnt", 63)

    def dma_chunk(c):
        def a():
            k(f"s_add_u32 m0, {s(sM0)}, {(c % NRING) * 4 * TS}")
            k(f"s_mov_b32 {s(sKO)}, {c * 8 * TT_QKV}")
            vq.issue(f"c{c}", f"buffer_load_dwordx4 {v(vD[0])}, {s(SW_, 4)}, {s(sKO)} offen lds")
        out = [a]
        for j in (1, 2):
            out.append(lambda j=j: vq.issue(f"c{c}", f"buffer_load_dwordx4 {v(vD[j])}, {s(SW_, 4)}, {s(sKO)} offen offset:{1024 * j} lds"))
        return out

    for qt in range(2):
        so = sQO0 if qt == 0 else sQO
        vq.issue("q", f"buffer_load_dwordx4 {v(Q1[qt], 4)}, {v(vQ1)}, {s(SW_, 4)}, {s(so)} offen")
        vq.issue("q", f"buffer_load_dwordx2 {v(Q2[qt], 2)}, {v(vQ2)}, {s(SW_, 4)}, {s(so)} offen")
        if qt == 0:
            for f in dma_chunk(0):
                f()
    if C1 is None:
        for f in dma_chunk(1):
            f()
    k(f"s_and_b32 {s(t0)}, s2, 7")
    k(f"s_lshl_b32 {s(t0)}, {s(t0)}, 3")
    k(f"s_add_u32 {s(t0)}, {s(t0)}, {s(sQB)}")
    k(f"s_mul_i32 {s(sHO)}, {s(t0)}, {TT_H}")
    k(f"s_mul_i32 {s(t1)}, {s(sW)}, 12288")
    k(f"s_add_u32 {s(sHO)}, {s(sHO)}, {s(t1)}")
    k(f"s_add_u32 {s(sHO)}, {s(sHO)}, {WS_H}")
    k(f"s_lshr_b32 {s(t2)}, s2, 6")
    k(f"s_mul_i32 {s(sWD)}, {s(sW)}, {24 * KP}")
    k(f"s_mul_i32 {s(t1)}, {s(t2)}, 2560")
    k(f"s_add_u32 {s(sWD)}, {s(sWD)}, {s(t1)}")
    k(f"s_add_u32 {s(sWD)}, {s(sWD)}, {WS_WT + 80 * KP}")
    k(f"v_mul_u32_u24 {v(vt[0])}, {KP}, {v(vH)}")
    k(f"v_lshl_add_u32 {v(vWD)}, {v(vI)}, 4, {v(vt[0])}")
    k(f"s_lshl_b32 {s(t0)}, {s(t0)}, 3")
    k(f"s_add_u32 {s(t0)}, {s(t0)}, {s(sW)}")
    k(f"s_mul_i32 {s(sBO)}, {s(t0)}, {4 * 1280}")
    k(f"s_mul_i32 {s(t1)}, {s(t2)}, 320")
    k(f"s_add_u32 {s(sBO)}, {s(sBO)}, {s(t1)}")
    k(f"s_add_u32 {s(sBO)}, {s(sBO)}, {WS_B}")

    if PFH:
        k(f"s_mul_i32 {s(t1)}, {s(t2)}, {192 * 128}")
        k(f"s_mul_i32 {s(t3)}, {s(sW)}, {24 * 128 - 12288}")
        k(f"s_add_u32 {s(t1)}, {s(t1)}, {s(t3)}")
        k(f"s_add_u32 {s(t1)}, {s(t1)}, {s(sHO)}")
        k(f"v_min_u32 {v(vt[1])}, 23, {v(vL)}")
        k(f"v_lshlrev_b32 {v(vt[1])}, 7, {v(vt[1])}")
        vq.issue("pf", f"buffer_load_dword {v(vPF)}, {v(vt[1])}, {s(SW_, 4)}, {s(t1)} offen")
    if any(x is not None for x in PFW):
        k(f"v_min_u32 {v(vt[1])}, 11, {v(vL)}")
        k(f"v_lshrrev_b32 {v(vt[2])}, 2, {v(vt[1])}")
        k(f"s_mul_i32 {s(t1)}, {s(sQB)}, 3")
        k(f"v_add_u32 {v(vt[2])}, {s(t1)}, {v(vt[2])}")
        k(f"v_mul_u32_u24 {v(vt[2])}, {KP}, {v(vt[2])}")
        k(f"v_and_b32 {v(vt[1])}, 3, {v(vt[1])}")
        k(f"v_lshl_add_u32 {v(vPW)}, {v(vt[1])}, 7, {v(vt[2])}")

    def wd_pf(t):
        vq.issue("pf", f"buffer_load_dword {v(vPF)}, {v(vPW)}, {s(SW_, 4)}, {s(sWD)} offen offset:{512 * t}")

    def wd_load(i):
        if i >= 60:
            return
        t, ks = divmod(i, 12)
        k(f"s_add_u32 {s(sWDc)}, {s(sWD)}, {ks * 2 * KP}")
        vq.issue(f"wd{i}", f"buffer_load_dwordx4 {v(WDF[i % 6], 4)}, {v(vWD)}, {s(SW_, 4)}, {s(sWDc)} offen offset:{512 * t}")

    def h_load(j):
        if j % 4 == 0 and j:
            k(f"s_add_u32 {s(sHO)}, {s(sHO)}, 4096")
        vq.issue(f"h{j}", f"buffer_load_dwordx4 {v(HF[j], 4)}, {v(vL16)}, {s(SW_, 4)}, {s(sHO)} offen offset:{1024 * (j % 4)}")
    gl = []
    for j in range(12):
        gl.append(lambda j=j: h_load(j))
        if j < 6:
            gl.append(lambda j=j: wd_load(j))
    assert len(GLD) == 18 and GLD == sorted(GLD)
    glpos = {}
    for pos, f in zip(GLD, gl):
        glpos.setdefault(pos, []).append(f)
    if C1 is not None:
        for pos, f in zip(C1, dma_chunk(1)):
            glpos.setdefault(pos, []).insert(0, f)
    for t_, pos in enumerate(PFW):
        if pos is not None:
            glpos.setdefault(pos, []).append(lambda t_=t_: wd_pf(t_))
    for f in glpos.pop(-1, []):
        f()
    k(f"s_mul_i32 {s(t3)}, {s(sKH)}, {4 * NRING * TS}")
    k(f"s_lshl_b32 {s(t0)}, {s(sODD)}, 9")
    k(f"s_add_u32 {s(t0)}, {s(t0)}, {s(t3)}")
    k(f"v_add_u32 {v(vK1)}, {s(t0)}, {v(vL16)}")
    k(f"v_cmp_eq_u32 {s(sMASK, 2)}, 1, {v(vH)}")
    k(f"v_mov_b32 {v(vt[1])}, 3072")
    k(f"v_cndmask_b32 {v(vK2)}, {v(vQ2)}, {v(vt[1])}, {s(sMASK, 2)}")
    k(f"v_add_u32 {v(vK2)}, {s(t3)}, {v(vK2)}")
    k(f"v_and_b32 {v(vt[0])}, 1, {v(vL)}")
    k(f"v_add_u32 {v(vt[0])}, {s(sODD)}, {v(vt[0])}")
    k(f"v_bfe_u32 {v(vt[1])}, {v(vL)}, 1, 1")
    k(f"v_bfe_u32 {v(vt[2])}, {v(vL)}, 4, 1")
    k(f"v_cmp_eq_u32 vcc, 1, {v(vt[2])}")
    k(f"s_lshl_b32 {s(t0)}, {s(sODD)}, 1")
    k(f"s_sub_u32 {s(t0)}, 2, {s(t0)}")
    k(f"v_mov_b32 {v(vt[3])}, {s(t0)}")
    k(f"v_cndmask_b32 {v(vt[0])}, {v(vt[0])}, {v(vt[3])}, vcc")
    k(f"v_mov_b32 {v(vt[3])}, {s(sODD)}")
    k(f"v_cndmask_b32 {v(vt[1])}, {v(vt[1])}, {v(vt[3])}, vcc")
    k(f"v_bfe_u32 {v(vt[3])}, {v(vL)}, 2, 2")
    k(f"v_lshl_add_u32 {v(vt[3])}, {v(vH)}, 2, {v(vt[3])}")
    k(f"v_lshlrev_b32 {v(vt[4])}, 2, {v(vt[0])}")
    k(f"v_xor_b32 {v(vt[3])}, {v(vt[3])}, {v(vt[4])}")
    k(f"v_lshlrev_b32 {v(vt[3])}, 4, {v(vt[3])}")
    k(f"v_lshl_add_u32 {v(vt[3])}, {v(vt[1])}, 3, {v(vt[3])}")
    k(f"v_lshl_add_u32 {v(vt[3])}, {v(vt[0])}, 9, {v(vt[3])}")
    k(f"v_and_b32 {v(vt[4])}, 19, {v(vL)}")
    k(f"v_cmp_lt_u32 vcc, 16, {v(vt[4])}")
    if ZPAD:
        k(f"v_and_b32 {v(vt[5])}, 2, {v(vL)}")
        k(f"v_mad_i32_i24 {v(vt[5])}, {v(vt[5])}, -4, {v(vt[2])}")
        k(f"v_add_u32 {v(vt[5])}, {3072 - 1536 + 15}, {v(vt[5])}")
    else:
        k(f"v_mov_b32 {v(vt[5])}, {3072 - 1536}")
    k(f"s_add_u32 {s(t0)}, {s(t3)}, 1536")
    for q in range(4):
        k(f"v_xor_b32 {v(vt[4])}, {128 * q}, {v(vt[3])}")
        k(f"v_cndmask_b32 {v(vt[4])}, {v(vt[4])}, {v(vt[5])}, vcc")
        k(f"v_add_u32 {v(vV[q])}, {s(t0)}, {v(vt[4])}")
    k(f"v_min_u32 {v(vt[0])}, {8 * NRING - 1}, {v(vL)}")
    k(f"v_mul_u32_u24 {v(vt[0])}, {TS}, {v(vt[0])}")
    k(f"v_mov_b32 {v(RT)}, 0x3f803f80")
    k(f"v_mov_b32 {v(RT + 1)}, 0x3f803f80")
    k(f"v_mov_b32 {v(RT + 2)}, 0x3c00")
    k(f"v_mov_b32 {v(RT + 6)}, {BIAS}")
    for r in range(3, 6):
        k(f"v_mov_b32 {v(RT + r)}, 0")
    lq.issue("one", f"ds_write_b128 {v(vt[0])}, {v(RT, 4)} offset:3072")
    lq.issue("one", f"ds_write_b64 {v(vt[0])}, {v(RT + 4, 2)} offset:3088")
    k(f"v_lshlrev_b32 {v(vt[0])}, 5, {v(vH)}")
    k(f"v_xor_b32 {v(vt[0])}, {v(vt[0])}, {v(vL16)}")
    k(f"s_lshl_b32 {s(t0)}, {s(sW)}, 12")
    k(f"s_add_u32 {s(t0)}, {s(t0)}, {STG}")
    k(f"v_add_u32 {v(vSW)}, {s(t0)}, {v(vt[0])}")
    k(f"v_lshrrev_b32 {v(vt[0])}, 4, {v(vL)}")
    k(f"s_lshl_b32 {s(t0)}, {s(sW)}, 2")
    k(f"v_add_u32 {v(vt[1])}, {s(t0)}, {v(vt[0])}")
    k(f"v_and_b32 {v(vt[2])}, 14, {v(vL)}")
    k(f"v_xor_b32 {v(vt[1])}, {v(vt[1])}, {v(vt[2])}")
    k(f"v_lshlrev_b32 {v(vt[1])}, 4, {v(vt[1])}")
    k(f"v_lshl_add_u32 {v(vt[1])}, {v(vt[2])}, 8, {v(vt[1])}")
    k(f"v_and_b32 {v(vt[2])}, 1, {v(vL)}")
    k(f"v_lshl_add_u32 {v(vt[1])}, {v(vt[2])}, 3, {v(vt[1])}")
    k(f"v_add_u32 {v(vSR)}, {STG}, {v(vt[1])}")
    k(f"v_mul_u32_u24 {v(vt[0])}, 1280, {v(vt[0])}")
    k(f"v_and_b32 {v(vt[2])}, 15, {v(vL)}")
    k(f"v_lshl_add_u32 {v(vBS)}, {v(vt[2])}, 2, {v(vt[0])}")
    k(f"s_lshl_b32 {s(t0)}, {s(sW)}, 12")
    k(f"s_add_u32 {s(t0)}, {s(t0)}, {STG + 32768}")
    k(f"v_add_u32 {v(vXW)}, {s(t0)}, {v(vL16)}")
    k(f"s_xor_b32 {s(t0)}, {s(sW)}, 4")
    k(f"s_lshl_b32 {s(t0)}, {s(t0)}, 12")
    k(f"s_add_u32 {s(t0)}, {s(t0)}, {STG + 32768}")
    k(f"v_add_u32 {v(vXR)}, {s(t0)}, {v(vL16)}")
    for g in range(1, 4):
        k(f"v_xor_b32 {v(vt[g])}, {64 * g}, {v(vSW)}")
    if PRIO == 2:
        k("s_setprio 3")
    if PRIO == 1:
        k(f"s_setprio 0")
        k(f"s_cmp_eq_u32 {s(sKH)}, 0")
        k("s_cbranch_scc1 L_k2_np")
        k(f"s_setprio {PRIO}")
        k.label("L_k2_np")
    stamp(k, 1, lq)
    waits(k, lg=lq.all(), vm=vq.need("q", "c0"))
    for qt in range(2):
        for r in range(2):
            k(f"v_cndmask_b32 {v(Q2[qt] + r)}, {v(Q2[qt] + r)}, {v(RT + 6 - r)}, {s(sMASK, 2)}")
    k("s_barrier")
    stamp(k, 2, lq)

    def toff(n):
        c, j = divmod(n, 4)
        return ((c % NRING) * 4 + j) * TS

    def kread(n):
        lq.issue("k", f"ds_read_b128 {v(KF1, 4)}, {v(vK1)} offset:{toff(n)}")
        lq.issue("k", f"ds_read_b64 {v(KF2, 2)}, {v(vK2)} offset:{toff(n)}")

    def vread(n):
        for q in range(4):
            lq.issue(f"v{q // 2}", f"ds_read_b64_tr_b16 {v(VF[q // 2] + 2 * (q % 2), 2)}, {v(vV[q])} offset:{toff(n)}")

    def qk(qt):
        if "q" in XS:
            return ["s_nop 0", "s_nop 0"]
        return [f"{MF32} {v(SS[qt], 16)}, {v(KF1, 4)}, {v(Q1[qt], 4)}, 0",
                f"v_mfma_f32_32x32x8_bf16 {v(SS[qt], 16)}, {v(KF2, 2)}, {v(Q2[qt], 2)}, {v(SS[qt], 16)}"]

    def pv(qt, first=False, mf=MH32):
        if "p" in XS and not first:
            return ["s_nop 0", "s_nop 0"]
        return [f"{mf} {v(O[qt], 16)}, {v(VF[t], 4)}, {v(P[qt] + 4 * t, 4)}, " + ("0" if first and t == 0 else v(O[qt], 16))
                for t in range(2)]

    def softmax_ops(qt):
        ops = []
        S = SS[qt]
        for i in range(10):
            if i < 8:
                ops.append(f"v_cvt_pknorm_u16_f32 {v(S + 2 * i)}, {v(S + 2 * i)}, {v(S + 2 * i + 1)}")
            if 1 <= i < 9:
                c = i - 1
                ops.append(f"v_pk_add_u16 {v(S + 2 * c + 1)}, {v(S + 2 * c)}, {s(sKA)} clamp")
            if i >= 2:
                c = i - 2
                ops.append(f"v_pk_fma_f16 {v(P[qt] + c)}, {v(S + 2 * c + 1)}, {s(sKC)}, {v(S + 2 * c)}")
        return ops

    def phase(valu, ins):
        for i, t in enumerate(valu):
            for x in ins.get(i, []):
                if callable(x):
                    x()
                else:
                    k(x)
            k(t)

    def gm(i):
        t, ks = divmod(i, 12)

        def f():
            waits(k, vm=vq.need(f"wd{i}", f"h{ks}"), lg=(lq.need("sw") if ks == 0 else None))
            if "m" not in XS:
                k(f"{MF32} {v(BA, 16)}, {v(WDF[i % 6], 4)}, {v(HF[ks], 4)}, " + ("0" if ks == 0 else v(BA, 16)))
            if "d" not in XS:
                wd_load(i + 6)
        return f

    def stg_write(t, g):
        def f():
            if "w" not in XS:
                lq.issue("sw", f"ds_write_b128 {v(vt[g] if g else vSW)}, {v(BA + 4 * g, 4)} offset:{(t % 2) * 32768 + 1024 * g}")
        return f

    def stg_read(t, p):
        def f():
            if "r" not in XS:
                lq.issue(f"sr{p}", f"ds_read_b64 {v(RT + 2 * p, 2)}, {v(vSR)} offset:{(t % 2) * 32768 + 4096 * p}")
        return f

    def stg_sum(t, p):
        def f():
            if "a" in XS:
                return
            if p < 7:
                lq.wait(f"sr{p + 1}")
                for r in range(2):
                    k(f"v_add_f32 {v(RT + r)}, {v(RT + r)}, {v(RT + 2 * p + 2 + r)}")
            else:
                k(f"v_cvt_pk_bf16_f32 {v(RT)}, {v(RT)}, {v(RT + 1)}")
                vq.issue("st", f"buffer_store_dword {v(RT)}, {v(vBS)}, {s(SW_, 4)}, {s(sBO)} offen offset:{64 * t}{STB}")
        return f

    def wo_prefetch():
        k(f"s_lshr_b32 {s(t0)}, s2, 3")
        k(f"s_lshl_b32 {s(t0)}, {s(t0)}, 3")
        k(f"s_add_u32 {s(t0)}, {s(t0)}, {s(sW)}")
        k(f"s_mul_i32 {s(t0)}, {s(t0)}, {25 * 128}")
        k(f"s_add_u32 {s(t0)}, {s(t0)}, {WS_WT}")
        k(f"v_min_u32 {v(vt[0])}, 24, {v(vL)}")
        k(f"v_lshlrev_b32 {v(vt[0])}, 7, {v(vt[0])}")
        vq.issue("pf", f"buffer_load_dword {v(vPF)}, {v(vt[0])}, {s(SW_, 4)}, {s(t0)} offen")

    kread(0)
    lq.wait("k")
    for t in qk(0):
        k(t)
    NT = 32
    X = {}

    def put(n, ph, idx, f):
        X.setdefault((n, ph), {}).setdefault(idx, []).append(f)
    for (n_, p_, s_), fs in sorted(glpos.items()):
        for f in fs:
            put(n_, p_, SLOT[s_], f)
    for tg in range(5):
        for i, (j, ph, idx) in enumerate(GM_POS):
            put(4 * (tg + 1) + j, ph, idx, gm(12 * tg + i))
        for g, (j, ph, idx) in enumerate(SW_POS):
            put(4 * (tg + 2) + j, ph, idx, stg_write(tg, g))
        for p_, (j, ph, idx) in enumerate(SR_POS):
            put(4 * (tg + 3) + j, ph, idx, stg_read(tg, p_))
        for p_, (j, ph, idx) in enumerate(SA_POS):
            put(4 * (tg + 3) + j, ph, idx, stg_sum(tg, p_))
    for c in range(2, 8):
        for f, (j, ph, idx) in zip(dma_chunk(c), DM_POS):
            put(4 * (c - 2) + j, ph, idx, f)
    put(25, 1, 23, wo_prefetch)
    if PRIO == 2:
        for n in range(NT):
            if n % 4 == 3:
                if n < 31:
                    put(n, 0, BASE[3], "s_setprio 3")
            else:
                put(n + PRP[0], PRP[1], PRP[2], f"s_setprio {2 - n % 4}")

    def merge(base, extra):
        out = {i: list(l) for i, l in base.items()}
        for i, l in extra.items():
            out.setdefault(i, []).extend(l)
        return out
    for n in range(NT):
        it, j = divmod(n, 4)
        q = qk(1)
        p = pv(1, n == 1) if n > 0 else [None, None]
        kr = []
        if n + 1 < NT:
            if j == 3:
                kr.append(lambda it=it: waits(k, lg=(lq.all() if NRING == 2 else lq.need("sw")), vm=vq.need(f"c{it + 1}")))
                kr.append("s_barrier")
            kr.append(lambda n=n: kread(n + 1))
        s0 = [p[0]] if p[0] else []
        s1 = ([p[1]] if p[1] else []) + [lambda n=n: vread(n)]
        phase(softmax_ops(0), merge(dict(zip(BASE, [s0, s1, [q[0]], [q[1]] + kr])), X.get((n, 0), {})))
        p = pv(0, n == 0)
        q = qk(0)
        sq = [[lambda: lq.wait("k"), q[0]], [q[1]]] if n + 1 < NT else [[], []]
        phase(softmax_ops(1), merge(dict(zip(BASE, [[lambda: lq.wait("v0"), p[0]], [lambda: lq.wait("v1"), p[1]]] + sq)), X.get((n, 1), {})))
        if DIAG and n in STN:
            stamp(k, (3, 4, 5, 7, 8, 9)[STN.index(n)], lq)
    p = pv(1)
    k(p[0])
    for r in range(3):
        lq.issue("x", f"ds_write_b128 {v(vXW)}, {v(O[0] + 4 * r, 4)} offset:{1024 * r}")
    lq.issue("x", f"ds_write_b32 {v(vXW)}, {v(O[0] + 12)} offset:3072")
    k(p[1])
    stamp(k, 6, lq)
    k.label("L_k2_mg")
    k(f"s_lshl_b32 {s(t1)}, {s(sODD)}, 9")
    k(f"s_add_u32 {s(t1)}, {s(t1)}, {s(sOO)}")
    k(f"s_mov_b32 {s(t2)}, {f32(2.0 ** 60)}")
    k(f"s_mov_b32 {s(t3)}, {f32(64.0)}")
    k("s_waitcnt lgkmcnt(0)")
    k("s_barrier")
    k(f"ds_read_b32 {v(SS[0] + 12)}, {v(vXR)} offset:3072")
    for r in range(3):
        k(f"ds_read_b128 {v(SS[0] + 4 * r, 4)}, {v(vXR)} offset:{1024 * r}")
    X = O[1]
    k("s_waitcnt lgkmcnt(3)")
    k(f"v_add_f32 {v(X + 12)}, {v(X + 12)}, {v(SS[0] + 12)}")
    k(f"v_rcp_f32 {v(vt[1])}, {v(X + 12)}")
    for g in range(3):
        k(f"s_waitcnt lgkmcnt({2 - g})")
        for r in range(4 * g, 4 * g + 4):
            k(f"v_add_f32 {v(X + r)}, {v(X + r)}, {v(SS[0] + r)}")
        for r in range(4 * g, 4 * g + 4):
            k(f"v_mul_f32 {v(X + r)}, {v(X + r)}, {v(vt[1])}")
        for c in range(2 * g, 2 * g + 2):
            k(f"v_cvt_pk_bf16_f32 {v(P[0] + c)}, {v(X + 2 * c)}, {v(X + 2 * c + 1)}")
        if g == 1:
            k(f"buffer_store_dwordx4 {v(P[0], 4)}, {v(vL16)}, {s(SW_, 4)}, {s(t1)} offen{STO}")
    k("s_mov_b64 exec, 0xffffffff")
    k(f"buffer_store_dwordx2 {v(P[0] + 4, 2)}, {v(vQ2)}, {s(SW_, 4)}, {s(sOO)} offen{STO}")
    k("s_mov_b64 exec, -1")
    k(f"s_cmp_lg_u32 {s(sPASS)}, 0")
    k("s_cbranch_scc1 L_k2_fin")
    for r in range(12):
        k(f"v_fma_f32 {v(X + 12)}, {v(X + r)}, 0, {v(X + 12)}")
    k(f"v_max3_f32 {v(X + 13)}, |{v(X)}|, |{v(X + 1)}|, |{v(X + 2)}|")
    k(f"v_max3_f32 {v(X + 14)}, |{v(X + 3)}|, |{v(X + 4)}|, |{v(X + 5)}|")
    k(f"v_max3_f32 {v(X + 13)}, |{v(X + 6)}|, |{v(X + 7)}|, {v(X + 13)}")
    k(f"v_max_f32 {v(X + 13)}, {v(X + 13)}, {v(X + 14)}")
    k(f"v_cmp_nle_f32 vcc, {v(X + 12)}, {s(t2)}")
    k(f"v_cmp_nge_f32 {s(sTMP, 2)}, {v(X + 12)}, {s(t3)}")
    k(f"s_or_b64 {s(sTMP, 2)}, vcc, {s(sTMP, 2)}")
    k(f"v_cmp_nle_f32 vcc, {f32(2.0 ** -16)}, {v(X + 13)}")
    k(f"s_or_b64 vcc, vcc, {s(sTMP, 2)}")
    k(f"s_cmp_lg_u64 vcc, 0")
    k(f"s_cselect_b32 {s(t0)}, 1, 0")
    k(f"s_lshl_b32 {s(t1)}, {s(sW)}, 2")
    k(f"s_add_u32 {s(t1)}, {s(t1)}, {FLG}")
    k(f"v_mov_b32 {v(vt[0])}, {s(t0)}")
    k(f"v_mov_b32 {v(vt[1])}, {s(t1)}")
    k(f"ds_write_b32 {v(vt[1])}, {v(vt[0])}")
    k(f"v_and_b32 {v(vt[4])}, 7, {v(vL)}")
    k(f"v_lshlrev_b32 {v(vt[4])}, 2, {v(vt[4])}")
    k(f"v_add_u32 {v(vt[4])}, {FLG}, {v(vt[4])}")
    k("s_waitcnt lgkmcnt(0)")
    k("s_barrier")
    k(f"ds_read_b32 {v(vt[0])}, {v(vt[4])}")
    k("s_waitcnt lgkmcnt(0)")
    k(f"v_cmp_ne_u32 vcc, 0, {v(vt[0])}")
    k("s_cbranch_vccnz L_k2_fb")
    k.label("L_k2_fin")
    endpgm(k, 1, 8)

    k.label("L_k2_fb")
    MX = [RT, RT + 1]
    k("s_waitcnt vmcnt(0) lgkmcnt(0)")
    k(f"s_mov_b32 {s(sPASS)}, 1")
    for qt in range(2):
        k(f"v_mov_b32 {v(MX[qt])}, 0xff800000")
    k(f"v_min_u32 {v(vt[0])}, {8 * NRING - 1}, {v(vL)}")
    k(f"v_mul_u32_u24 {v(vt[0])}, {TS}, {v(vt[0])}")
    k(f"v_mov_b32 {v(vt[1])}, 0x3f80")
    k(f"ds_write_b32 {v(vt[0])}, {v(vt[1])} offset:3080")
    k(f"v_mul_u32_u24 {v(vt[0])}, {VDELTA >> 8}, {v(vH)}")
    k(f"v_lshl_add_u32 {v(vD[1])}, {v(vt[0])}, 8, {v(vD[1])}")
    k(f"v_add_u32 {v(vD[2])}, {VDELTA}, {v(vD[2])}")
    k(f"s_mov_b32 {s(t0)}, {f32(65535.0 / 1024.0)}")

    def sweep(lab, body):
        k(f"s_mov_b32 {s(sCNT)}, 0")
        k(f"s_mov_b32 {s(sKO)}, 0")
        k.label(lab)
        k("s_waitcnt lgkmcnt(0)")
        k("s_barrier")
        k(f"s_mov_b32 m0, {s(sM0)}")
        for j in range(3):
            k(f"buffer_load_dwordx4 {v(vD[j])}, {s(SW_, 4)}, {s(sKO)} offen offset:{1024 * j} lds")
        k(f"s_add_u32 {s(sKO)}, {s(sKO)}, {8 * TT_QKV}")
        k("s_waitcnt vmcnt(0)")
        k("s_barrier")
        for j in range(4):
            kread(j)
            vread(j)
            k("s_waitcnt lgkmcnt(0)")
            for qt in range(2):
                for t in qk(qt):
                    k(t)
            for qt in range(2):
                body(qt)
        k(f"s_add_u32 {s(sCNT)}, {s(sCNT)}, 1")
        k(f"s_cmp_lt_u32 {s(sCNT)}, 8")
        k(f"s_cbranch_scc1 {lab}")

    def bmax(qt):
        for r in range(0, 16, 2):
            k(f"v_max3_f32 {v(MX[qt])}, {v(MX[qt])}, {v(SS[qt] + r)}, {v(SS[qt] + r + 1)}")

    def bexp(qt):
        for r in range(16):
            k(f"v_sub_f32 {v(SS[qt] + r)}, {v(SS[qt] + r)}, {v(MX[qt])}")
        for r in range(16):
            k(f"v_mul_f32 {v(SS[qt] + r)}, {s(t0)}, {v(SS[qt] + r)}")
        for r in range(16):
            k(f"v_exp_f32 {v(SS[qt] + r)}, {v(SS[qt] + r)}")
        for c in range(8):
            k(f"v_cvt_pk_bf16_f32 {v(P[qt] + c)}, {v(SS[qt] + 2 * c)}, {v(SS[qt] + 2 * c + 1)}")
        for t in pv(qt, False, MF32):
            k(t)
    sweep("L_k2_mx", bmax)
    k(f"ds_write_b32 {v(vXW)}, {v(MX[1])}")
    k(f"ds_write_b32 {v(vXW)}, {v(MX[0])} offset:4")
    k("s_waitcnt lgkmcnt(0)")
    k("s_barrier")
    k(f"ds_read_b64 {v(KF2, 2)}, {v(vXR)}")
    for qt in range(2):
        for r in range(16):
            k(f"v_mov_b32 {v(O[qt] + r)}, 0")
    k("s_waitcnt lgkmcnt(0)")
    for qt in range(2):
        m = MX[qt]
        k(f"v_max_f32 {v(m)}, {v(m)}, {v(KF2 + qt)}")
        k(f"v_mov_b32 {v(vt[0])}, {v(m)}")
        k(f"v_permlane32_swap_b32 {v(vt[0])}, {v(m)}")
        k(f"v_max_f32 {v(m)}, {v(m)}, {v(vt[0])}")
    sweep("L_k2_ex", bexp)
    for r in range(3):
        k(f"ds_write_b128 {v(vXW)}, {v(O[0] + 4 * r, 4)} offset:{1024 * r}")
    k(f"ds_write_b32 {v(vXW)}, {v(O[0] + 12)} offset:3072")
    k("s_branch L_k2_mg")
    k.label("L_k2_end")
    k("s_endpgm")
    return name, va.hi, 52
```

```python
from common import *
from gen3 import WS_QKV, TT_QKV, WS_H, TT_H, WS_O, TT_O, WS_WT, KP, WS_B, WS_G, WS_TK, WS_SIZE, MF32
E = lambda n, d: eval(os.environ.get(n, d))
ROT3 = E("K3_ROT", "1")
LEAD3 = E("K3_LEAD", "2")
ST3 = os.environ.get("K3_ST", "")
EPOS = E("K3_EPOS", "0")
AFIRST = E("K3_AFIRST", "1")


def gen_k3(k):
    name = "k3_kernel"
    SWS, SOUT = 8, 12
    sW, sRT, sCT, sSO, sAO, sM = 16, 17, 18, 19, 20, 21
    t0, t1, t2, t3 = 24, 25, 26, 27
    kernel_head(k, name)
    k("s_cmp_ge_u32 s2, 256")
    k("s_cbranch_scc1 L_k3_end")
    diag_begin(k)
    k(f"s_load_dwordx2 s[4:5], s[0:1], {KA_WS}")
    k(f"s_load_dwordx2 s[6:7], s[0:1], {KA_OUT}")
    ticket(k, "k3", KA_WS, WS_TK + 4096, 128, WS_SIZE, 102400)
    va = Alloc(1, 256)
    vL = va()
    vt = [va() for _ in range(6)]
    vD = [va() for _ in range(5)]
    vA = va(); vBx = [va() for _ in range(6)]; vG = va(); vO = va(); vO2 = va()
    AF = [va(4) for _ in range(20)]
    BF = [[va(4) for _ in range(5)] for _ in range(2)]
    ACC = [va(4) for _ in range(5)]
    BB = va(12, 4)
    k(f"v_lshrrev_b32 {v(vt[0])}, 6, v0")
    k(f"v_and_b32 {v(vL)}, 63, v0")
    k(f"v_readfirstlane_b32 {s(sW)}, {v(vt[0])}")
    k(f"s_and_b32 {s(t0)}, s2, 7")
    k(f"s_lshl_b32 {s(t0)}, {s(t0)}, 2")
    k(f"s_lshr_b32 {s(t1)}, s2, 6")
    k(f"s_add_u32 {s(sRT)}, {s(t0)}, {s(t1)}")
    k(f"s_bfe_u32 {s(sCT)}, s2, 0x30003")
    k(f"v_lshrrev_b32 {v(vt[0])}, 4, {v(vL)}")
    k(f"v_and_b32 {v(vt[1])}, 15, {v(vL)}")
    k(f"v_lshlrev_b32 {v(vt[2])}, 4, {v(vt[1])}")
    k(f"v_lshl_add_u32 {v(vA)}, {v(vt[0])}, 9, {v(vt[2])}")
    k(f"s_lshl_b32 {s(t0)}, {s(sRT)}, 1")
    k(f"s_lshr_b32 {s(t1)}, {s(sW)}, 1")
    k(f"s_add_u32 {s(t0)}, {s(t0)}, {s(t1)}")
    k(f"s_mul_i32 {s(sAO)}, {s(t0)}, {TT_O}")
    k(f"s_and_b32 {s(t1)}, {s(sW)}, 1")
    k(f"s_lshl_b32 {s(t1)}, {s(t1)}, 8")
    k(f"s_add_u32 {s(sAO)}, {s(sAO)}, {s(t1)}")
    k(f"s_add_u32 {s(sAO)}, {s(sAO)}, {WS_O}")
    k(f"v_and_b32 {v(vt[3])}, 12, {v(vL)}")
    k(f"v_add_u32 {v(vt[3])}, {v(vt[3])}, {v(vt[1])}")
    k(f"s_mul_i32 {s(t0)}, {s(sCT)}, 1280")
    for j in range(5):
        lo = 64 * j // 80
        cut = 80 * (lo + 1) - 64 * j
        k(f"v_cmp_gt_u32 vcc, {cut}, {v(vL)}")
        k(f"v_mov_b32 {v(vt[4])}, {64 * j - 80 * (lo + 1)}")
        k(f"v_mov_b32 {v(vt[5])}, {(lo + 1) * KP}")
        k(f"v_mov_b32 {v(vD[j])}, {64 * j - 80 * lo}")
        k(f"v_cndmask_b32 {v(vt[4])}, {v(vt[4])}, {v(vD[j])}, vcc")
        k(f"v_add_u32 {v(vt[4])}, {v(vt[4])}, {v(vL)}")
        k(f"v_mov_b32 {v(vD[j])}, {lo * KP}")
        k(f"v_cndmask_b32 {v(vt[5])}, {v(vt[5])}, {v(vD[j])}, vcc")
        k(f"v_cndmask_b32 {v(vD[j])}, {4 * ((lo + 1) & 1)}, {4 * (lo & 1)}, vcc")
        k(f"v_cmp_gt_u32 vcc, 64, {v(vt[4])}")
        k(f"v_cndmask_b32 {v(vD[j])}, 0, {v(vD[j])}, vcc")
        k(f"v_xor_b32 {v(vt[4])}, {v(vt[4])}, {v(vD[j])}")
        k(f"v_lshl_add_u32 {v(vD[j])}, {v(vt[4])}, 4, {v(vt[5])}")
    k(f"v_mul_u32_u24 {v(vt[4])}, 1280, {v(vt[0])}")
    k(f"v_lshl_add_u32 {v(vBx[2])}, {v(vt[1])}, 4, {v(vt[4])}")
    k(f"v_lshl_add_u32 {v(vt[4])}, {v(vt[3])}, 4, {v(vt[4])}")
    k(f"v_and_b32 {v(vt[5])}, 1, {v(vt[0])}")
    k(f"v_lshl_add_u32 {v(vBx[0])}, {v(vt[5])}, 6, {v(vt[4])}")
    k(f"v_xor_b32 {v(vBx[1])}, 64, {v(vBx[0])}")
    for i in range(3):
        k(f"v_add_u32 {v(vBx[3 + i])}, {12 * 5120}, {v(vBx[i])}")
    k(f"s_mul_i32 {s(sSO)}, {s(sW)}, {4 * KP}")
    k(f"s_add_u32 {s(sSO)}, {s(sSO)}, {s(t0)}")
    k(f"s_add_u32 {s(sSO)}, {s(sSO)}, {WS_WT}")
    k(f"s_mul_i32 {s(sM)}, {s(sW)}, 5120")
    sG = 22
    k(f"s_cmp_ge_u32 {s(sCT)}, 5")
    k(f"s_cselect_b32 {s(t1)}, 5, 0")
    k(f"s_sub_u32 {s(sG)}, {s(sCT)}, {s(t1)}")
    if not ROT3:
        k(f"s_mov_b32 {s(sG)}, 0")
    k(f"s_lshl_b32 {s(t0)}, {s(sRT)}, 2")
    k(f"s_add_u32 {s(t0)}, {s(t0)}, {s(sW)}")
    k(f"s_lshl_b32 {s(t0)}, {s(t0)}, 4")
    k(f"v_add_u32 {v(vt[2])}, {s(t0)}, {v(vt[1])}")
    k(f"v_lshlrev_b32 {v(vt[3])}, 2, {v(vt[2])}")
    k(f"v_mul_u32_u24 {v(vt[2])}, 1280, {v(vt[2])}")
    k(f"v_lshl_add_u32 {v(vO)}, {v(vt[0])}, 4, {v(vt[2])}")
    k(f"v_lshl_add_u32 {v(vO2)}, {v(vt[0])}, 3, {v(vt[2])}")
    sOC, sBC, sGC = 28, 29, 30
    k(f"s_mul_i32 {s(sOC)}, {s(sCT)}, 160")
    k(f"s_add_u32 {s(sBC)}, {s(sOC)}, {WS_B}")
    k(f"s_mov_b32 {s(sGC)}, {WS_G}")
    k("s_waitcnt lgkmcnt(0)")
    srd(k, SWS, 4, WS_SIZE)
    lq = Q(k, "lgkmcnt", 15)
    vq = Q(k, "vmcnt", 63)

    def group(G):
        def pre():
            k(f"s_mul_i32 {s(t0)}, {s(sG)}, {16 * KP}")
            k(f"s_add_u32 {s(t0)}, {s(t0)}, {s(sSO)}")
            k(f"s_lshl_b32 {s(t1)}, {s(sG)}, 13")
            k(f"s_add_u32 {s(t1)}, {s(t1)}, {s(sAO)}")
            k(f"s_add_u32 {s(t2)}, {s(t1)}, 4096")
            k(f"s_add_u32 {s(sG)}, {s(sG)}, 1")
            k(f"s_cmp_eq_u32 {s(sG)}, 5")
            k(f"s_cselect_b32 {s(sG)}, 0, {s(sG)}")

        def bl(j):
            k(f"s_add_u32 m0, {s(sM)}, {G * 20480 + j * 1024}")
            vq.issue(f"g{G}", f"buffer_load_dwordx4 {v(vD[j])}, {s(SWS, 4)}, {s(t0)} offen lds")

        def al(q):
            vq.issue(f"g{G}", f"buffer_load_dwordx4 {v(AF[4 * G + q], 4)}, {v(vA)}, {s(SWS, 4)}, {s(t1 if q < 2 else t2)} offen offset:{2048 * (q % 2)}")
        A = [lambda q=q: al(q) for q in range(4)]
        B = [lambda j=j: bl(j) for j in range(5)]
        out = (A + B) if AFIRST else (B + A)
        f0 = out[0]
        out[0] = lambda: (pre(), f0())
        if G == EPOS:
            out += [lambda: vq.issue("e", f"buffer_load_dword {v(vG)}, {v(vt[3])}, {s(SWS, 4)}, {s(sGC)} offen"),
                    lambda: vq.issue("e", f"buffer_load_dwordx4 {v(BB, 4)}, {v(vO)}, {s(SWS, 4)}, {s(sBC)} offen"),
                    lambda: vq.issue("e", f"buffer_load_dwordx4 {v(BB + 4, 4)}, {v(vO)}, {s(SWS, 4)}, {s(sBC)} offen offset:64"),
                    lambda: vq.issue("e", f"buffer_load_dwordx2 {v(BB + 8, 2)}, {v(vO2)}, {s(SWS, 4)}, {s(sBC)} offen offset:128")]
        return out
    for G in range(LEAD3):
        for f in group(G):
            f()
    srd(k, SOUT, 6, S_ * D_ * 2)
    stamp(k, 1, lq)

    def b_reads(ks):
        st = ks % 2
        r, o = (0, ks * 5120) if ks < 12 else (3, (ks - 12) * 5120)
        return [(f"b{st}{t}", f"ds_read_b128 {v(BF[st][t], 4)}, {v(vBx[r + (0, 1, 0, 1, 2)[t]])} offset:{o + 512 * (t // 2)}") for t in range(5)]

    T = va(20)
    pre = [lambda: vq.wait("e"), f"v_sub_f32 {v(vt[0])}, 1.0, {v(vG)}"]
    for c in range(10):
        pre.append(f"v_lshlrev_b32 {v(T + 2 * c)}, 16, {v(BB + c)}")
        pre.append(f"v_and_b32 {v(T + 2 * c + 1)}, 0xffff0000, {v(BB + c)}")
    for c in range(20):
        pre.append(f"v_mul_f32 {v(T + c)}, {v(T + c)}, {v(vt[0])}")
    vq.wait("g0")
    k("s_barrier")
    stamp(k, 2, lq)
    for r in b_reads(0):
        lq.issue(*r)
    fill = []
    for ks in range(20):
        st = ks % 2
        if ks % 4 == 0:
            G = ks // 4 + LEAD3
            fill = group(G) if G < 5 else []
            if ks == 12:
                fill = fill + pre
        nxt = b_reads(ks + 1) if ks + 1 < 20 else []
        for t in range(5):
            if t == 0 and (ks + 1) % 4 == 0:
                while fill:
                    x = fill.pop(0)
                    x() if callable(x) else k(x)
            if t == 0 and (ks + 1) % 4 == 0 and nxt:
                waits(k, lg=lq.need(f"b{st}{t}"), vm=vq.need(f"g{(ks + 1) // 4}"))
            else:
                lq.wait(f"b{st}{t}")
            k(f"v_mfma_f32_16x16x32_bf16 {v(ACC[t], 4)}, {v(BF[st][t], 4)}, {v(AF[ks], 4)}, " + ("0" if ks == 0 else v(ACC[t], 4)))
            if t == 0 and (ks + 1) % 4 == 0 and nxt:
                k("s_barrier")
            if nxt:
                lq.issue(*nxt.pop(0))
            for _ in range(3 if ks >= 12 else 1):
                if fill:
                    x = fill.pop(0)
                    x() if callable(x) else k(x)
    stamp(k, 3, lq)
    for c in range(20):
        k(f"v_fmac_f32 {v(T + c)}, {v(ACC[c // 4] + c % 4)}, {v(vG)}")
        if c % 2:
            k(f"v_cvt_pk_bf16_f32 {v(BB + c // 2)}, {v(T + c - 1)}, {v(T + c)}")
        if c == 7:
            k(f"buffer_store_dwordx4 {v(BB, 4)}, {v(vO)}, {s(SOUT, 4)}, {s(sOC)} offen{ST3}")
        if c == 15:
            k(f"buffer_store_dwordx4 {v(BB + 4, 4)}, {v(vO)}, {s(SOUT, 4)}, {s(sOC)} offen offset:64{ST3}")
    k(f"buffer_store_dwordx2 {v(BB + 8, 2)}, {v(vO2)}, {s(SOUT, 4)}, {s(sOC)} offen offset:128{ST3}")
    endpgm(k, 2, 4)
    k.label("L_k3_end")
    k("s_endpgm")
    return name, va.hi, 52
```

```python
from common import *
from k1v7 import gen_k1
from k2v3 import gen_k2, NRING
from k3v2 import gen_k3
if __name__ == "__main__":
    launches = [
        "; @launch kernel=k1_kernel grid=(256,1,1) block=(768,1,1) lds=163840",
        f"; @launch kernel=k2_kernel grid=(256,1,1) block=(512,1,1) lds={NRING * 25088 + 65600}",
        "; @launch kernel=k3_kernel grid=(256,1,1) block=(256,1,1) lds=102464",
    ]
    write(sys.argv[1] if len(sys.argv) > 1 else f"cdna_kernels/{NAME}.s", launches, (gen_k1, gen_k2, gen_k3))
```

```python
from common import *
from gen3 import WS_QKV, TT_QKV, WS_H, TT_H, WS_WT, KP, WS_G, WS_TK, WS_SIZE, MF32, GK1, GK2, gelu_ops, VDELTA, WS_O
QS16 = QSCALE * 1024.0 / 65535.0

ST = os.environ.get("ST_FLAG", " sc1")
E = lambda n, d: eval(os.environ.get(n, d))
TAG = (0, 2)
SENT = E("SENT", "[]")
STS = os.environ.get("STS_FLAG", " sc1")
STV = os.environ.get("STV_FLAG", " sc1")
LD_INIT = E("LD_INIT", "{-2: ['x0', 's0', 's1'], -1: ['x1', 's2'], 0: ['s3', 's4'], 1: ['x2', 's5']}")
LDX = os.environ.get("LDX", "")
LDW = os.environ.get("LDW", "")
LEAD = E("LEAD", "4")
ROT = E("ROT", "1")
XROT = E("XROT", "None")
RTAB = E("RTAB", "None")
JOB0 = E("JOB0", "9")
JOBL = E("JOBL", "5")
JD = E("JD", "[JOB0 + j for j in range(6)]")
JO = E("JO", "[JOB0 + JOBL + j for j in range(6)]")
GWU = E("GWU", "JOB0 - 2")
GXU = E("GXU", "JOB0 - 1")
GCU = E("GCU", "[JOB0 + 3] * 4")
VBAL = E("VBAL", "0")
NOJOB = E("X_NOJOB", "0")
NOLD = E("X_NOLD", "0")
LAG = 3
NW = 12
PFD = E("PFD", "7")
PFMIN = E("PFMIN", "11")
PFD0 = E("PFD0", "3")
PFR = E("PFR", "0.5")
PFSL = E("PFSL", "0")
PFU = E("PFU", "{1: -2, 2: -2, 3: -1}")
LDP = os.environ.get("LDP", "")


def gen_k1(k):
    name = "k1_kernel"
    SLW, NSW = 20480, 5
    XB, SLX, NSX = 102400, 16384, 3
    SIDE = XB + NSX * SLX
    NSTG = 20 + LAG
    pA, pB, pWO, pWS = 4, 8, 16, 18
    sW, sRB, sCG, sCP = 20, 21, 22, 23
    t0, t1, t2, t3 = 24, 25, 26, 27
    vt = [2 + i for i in range(8)]
    vL = 1

    kernel_head(k, name)
    k("s_cmp_ge_u32 s2, 256")
    k("s_cbranch_scc1 L_k1_end")
    diag_begin(k)
    k(f"s_load_dwordx4 {s(pA, 4)}, s[0:1], {KA_X}")
    k(f"s_load_dwordx8 {s(pB, 8)}, s[0:1], {KA_WG}")
    k(f"s_load_dwordx2 {s(pWO, 2)}, s[0:1], {KA_WO}")
    k(f"s_load_dwordx2 {s(pWS, 2)}, s[0:1], {KA_WS}")
    ticket(k, "k1", KA_DBG, 0, 8, 256, SIDE + 2048 * 5)
    k(f"v_lshrrev_b32 {v(vt[0])}, 6, v0")
    k(f"v_and_b32 {v(vL)}, 63, v0")
    k(f"v_readfirstlane_b32 {s(sW)}, {v(vt[0])}")
    k(f"s_bfe_u32 {s(t0)}, s2, 0x10002")
    k(f"s_lshl_b32 {s(t0)}, {s(t0)}, 3")
    k(f"s_bfe_u32 {s(t1)}, s2, 0x30003")
    k(f"s_add_u32 {s(sRB)}, {s(t0)}, {s(t1)}")
    k(f"s_and_b32 {s(t0)}, s2, 3")
    k(f"s_lshl_b32 {s(t0)}, {s(t0)}, 2")
    k(f"s_lshr_b32 {s(t1)}, s2, 6")
    k(f"s_add_u32 {s(sCG)}, {s(t0)}, {s(t1)}")
    k(f"s_lshr_b32 {s(sCP)}, {s(sCG)}, 1")
    k(f"s_cmp_ge_u32 {s(sW)}, 8")
    k("s_cbranch_scc1 L_k1_aux")

    def subtile_cols(sC):
        k(f"s_mul_i32 {s(t0)}, {s(sCP)}, 384")
        k(f"s_lshl_b32 {s(t1)}, {s(sCP)}, 9")
        k(f"s_add_u32 {s(t2)}, {s(t0)}, 256")
        k(f"s_add_u32 {s(t3)}, {s(t0)}, 128")
        if VBAL:
            k(f"s_cmp_ge_u32 {s(sCP)}, 6")
            k(f"s_cselect_b32 {s(t1)}, 7, 4")
            k(f"s_add_u32 {s(sC[2])}, {s(sCP)}, {s(t1)}")
            k(f"s_lshl_b32 {s(sC[2])}, {s(sC[2])}, 8")
            k(f"s_add_u32 {s(sC[3])}, {s(sC[2])}, 128")
            k(f"s_lshl_b32 {s(t1)}, {s(sCP)}, 7")
            k(f"s_add_u32 {s(sC[4])}, {s(t1)}, {20 * 128}")
        else:
            k(f"s_add_u32 {s(sC[2])}, {s(t1)}, 128")
            k(f"s_add_u32 {s(sC[3])}, {s(t1)}, 256")
            k(f"s_add_u32 {s(sC[4])}, {s(t1)}, 384")
        k(f"s_bitcmp1_b32 {s(sCG)}, 0")
        k(f"s_cselect_b32 {s(sC[0])}, {s(t2)}, {s(t0)}")
        k(f"s_cselect_b32 {s(sC[2])}, {s(sC[2])}, {s(t3)}")
        k(f"s_cselect_b32 {s(sC[3])}, {s(sC[3])}, {s(t3)}")
        k(f"s_cselect_b32 {s(sC[4])}, {s(sC[4])}, {s(t1)}")
        k(f"s_mov_b32 {s(sC[1])}, {s(sC[0])}")

    def subtile_oob(sC):
        if VBAL:
            k(f"s_or_b32 {s(t0)}, {s(sCG)}, 2")
            k(f"s_cmp_eq_u32 {s(t0)}, 15")
            k(f"s_cselect_b32 {s(sC[4])}, {OOB}, {s(sC[4])}")
            return
        k(f"s_cmp_eq_u32 {s(sCG)}, 15")
        k(f"s_cselect_b32 {s(sC[3])}, {OOB}, {s(sC[3])}")
        k(f"s_cselect_b32 {s(sC[4])}, {OOB}, {s(sC[4])}")

    def subtile_srds(SR, sST):
        srd(k, SR[0], pB, D_ * F_ * 2)
        srd(k, SR[1], pB + 2, D_ * F_ * 2)
        srd(k, SR[4], pA + 2, D_ * 3 * D_ * 2)
        k(f"s_bitcmp1_b32 {s(sCG)}, 0")
        for j in (2, 3):
            for r in range(3):
                k(f"s_cselect_b32 {s(SR[j] + r)}, {s(SR[4] + r)}, {s(SR[j - 2] + r)}")
            k(f"s_mov_b32 {s(SR[j] + 3)}, 0x00020000")
        k(f"s_cselect_b32 {s(sST)}, 768, 0")
        k(f"s_add_u32 {s(sST)}, {s(sST)}, 3072")

    lq = Q(k, "lgkmcnt", 12)
    vq = Q(k, "vmcnt", 63)
    sRG, sCH = 28, 29
    SO = 32
    sC = [36, 37, 38, 39, 40]
    sSC = [41, 42, 43]
    sK2 = 44
    sTG = [45, 46, 47]
    sLO, sHI = 48, 49
    vL16, vK1 = 10, 11
    vW = [12, 13]
    vX = [0, 14, 15, 9]
    WF = [[16 + 20 * b + 4 * j for j in range(5)] for b in range(2)]
    XF = [56 + 4 * i for i in range(8)]
    ACC = [88 + 16 * j for j in range(5)]
    vI, vH = vt[6], vt[5]
    k(f"s_and_b32 {s(sRG)}, {s(sW)}, 3")
    k(f"s_lshr_b32 {s(sCH)}, {s(sW)}, 2")
    k(f"v_and_b32 {v(vI)}, 31, v0")
    k(f"v_bfe_u32 {v(vH)}, v0, 5, 1")
    k(f"v_lshlrev_b32 {v(vL16)}, 4, {v(vL)}")
    k(f"s_lshl_b32 {s(t0)}, {s(sRG)}, 12")
    k(f"s_add_u32 {s(t0)}, {s(t0)}, {XB}")
    k(f"v_lshlrev_b32 {v(vt[0])}, 7, {v(vI)}")
    k(f"v_bfe_u32 {v(vt[1])}, {v(vI)}, 1, 3")
    k(f"v_xor_b32 {v(vt[1])}, {v(vt[1])}, {v(vH)}")
    k(f"v_lshlrev_b32 {v(vt[1])}, 4, {v(vt[1])}")
    k(f"v_add3_u32 {v(vX[0])}, {v(vt[0])}, {v(vt[1])}, {s(t0)}")
    for ks in range(1, 4):
        k(f"v_xor_b32 {v(vX[ks])}, {32 * ks}, {v(vX[0])}")
    k(f"v_bfe_u32 {v(vt[0])}, {v(vL)}, 2, 2")
    k(f"v_lshl_add_u32 {v(vt[1])}, {v(vH)}, 3, {v(vt[0])}")
    k(f"v_bfe_u32 {v(vt[2])}, {v(vL)}, 4, 1")
    k(f"v_and_b32 {v(vt[3])}, 1, {v(vL)}")
    k(f"v_bfe_u32 {v(vt[4])}, {v(vL)}, 1, 1")
    k(f"v_lshlrev_b32 {v(vt[4])}, 3, {v(vt[4])}")
    k(f"v_lshl_add_u32 {v(vt[2])}, {v(vt[2])}, 1, {v(vt[3])}")
    k(f"v_bfe_u32 {v(vt[3])}, {v(vL)}, 3, 1")
    k(f"v_xor_b32 {v(vt[3])}, {s(sCH)}, {v(vt[3])}")
    k(f"v_lshl_add_u32 {v(vt[3])}, {v(vt[3])}, 2, {v(vt[2])}")
    k(f"v_lshl_add_u32 {v(vt[3])}, {v(vt[3])}, 4, {v(vt[4])}")
    k(f"v_lshl_add_u32 {v(vW[0])}, {v(vt[1])}, 7, {v(vt[3])}")
    k(f"v_add_u32 {v(vW[1])}, 65536, {v(vW[0])}")
    k(f"v_mov_b32 {v(vK1)}, {f32(GK1)}")
    k(f"s_mov_b32 {s(sK2)}, {f32(GK2)}")
    k(f"s_mov_b32 {s(sLO)}, {f32(2.0 ** -13)}")
    k(f"s_mov_b32 {s(sHI)}, {f32(65000.0)}")
    subtile_cols(sC)
    for j in (2, 3, 4):
        k(f"s_cmp_lt_u32 {s(sC[j])}, 1280")
        k(f"s_cselect_b32 {s(sSC[j - 2])}, {f32(QS16)}, 1.0")
        k(f"s_cselect_b32 {s(sTG[j - 2])}, -2, -1")
        k(f"s_cmp_ge_u32 {s(sC[j])}, 2560")
        k(f"s_cselect_b32 {s(sSC[j - 2])}, 0, {s(sSC[j - 2])}")
    for j in range(5):
        k(f"s_lshl_b32 {s(sC[j])}, {s(sC[j])}, 5")
    k(f"s_lshl_b32 {s(t0)}, {s(sRB)}, 2")
    k(f"s_add_u32 {s(t0)}, {s(t0)}, {s(sRG)}")
    k(f"s_lshl_b32 {s(t3)}, {s(sCH)}, 11")
    k(f"s_mul_i32 {s(t1)}, {s(t0)}, {TT_QKV}")
    k(f"s_add_u32 {s(t1)}, {s(t1)}, {s(t3)}")
    k(f"s_mul_i32 {s(t2)}, {s(t0)}, {TT_H}")
    k(f"s_add_u32 {s(t2)}, {s(t2)}, {s(t3)}")
    k(f"s_add_u32 {s(t2)}, {s(t2)}, {WS_H}")
    k(f"s_add_u32 {s(sC[0])}, {s(sC[0])}, {s(t2)}")
    k(f"s_bitcmp1_b32 {s(sCG)}, 0")
    k(f"s_cselect_b32 {s(t2)}, {s(t1)}, {s(t2)}")
    k(f"s_add_u32 {s(sC[2])}, {s(sC[2])}, {s(t2)}")
    k(f"s_add_u32 {s(sC[3])}, {s(sC[3])}, {s(t1)}")
    k(f"s_add_u32 {s(sC[4])}, {s(sC[4])}, {s(t1)}")
    subtile_oob(sC)
    k("s_waitcnt lgkmcnt(0)")
    srd(k, SO, pWS, WS_SIZE)

    NS = 2 * NSTG

    def tiles(n):
        return ([2, 3, 4] if n >= 2 * LAG else []) + ([0, 1] if n < 40 else [])

    def wread(n, j):
        out = []
        for e in range(2):
            a_ = (n // 2 % NSW) * SLW + j * 4096 + (n % 2) * 2048 + e * 512
            out.append((f"w{n}_{j}", f"ds_read_b64_tr_b16 {v(WF[n % 2][j] + 2 * e, 2)}, {v(vW[a_ >> 16])} offset:{a_ & 0xffff}"))
        return out

    def xread(n):
        return [(f"x{n}", f"ds_read_b128 {v(XF[n % 8], 4)}, {v(vX[n % 4])} offset:{(n // 4 % NSX) * SLX}")]

    def gelu_tile(jg, ju, Z, so):
        ge = []
        for hf in range(2):
            G, U = ACC[jg] + 8 * hf, ACC[ju] + 8 * hf
            ge += gelu_ops(G, U, Z, 8, sK2, vK1)
            ge += [f"v_cvt_pk_bf16_f32 {v(G + c)}, {v(G + 2 * c)}, {v(G + 2 * c + 1)}" for c in range(4)]
            ge.append(f"buffer_store_dwordx4 {v(G, 4)}, {v(vL16)}, {s(SO, 4)}, {s(so)} offen offset:{1024 * hf}{ST}")
        return ge

    def qkv_tile(j):
        ep = []
        for hf in range(2):
            A = ACC[j] + 8 * hf
            ep += [f"v_mul_f32 {v(A + r)}, {s(sSC[j - 2])}, {v(A + r)}" for r in range(8)]
            ep += [f"v_cvt_pk_bf16_f32 {v(A + c)}, {v(A + 2 * c)}, {v(A + 2 * c + 1)}" for c in range(4)]
            ep += [f"v_and_b32 {v(A + c)}, {s(sTG[j - 2])}, {v(A + c)}" for c in TAG]
            ep.append(f"buffer_store_dwordx4 {v(A, 4)}, {v(vL16)}, {s(SO, 4)}, {s(sC[j])} offen offset:{1024 * hf}{ST}")
        return ep

    def v_tile(j, tag):
        ep = [f"s_add_u32 {s(sSC[j - 2])}, {s(sC[j])}, {VDELTA}"]
        for hf in range(2):
            A, T = ACC[j] + 8 * hf, XF[2 * (j - 2) + hf]
            ep += [f"v_cvt_pk_f16_f32 {v(T + c)}, {v(A + 2 * c)}, {v(A + 2 * c + 1)}" for c in range(4)]
            ep.append(f"buffer_store_dwordx4 {v(T, 4)}, {v(vL16)}, {s(SO, 4)}, {s(sC[j])} offen offset:{1024 * hf}{ST}")
        A, M = ACC[j], XF[6]
        for op, m in (("v_minimum3_f32", M), ("v_maximum3_f32", M + 1)):
            ep.append(f"{op} {v(m)}, |{v(A)}|, |{v(A + 1)}|, |{v(A + 1)}|")
        for r in range(2, 16, 2):
            for op, m in (("v_minimum3_f32", M), ("v_maximum3_f32", M + 1)):
                ep.append(f"{op} {v(m)}, |{v(A + r)}|, |{v(A + r + 1)}|, {v(m)}")
        ep.append(f"v_cmp_nge_f32 vcc, {v(M)}, {s(sLO)}")
        ep.append(f"v_cmp_nle_f32 {s(50, 2)}, {v(M + 1)}, {s(sHI)}")
        ep.append(f"s_or_b64 vcc, vcc, {s(50, 2)}")
        ep.append(f"s_cbranch_scc0 L_k1_w{tag}")
        for hf in range(2):
            A = ACC[j] + 8 * hf
            ep += [f"v_cvt_pk_bf16_f32 {v(A + c)}, {v(A + 2 * c)}, {v(A + 2 * c + 1)}" for c in range(4)]
            ep.append(f"buffer_store_dwordx4 {v(A, 4)}, {v(vL16)}, {s(SO, 4)}, {s(sSC[j - 2])} offen offset:{1024 * hf}{STV}")
        return ep

    def qkv_any(j, tag):
        k(f"s_cmp_eq_u32 {s(sSC[j - 2])}, 0")
        k(f"s_cbranch_scc1 L_k1_v{tag}")
        for t in qkv_tile(j):
            k(t)
        k(f"s_branch L_k1_w{tag}")
        k.label(f"L_k1_v{tag}")
        for t in v_tile(j, tag):
            k(t)
        k.label(f"L_k1_w{tag}")

    stamp(k, 1)
    k("s_barrier")
    stamp(k, 2)
    seq = [(n, j) for n in range(NS) for j in tiles(n)]
    idx = {x: i for i, x in enumerate(seq)}
    first = {n: idx[(n, tiles(n)[0])] for n in range(NS)}
    att = {}
    for n, j in seq:
        lo = -1 if n < 2 else first[n - 2]
        if j == 0:
            e_ = max(lo, idx.get((n - 8 + 2 * LAG, 4), -2) + 1)
            att.setdefault(e_, []).extend(xread(n))
        e_ = max(lo, idx.get((n - 2, j), -2) + 1)
        att.setdefault(e_, []).extend(wread(n, j))
    for r in att[-1]:
        lq.issue(*r)
    fq = []
    for i, (n, j) in enumerate(seq):
        if i == first[40] + 1:
            fq = gelu_tile(0, 1, WF[0][0], sC[0])
            fn = (len(fq) + 16) // 17
        xs = n if j < 2 else n - 2 * LAG
        lq.wait(f"w{n}_{j}", f"x{xs}")
        k(f"{MF32} {v(ACC[j], 16)}, {v(WF[n % 2][j], 4)}, {v(XF[xs % 8], 4)}, " + ("0" if xs == 0 else v(ACC[j], 16)))
        if i == first[n] and n % 2 == 0 and n + 2 < NS:
            k("s_barrier")
        for r in att.get(i, []):
            lq.issue(*r)
        for _ in range(fn if fq else 0):
            if fq:
                k(fq.pop(0))
    assert not fq
    stamp(k, 7, lq)
    k(f"s_bitcmp1_b32 {s(sCG)}, 0")
    k("s_cbranch_scc1 L_k1_odd")
    ge = gelu_tile(2, 3, WF[0][0], sC[2])
    for t in ge[:37]:
        k(t)
    qkv_any(4, "e")
    for t in ge[37:]:
        k(t)
    endpgm(k, 0, NW)
    k.label("L_k1_odd")
    for j in (2, 3, 4):
        qkv_any(j, f"o{j}")
    endpgm(k, 0, NW)

    k.label("L_k1_aux")
    k("s_setprio 3")
    k(f"s_cmp_eq_u32 {s(sW)}, 10")
    k("s_cbranch_scc1 L_k1_job")
    SR = [28, 32, 36, 40, 44]
    SX = 48
    sC = [52, 53, 54, 55, 56]
    sST, sXO, sLW = 57, 58, 59
    subtile_cols(sC)
    subtile_oob(sC)

    k(f"s_cmp_eq_u32 {s(sW)}, 11")
    k("s_cbranch_scc1 L_k1_pf")
    vq.q = []
    oX = [10, 11, 12, 13]
    oF = [14, 15]
    oQ = [16, 17]
    oM = [18, 19]
    sS32 = 3
    k(f"s_and_b32 {s(sLW)}, {s(sW)}, 1")
    k(f"v_lshrrev_b32 {v(vt[0])}, 3, {v(vL)}")
    k(f"v_and_b32 {v(vt[1])}, 7, {v(vL)}")
    k(f"v_lshrrev_b32 {v(vt[2])}, 4, {v(vL)}")
    k(f"s_lshl_b32 {s(t0)}, {s(sRB)}, 1")
    k(f"s_add_u32 {s(t0)}, {s(t0)}, {s(sLW)}")
    k(f"s_mul_i32 {s(sXO)}, {s(t0)}, {64 * 1280}")
    k(f"v_mul_u32_u24 {v(vt[3])}, 1280, {v(vt[0])}")
    k(f"v_xor_b32 {v(vt[4])}, {v(vt[1])}, {v(vt[2])}")
    k(f"v_lshl_add_u32 {v(oX[0])}, {v(vt[4])}, 4, {v(vt[3])}")
    k(f"v_xor_b32 {v(oX[1])}, 64, {v(oX[0])}")
    k(f"v_add_u32 {v(oX[1])}, {8 * 1280 - 1024}, {v(oX[1])}")
    k(f"v_add_u32 {v(oX[2])}, {16 * 1280 - 2048}, {v(oX[0])}")
    k(f"v_add_u32 {v(oX[3])}, {16 * 1280 - 2048}, {v(oX[1])}")
    k(f"v_and_b32 {v(vt[2])}, 1, {v(vt[2])}")
    k(f"v_lshlrev_b32 {v(vt[2])}, 2, {v(vt[2])}")
    k(f"v_xor_b32 {v(vt[2])}, {v(vt[2])}, {v(vt[1])}")
    k(f"v_lshlrev_b32 {v(vt[2])}, 4, {v(vt[2])}")
    k(f"s_lshl_b32 {s(t0)}, {s(sLW)}, 4")
    k(f"v_add_u32 {v(vt[3])}, {s(t0)}, {v(vt[0])}")
    k(f"v_mul_u32_u24 {v(vt[4])}, 3072, {v(vt[3])}")
    k(f"v_add_u32 {v(oF[0])}, {v(vt[4])}, {v(vt[2])}")
    k(f"v_add_u32 {v(oF[1])}, {8 * 3072 - 1024}, {v(oF[0])}")
    k(f"v_mul_u32_u24 {v(vt[4])}, 3840, {v(vt[3])}")
    k(f"v_add_u32 {v(oQ[0])}, {v(vt[4])}, {v(vt[2])}")
    k(f"v_add_u32 {v(oQ[1])}, {8 * 3840 - 1024}, {v(oQ[0])}")
    k(f"s_bitcmp1_b32 {s(sCG)}, 0")
    k("s_cselect_b64 vcc, -1, 0")
    for q in range(2):
        k(f"v_cndmask_b32 {v(oM[q])}, {v(oF[q])}, {v(oQ[q])}, vcc")
    k(f"s_lshl_b32 {s(t3)}, {s(sLW)}, 13")
    k(f"s_lshl_b32 {s(sLW)}, {s(sLW)}, 11")
    k("s_waitcnt lgkmcnt(0)")
    srd(k, SX, pA, S_ * D_ * 2)
    subtile_srds(SR, sST)
    sKX, sKA, sKB = 3, 20, 23
    k(f"s_and_b32 {s(t0)}, {s(sCG)}, 3")
    k(f"s_mul_i32 {s(t0)}, {s(t0)}, 5")
    k(f"s_add_u32 {s(t0)}, {s(t0)}, 1")
    k(f"s_lshr_b32 {s(t0)}, {s(t0)}, 1")
    k(f"s_and_b32 {s(t1)}, {s(sRB)}, 7")
    if RTAB:
        k(f"s_lshl_b32 {s(t1)}, {s(t1)}, 2")
        k(f"s_lshr_b32 {s(t1)}, {sum(x << (4 * i) for i, x in enumerate(RTAB))}, {s(t1)}")
        k(f"s_and_b32 {s(t1)}, {s(t1)}, 15")
    k(f"s_add_u32 {s(t0)}, {s(t0)}, {s(t1)}")
    k(f"s_cmp_ge_u32 {s(t0)}, 10")
    k(f"s_cselect_b32 {s(t1)}, 10, 0")
    k(f"s_sub_u32 {s(t0)}, {s(t0)}, {s(t1)}")
    if XROT:
        if not ROT:
            k(f"s_mov_b32 {s(t0)}, 0")
        k(f"s_and_b32 {s(t1)}, s2, 7")
        k(f"s_lshl_b32 {s(t1)}, {s(t1)}, 2")
        k(f"s_lshr_b32 {s(t1)}, {sum(x << (4 * i) for i, x in enumerate(XROT))}, {s(t1)}")
        k(f"s_and_b32 {s(t1)}, {s(t1)}, 15")
        k(f"s_add_u32 {s(t0)}, {s(t0)}, {s(t1)}")
        k(f"s_cmp_ge_u32 {s(t0)}, 10")
        k(f"s_cselect_b32 {s(t1)}, 10, 0")
        k(f"s_sub_u32 {s(t0)}, {s(t0)}, {s(t1)}")
    elif not ROT:
        k(f"s_mov_b32 {s(t0)}, 0")
    elif ROT > 1:
        tab = sum((((i % ROT) * 10 + ROT // 2) // ROT if i % ROT else 0) << (4 * i) for i in range(11))
        k(f"s_and_b32 {s(t0)}, {s(sCG)}, 3")
        k(f"s_and_b32 {s(t1)}, {s(sRB)}, 7")
        k(f"s_add_u32 {s(t0)}, {s(t0)}, {s(t1)}")
        k(f"s_lshl_b32 {s(t0)}, {s(t0)}, 2")
        k(f"s_mov_b32 {s(pWO)}, {tab & 0xffffffff}")
        k(f"s_mov_b32 {s(pWO + 1)}, {tab >> 32}")
        k(f"s_lshr_b64 {s(pWO, 2)}, {s(pWO, 2)}, {s(t0)}")
        k(f"s_and_b32 {s(t0)}, {s(pWO)}, 15")
    k(f"s_lshl_b32 {s(sKX)}, {s(t0)}, 7")
    k(f"s_lshl_b32 {s(sKA)}, {s(t0)}, 6")
    k(f"s_lshl_b32 {s(sKB)}, {s(t0)}, 6")

    def adv(r, step, lim):
        k(f"s_add_u32 {s(r)}, {s(r)}, {step}")
        k(f"s_cmp_ge_u32 {s(r)}, {lim}")
        k(f"s_cselect_b32 {s(r)}, 0, {s(r)}")
    OFF = [oF, oF, oM, oM, oQ]
    if E("LD_SLEEP", "0"):
        k(f"s_sleep {E('LD_SLEEP', '0')}")

    def fill(nm):
        if nm[0] == "x":
            c = int(nm[1:])
            k(f"s_add_u32 {s(t0)}, {s(sXO)}, {s(sKX)}")
            for hq in range(2):
                k(f"s_add_u32 m0, {s(t3)}, {XB + (c % NSX) * SLX + hq * 4096}")
                if hq:
                    k(f"s_add_u32 {s(t0)}, {s(t0)}, {32 * 1280}")
                else:
                    adv(sKX, 128, 1280)
                for q in range(4):
                    vq.issue(nm, f"buffer_load_dwordx4 {v(oX[q])}, {s(SX, 4)}, {s(t0)} offen offset:{1024 * q}{LDX} lds")
        else:
            t = int(nm[1:])
            for j in tiles(2 * t):
                if (j < 2) != (nm[0] == "a"):
                    continue
                k(f"s_add_u32 m0, {s(sLW)}, {(t % NSW) * SLW + j * 4096}")
                st = {0: "3072", 1: "3072", 2: s(sST), 3: s(sST), 4: "3840"}[j]
                k(f"s_mul_i32 {s(t0)}, {s(sKA if j < 2 else sKB)}, {st}")
                k(f"s_add_u32 {s(t0)}, {s(t0)}, {s(sC[j])}")
                for q in range(2):
                    vq.issue(nm, f"buffer_load_dwordx4 {v(OFF[j][q])}, {s(SR[j], 4)}, {s(t0)} offen offset:{1024 * q}{LDW} lds")
                if j in (1, 4):
                    adv(sKA if j < 2 else sKB, 32, 640)

    def expand(l):
        out = []
        for x in l:
            if x[0] == "s":
                i = int(x[1:])
                out += ([f"b{i}"] if i >= LAG else []) + ([f"a{i}"] if i < 20 else [])
            else:
                out.append(x)
        return out
    sched = {u: expand(l) for u, l in LD_INIT.items()}
    done = set(x for l in sched.values() for x in l)
    for u in range(max(sched) + 1, NSTG):
        l = []
        if (u + LEAD) % 2 == 0 and (u + LEAD) // 2 < 10:
            l.append(f"x{(u + LEAD) // 2}")
        if u + LEAD < NSTG:
            l.append(f"s{u + LEAD}")
        l = expand(l)
        sched[u] = [x for x in l if x not in done]
        done |= set(l)
    assert done == {f"x{c}" for c in range(10)} | set(expand([f"s{t}" for t in range(NSTG)])), sorted(done)
    for c_ in "abx":
        order = [x for u in sorted(sched) for x in sched[u] if x[0] == c_]
        assert order == sorted(order, key=lambda x: int(x[1:]))
    for u, l in sched.items():
        for x in l:
            i = int(x[1:])
            if x[0] == "x":
                assert u < 2 * i - 1 and (i < NSX or u >= 2 * (i - NSX) + 2), (u, x)
            else:
                assert u < i - 1 and (i < NSW or u >= i - NSW + 1 or (x[0] == "b" and i - NSW < LAG)), (u, x)
    for u in range(-2, NSTG - 1):
        if u >= -1:
            vq.wait(f"a{u + 1}", f"b{u + 1}", f"x{(u + 1) // 2}" if u % 2 else "-")
            k("s_barrier")
            if DIAG and u >= 17:
                stamp(k, u - 15)
        for x in sched.get(u, []):
            if not (NOLD and u >= NOLD):
                fill(x)
        if u == -2:
            stamp(k, 1)
    endpgm(k, 0, NW)

    k.label("L_k1_pf")
    oPX, oPF, oPQ, oPM = 10, 11, 12, 13
    sCL = 3
    k(f"s_sub_u32 {s(sCL)}, {s(sCG)}, {s(sRB)}")
    k(f"s_and_b32 {s(sCL)}, {s(sCL)}, 3")
    k(f"s_mul_i32 {s(sXO)}, {s(sRB)}, {128 * 1280}")
    k(f"s_add_u32 {s(sLW)}, {s(sXO)}, {64 * 1280}")
    k(f"v_mul_u32_u24 {v(oPX)}, 1280, {v(vL)}")
    k(f"s_and_b32 {s(t0)}, {s(sRB)}, 4")
    k(f"s_lshl_b32 {s(t0)}, {s(t0)}, 3")
    k(f"v_add_u32 {v(vt[0])}, {s(t0)}, {v(vL)}")
    k(f"v_lshrrev_b32 {v(vt[1])}, 5, {v(vL)}")
    k(f"v_mul_u32_u24 {v(oPF)}, 3072, {v(vt[0])}")
    k(f"v_lshl_add_u32 {v(oPF)}, {v(vt[1])}, 30, {v(oPF)}")
    k(f"v_mul_u32_u24 {v(oPQ)}, 3840, {v(vt[0])}")
    k(f"v_lshl_add_u32 {v(oPQ)}, {v(vt[1])}, 30, {v(oPQ)}")
    k(f"s_bitcmp1_b32 {s(sCG)}, 0")
    k("s_cselect_b64 vcc, -1, 0")
    k(f"v_cndmask_b32 {v(oPM)}, {v(oPF)}, {v(oPQ)}, vcc")
    k("s_waitcnt lgkmcnt(0)")
    srd(k, SX, pA, S_ * D_ * 2)
    subtile_srds(SR, sST)
    POFF = [oPF, oPF, oPM, oPM, oPQ]
    sSN, SSN = 20, 4
    k(f"s_mul_i32 {s(sSN)}, s2, 10240")
    k(f"s_add_u32 {s(sSN)}, {s(sSN)}, {WS_O}")
    srd(k, SSN, pWS, WS_SIZE)
    k(f"v_lshlrev_b32 {v(14)}, 4, {v(vL)}")
    for r in range(4):
        k(f"v_mov_b32 {v(16 + r)}, -1")

    def batch(c):
        k(f"s_cmp_eq_u32 {s(sCL)}, {c % 4}")
        k(f"s_cbranch_scc0 L_k1_pb{c}")
        if c < 10:
            for so in (sXO, sLW):
                k(f"buffer_load_dword {v(20)}, {v(oPX)}, {s(SX, 4)}, {s(so)} offen offset:{128 * c}{LDP}")
        for j in range(5):
            cc = c if j < 2 else c - 1
            if cc >= 10:
                continue
            if j in (2, 3):
                k(f"s_mul_i32 {s(t0)}, {s(sST)}, {64 * cc}")
                k(f"s_add_u32 {s(t0)}, {s(t0)}, {s(sC[j])}")
            else:
                k(f"s_add_u32 {s(t0)}, {s(sC[j])}, {64 * cc * (3072 if j < 2 else 3840)}")
            k(f"buffer_load_dword {v(20)}, {v(POFF[j])}, {s(SR[j], 4)}, {s(t0)} offen{LDP}")
        k.label(f"L_k1_pb{c}")
    if PFSL:
        k(f"s_sleep {PFSL}")
    for u in range(-2, NSTG - 1):
        if u >= -1:
            k("s_barrier")
            if u <= 7:
                stamp(k, u + 2)
        for c in range(PFMIN, 11):
            if PFU.get(c, 2 * c - PFD) == u:
                batch(c)
        for q in range(SENT.count(u)):
            k(f"buffer_store_dwordx4 {v(16, 4)}, {v(14)}, {s(SSN, 4)}, {s(sSN)} offen{STS}")
            k(f"s_add_u32 {s(sSN)}, {s(sSN)}, 1024")
    endpgm(k, 0, NW)

    k.label("L_k1_job")
    vq.q, lq.q = [], []
    SO, SJ, SG = 28, 32, 36
    sJS, sJD = 40, 50
    oJ = [10, 11]
    vJR, vL16, vGX, vG, vGO = 12, 13, 14, 15, 9
    GW = 16
    XG = 56
    J = 60
    k(f"v_lshrrev_b32 {v(vt[0])}, 3, {v(vL)}")
    k(f"v_and_b32 {v(vt[1])}, 7, {v(vL)}")
    k(f"v_lshlrev_b32 {v(vL16)}, 4, {v(vL)}")
    k(f"v_mul_u32_u24 {v(vt[2])}, 1280, {v(vt[0])}")
    k(f"v_lshl_add_u32 {v(oJ[0])}, {v(vt[1])}, 4, {v(vt[2])}")
    k(f"v_add_u32 {v(oJ[1])}, {8 * 1280 - 1024}, {v(oJ[0])}")
    k(f"v_bfe_u32 {v(vt[2])}, {v(vL)}, 2, 2")
    k(f"v_lshrrev_b32 {v(vt[3])}, 4, {v(vL)}")
    k(f"v_lshlrev_b32 {v(vt[3])}, 5, {v(vt[3])}")
    k(f"v_lshl_add_u32 {v(vt[3])}, {v(vt[2])}, 7, {v(vt[3])}")
    k(f"v_and_b32 {v(vt[4])}, 3, {v(vL)}")
    k(f"v_lshl_add_u32 {v(vt[3])}, {v(vt[4])}, 3, {v(vt[3])}")
    k(f"v_add_u32 {v(vJR)}, {SIDE}, {v(vt[3])}")
    SXG = 44
    sGX = 48
    k(f"s_lshl_b32 {s(t0)}, {s(sRB)}, 4")
    k(f"s_add_u32 {s(t0)}, {s(t0)}, {s(sCG)}")
    k(f"s_mul_i32 {s(sGX)}, {s(t0)}, {8 * 1280}")
    k(f"v_lshlrev_b32 {v(vt[2])}, 4, {v(vt[1])}")
    k(f"v_lshlrev_b32 {v(vGO)}, 2, {v(vt[0])}")
    k(f"v_lshl_add_u32 {v(vGO)}, {v(vt[1])}, 27, {v(vGO)}")
    k(f"v_mov_b32 {v(vG)}, 0")
    k("s_waitcnt lgkmcnt(0)")
    srd(k, SG, pB + 6, D_ * 2)
    srd(k, SO, pWS, WS_SIZE)
    srd(k, SXG, pA, S_ * D_ * 2)

    def job_dma(j):
        k(f"s_add_u32 {s(t0)}, s2, {256 * j}")
        k(f"s_mul_i32 {s(t1)}, {s(t0)}, 52429")
        k(f"s_lshr_b32 {s(t1)}, {s(t1)}, 19")
        k(f"s_mul_i32 {s(t2)}, {s(t1)}, 10")
        k(f"s_sub_u32 {s(t2)}, {s(t0)}, {s(t2)}")
        k(f"s_mul_i32 {s(sJD + j)}, {s(t1)}, {2 * KP}")
        k(f"s_lshl_b32 {s(t3)}, {s(t2)}, 10")
        k(f"s_add_u32 {s(sJD + j)}, {s(sJD + j)}, {s(t3)}")
        k(f"s_add_u32 {s(sJD + j)}, {s(sJD + j)}, {WS_WT}")
        k(f"s_cmp_ge_u32 {s(t1)}, 40")
        k(f"s_cselect_b32 {s(SJ)}, {s(pB + 4)}, {s(pWO)}")
        k(f"s_cselect_b32 {s(t3)}, {s(pB + 5)}, {s(pWO + 1)}")
        k(f"s_cselect_b32 {s(SJ + 2)}, {(F_ - D_) * D_ * 2}, 0")
        k(f"s_cselect_b32 {s(sJS)}, 40, 0")
        k(f"s_and_b32 {s(SJ + 1)}, {s(t3)}, 0xffff")
        k(f"s_add_u32 {s(SJ + 2)}, {s(SJ + 2)}, {D_ * D_ * 2}")
        k(f"s_mov_b32 {s(SJ + 3)}, 0x00020000")
        k(f"s_sub_u32 {s(t1)}, {s(t1)}, {s(sJS)}")
        k(f"s_mul_i32 {s(sJS)}, {s(t1)}, {16 * 1280}")
        k(f"s_lshl_b32 {s(t2)}, {s(t2)}, 7")
        k(f"s_add_u32 {s(sJS)}, {s(sJS)}, {s(t2)}")
        if 256 * j + 255 >= 1360:
            k(f"s_cmp_ge_u32 {s(t0)}, 1360")
            k(f"s_cselect_b32 {s(sJS)}, {OOB}, {s(sJS)}")
            k(f"s_cselect_b32 {s(sJD + j)}, {OOB}, {s(sJD + j)}")
        k(f"s_mov_b32 m0, {SIDE + 2048 * j}")
        vq.issue(f"j{j}", f"buffer_load_dwordx4 {v(oJ[0])}, {s(SJ, 4)}, {s(sJS)} offen lds")
        vq.issue(f"j{j}", f"buffer_load_dwordx4 {v(oJ[1])}, {s(SJ, 4)}, {s(sJS)} offen offset:1024 lds")

    def job_out(j):
        vq.wait(f"j{j}")
        R = J + 8 * (j % 2)
        for q in range(4):
            lq.issue("jr", f"ds_read_b64_tr_b16 {v(R + 2 * q, 2)}, {v(vJR)} offset:{2048 * j + 512 * q}")
        lq.wait("jr")
        vq.issue("st", f"buffer_store_dwordx4 {v(R, 4)}, {v(vL16)}, {s(SO, 4)}, {s(sJD + j)} offen{ST}")
        k(f"s_add_u32 {s(sJD + j)}, {s(sJD + j)}, {KP}")
        vq.issue("st", f"buffer_store_dwordx4 {v(R + 4, 4)}, {v(vL16)}, {s(SO, 4)}, {s(sJD + j)} offen{ST}")

    for u in range(-1, NSTG - 1):
        k("s_barrier")
        if 8 <= u <= 16:
            stamp(k, u - 7)
        if NOJOB:
            continue
        if u == GWU:
            for c in range(10):
                vq.issue("gw", f"buffer_load_dwordx4 {v(GW + 4 * c, 4)}, {v(vt[2])}, {s(SG, 4)}, 0 offen offset:{128 * c}")
        if u == GXU:
            for c in range(10):
                vq.issue("gx", f"buffer_load_dwordx4 {v(76 + 4 * c, 4)}, {v(oJ[0])}, {s(SXG, 4)}, {s(sGX)} offen offset:{128 * c}")
        for j in range(6):
            if JO[j] == u:
                job_out(j)
        for j in range(6):
            if JD[j] == u:
                job_dma(j)
        for q in range(4):
            if GCU[q] == u:
                vq.wait("gx", "gw")
                for c in range(10 * q, 10 * q + 10):
                    k(f"v_dot2c_f32_bf16 {v(vG)}, {v(76 + c)}, {v(GW + c)}")
        if u == GCU[3]:
            g = vG
            k(f"v_add_f32_dpp {v(g)}, {v(g)}, {v(g)} quad_perm:[1,0,3,2] row_mask:0xf bank_mask:0xf")
            k(f"v_add_f32_dpp {v(g)}, {v(g)}, {v(g)} quad_perm:[2,3,0,1] row_mask:0xf bank_mask:0xf")
            k(f"v_add_f32_dpp {v(g)}, {v(g)}, {v(g)} row_half_mirror row_mask:0xf bank_mask:0xf")
            k(f"s_mov_b32 {s(t1)}, {f32(-LOG2E)}")
            k(f"s_lshl_b32 {s(t0)}, {s(sRB)}, 4")
            k(f"s_add_u32 {s(t0)}, {s(t0)}, {s(sCG)}")
            k(f"s_lshl_b32 {s(t0)}, {s(t0)}, 5")
            k(f"s_add_u32 {s(t0)}, {s(t0)}, {WS_G}")
            k(f"v_cvt_pk_bf16_f32 {v(g)}, {v(g)}, {v(g)}")
            k(f"v_lshlrev_b32 {v(g)}, 16, {v(g)}")
            k(f"v_mul_f32 {v(g)}, {s(t1)}, {v(g)}")
            k(f"v_exp_f32 {v(g)}, {v(g)}")
            k(f"v_add_f32 {v(g)}, 1.0, {v(g)}")
            k(f"v_rcp_f32 {v(g)}, {v(g)}")
            k(f"v_cvt_pk_bf16_f32 {v(g)}, {v(g)}, {v(g)}")
            k(f"v_lshlrev_b32 {v(g)}, 16, {v(g)}")
            vq.issue("st", f"buffer_store_dword {v(g)}, {v(vGO)}, {s(SO, 4)}, {s(t0)} offen{ST}")
    assert max(JO) < NSTG - 1 and all(d < o for d, o in zip(JD, JO)) and max(GWU, GXU) < GCU[0]
    endpgm(k, 0, NW)
    k.label("L_k1_end")
    k("s_endpgm")
    return name, 168, 60
```

```python
from common import *
from gen3 import WS_QKV, TT_QKV, WS_H, TT_H, WS_O, TT_O, WS_WT, KP, WS_B, WS_G, WS_TK, WS_SIZE, MF32, VDELTA
MH32 = "v_mfma_f32_32x32x16_f16"
BIAS = 0x3e50
E = lambda n, d: eval(os.environ.get(n, d))
STO = " sc1"
LX4 = E("K2_LX4", "1")
WO_POS = E("K2_WO", "[(21 + i // 2, i % 2, 23) for i in range(22)]")
PSL = E("K2_PSL", "1")
STOUT = os.environ.get("K2_STOUT", "")
EARLY = E("K2_EARLY", "0")
PRS = 656
XB_POS = E("K2_XB", "(3, 4)")
XCH = 4 * 32 * PRS
LDS2 = XCH + 40960 + 64
DLY = E("K2_DLY", "None")
STB = os.environ.get("K2_STB", " sc1")
GLD = E("K2_GLD", "[(n, p, s_) for n in range(1, 7) for p in range(2) for s_ in ((0, 2) if n < 4 else (2,))][:18]")
PRIO = E("K2_PRIO", "2")
C1 = E("K2_C1", "[(0, 0, 0), (0, 0, 2), (0, 1, 0)]")
PFW = E("K2_PFW", "[None] * 5")
PFH = E("K2_PFH", "0")
XS = os.environ.get("K2_X", "")
STN = E("K2_STN", "(3, 7, 23)")
BASE = E("K2_BASE", "(0, 5, 9, 13)")
SLOT = (17, 21, 23)
GM_POS = E("K2_GM", "[(j, p, i) for j in range(4) for p, i in ((0, 21), (1, 17), (1, 21))]")
SW_POS = E("K2_SW", "[(0, 0, 5)] * 4")
SR_POS = E("K2_SR", "[(1, 0, 17)] * 8")
SA_POS = E("K2_SA", "[(2, 0, 17)] * 4 + [(3, 0, 17)] * 4")
DM_POS = E("K2_DM", "[(3, 0, 21), (3, 0, 23), (3, 1, 23)]")
NRING = E("K2_NRING", "2")
ZPAD = E("K2_ZPAD", "1")
PRP = E("K2_PRP", "(0, 0, 14)")


def gen_k2(k):
    name = "k2_kernel"
    TS = 3136
    CH = 8 * TS
    STG = NRING * CH
    FLG = XCH + 40960
    assert STG + 65536 <= FLG
    SW_ = 8
    sW, sKH, sQG, sHEAD, sQB, sODD = 12, 13, 14, 15, 16, 17
    sKO, sKO2, sM0, sPASS, sWD, sWDc, sBO, sHO, sQO = 18, 19, 20, 21, 22, 23, 24, 25, 26
    t0, t1, t2, t3 = 28, 29, 30, 31
    sMASK, sTMP = 32, 34
    sCNT = 36
    sTT, sQO0, sOO = 37, 38, 39
    sKA, sKC = 40, 41
    sWO, sOA, sOA2, sT0, sOA3 = 42, 43, 27, 48, 50
    SOUT = 44
    kernel_head(k, name)
    k("s_cmp_ge_u32 s2, 256")
    k("s_cbranch_scc1 L_k2_end")
    diag_begin(k)
    k(f"s_load_dwordx2 s[4:5], s[0:1], {KA_WS}")
    k(f"s_load_dwordx2 s[6:7], s[0:1], {KA_OUT}")
    va = Alloc(1, 256)
    vL = va(); vI = va(); vH = va(); vL16 = va()
    vt = [va() for _ in range(6)]
    vD = [va() for _ in range(3)]
    vK1 = va(); vK2 = va()
    vV = [va() for _ in range(4)]
    vWD = va(); vSW = va(); vSR = va(); vBS = va(); vQ2 = va(); vQ1 = va(); vXW = va(); vXR = va(); vG = va()
    vWO = vQ1
    BK = [va() for _ in range(5)]
    Q1 = [va(4) for _ in range(2)]
    Q2 = [va(2) for _ in range(2)]
    KF1 = va(4); KF2 = va(2)
    VF = [va(4) for _ in range(2)]
    P = [va(8, 4) for _ in range(2)]
    SS = [va(16, 4) for _ in range(2)]
    O = [va(16, 4) for _ in range(2)]
    HF = [va(4) for _ in range(12)]
    WDF = [va(4) for _ in range(6)]
    BA = va(16, 4)
    RT = va(16, 4)
    k(f"v_lshrrev_b32 {v(vt[0])}, 6, v0")
    k(f"v_and_b32 {v(vL)}, 63, v0")
    k(f"v_readfirstlane_b32 {s(sW)}, {v(vt[0])}")
    k(f"v_and_b32 {v(vI)}, 31, v0")
    k(f"v_bfe_u32 {v(vH)}, v0, 5, 1")
    k(f"v_lshlrev_b32 {v(vL16)}, 4, {v(vL)}")
    k(f"s_and_b32 {s(t0)}, s2, 7")
    k(f"s_lshl_b32 {s(t0)}, {s(t0)}, 2")
    k(f"s_lshr_b32 {s(t1)}, s2, 6")
    k(f"s_add_u32 {s(sHEAD)}, {s(t0)}, {s(t1)}")
    k(f"s_bfe_u32 {s(sQB)}, s2, 0x30003")
    k(f"s_lshr_b32 {s(sKH)}, {s(sW)}, 2")
    k(f"s_and_b32 {s(sQG)}, {s(sW)}, 3")
    k(f"s_and_b32 {s(sODD)}, {s(sHEAD)}, 1")
    k(f"s_lshr_b32 {s(t2)}, {s(sHEAD)}, 1")
    k(f"s_mul_i32 {s(t2)}, {s(t2)}, 5")
    k(f"s_lshl_b32 {s(t3)}, {s(sODD)}, 1")
    k(f"s_add_u32 {s(t2)}, {s(t2)}, {s(t3)}")
    k(f"s_lshl_b32 {s(t2)}, {s(t2)}, 9")
    k(f"s_lshl_b32 {s(t0)}, {s(sQB)}, 3")
    k(f"s_lshl_b32 {s(t1)}, {s(sQG)}, 1")
    k(f"s_add_u32 {s(t0)}, {s(t0)}, {s(t1)}")
    k(f"s_add_u32 {s(sTT)}, {s(t0)}, {s(sKH)}")
    k(f"s_mul_i32 {s(sQO)}, {s(sTT)}, {TT_QKV}")
    k(f"s_add_u32 {s(sQO)}, {s(sQO)}, {s(t2)}")
    k(f"s_xor_b32 {s(t0)}, {s(sTT)}, 1")
    k(f"s_mul_i32 {s(sQO0)}, {s(t0)}, {TT_QKV}")
    k(f"s_add_u32 {s(sQO0)}, {s(sQO0)}, {s(t2)}")
    k(f"s_lshl_b32 {s(t0)}, {s(sODD)}, 9")
    k(f"s_add_u32 {s(sOO)}, {s(sQO)}, {s(t0)}")
    k(f"v_add_u32 {v(vQ1)}, {s(t0)}, {v(vL16)}")
    k(f"s_cmp_eq_u32 {s(sODD)}, 1")
    k(f"s_cselect_b32 {s(t1)}, 8, 1024")
    k(f"v_lshlrev_b32 {v(vt[0])}, 4, {v(vI)}")
    k(f"v_add_u32 {v(vQ2)}, {s(t1)}, {v(vt[0])}")
    k(f"s_mul_i32 {s(t0)}, {s(sW)}, {TT_QKV}")
    k(f"s_add_u32 {s(t0)}, {s(t0)}, {s(t2)}")
    k(f"s_add_u32 {s(t0)}, {s(t0)}, {80 * 512}")
    k(f"v_add_u32 {v(vD[0])}, {s(t0)}, {v(vL16)}")
    k(f"v_mul_u32_u24 {v(vt[1])}, {80 * 512 - 1024}, {v(vH)}")
    k(f"v_add3_u32 {v(vD[1])}, {v(vt[0])}, {v(vt[1])}, {s(t0)}")
    k(f"v_lshlrev_b32 {v(vt[1])}, 6, {v(vH)}")
    k(f"v_add_u32 {v(vt[1])}, 64, {v(vt[1])}")
    k(f"v_xor_b32 {v(vt[1])}, {v(vt[1])}, {v(vL16)}")
    k(f"s_add_u32 {s(t0)}, {s(t0)}, {80 * 512 + 512 - 2048}")
    k(f"v_add_u32 {v(vD[2])}, {s(t0)}, {v(vt[1])}")
    k(f"s_and_b32 {s(t0)}, {s(sW)}, 1")
    k(f"s_mul_i32 {s(t0)}, {s(t0)}, {4 * NRING}")
    k(f"s_lshr_b32 {s(t1)}, {s(sW)}, 1")
    k(f"s_add_u32 {s(t0)}, {s(t0)}, {s(t1)}")
    k(f"s_mul_i32 {s(sM0)}, {s(t0)}, {TS}")
    k(f"s_mov_b32 {s(sPASS)}, 0")
    k(f"s_mov_b32 {s(sKA)}, 0x82008200")
    k(f"s_mov_b32 {s(sKC)}, 0xb9a4b9a4")
    k("s_waitcnt lgkmcnt(0)")
    srd(k, SW_, 4, WS_SIZE)
    lq = Q(k, "lgkmcnt", 15)
    vq = Q(k, "vmcnt", 63)

    def dma_chunk(c):
        def a():
            k(f"s_add_u32 m0, {s(sM0)}, {(c % NRING) * 4 * TS}")
            k(f"s_mov_b32 {s(sKO)}, {c * 8 * TT_QKV}")
            vq.issue(f"c{c}", f"buffer_load_dwordx4 {v(vD[0])}, {s(SW_, 4)}, {s(sKO)} offen lds")
        out = [a]
        for j in (1, 2):
            out.append(lambda j=j: vq.issue(f"c{c}", f"buffer_load_dwordx4 {v(vD[j])}, {s(SW_, 4)}, {s(sKO)} offen offset:{1024 * j} lds"))
        return out

    for qt in range(2):
        so = sQO0 if qt == 0 else sQO
        vq.issue("q", f"buffer_load_dwordx4 {v(Q1[qt], 4)}, {v(vQ1)}, {s(SW_, 4)}, {s(so)} offen")
        vq.issue("q", f"buffer_load_dwordx2 {v(Q2[qt], 2)}, {v(vQ2)}, {s(SW_, 4)}, {s(so)} offen")
        if qt == 0:
            for f in dma_chunk(0):
                f()
    if C1 is None:
        for f in dma_chunk(1):
            f()
    k(f"s_and_b32 {s(t0)}, s2, 7")
    k(f"s_lshl_b32 {s(t0)}, {s(t0)}, 3")
    k(f"s_add_u32 {s(t0)}, {s(t0)}, {s(sQB)}")
    k(f"s_mul_i32 {s(sHO)}, {s(t0)}, {TT_H}")
    k(f"s_mul_i32 {s(t1)}, {s(sW)}, 12288")
    k(f"s_add_u32 {s(sHO)}, {s(sHO)}, {s(t1)}")
    k(f"s_add_u32 {s(sHO)}, {s(sHO)}, {WS_H}")
    k(f"s_lshr_b32 {s(t2)}, s2, 6")
    k(f"s_mul_i32 {s(sWD)}, {s(sW)}, {24 * KP}")
    k(f"s_mul_i32 {s(t1)}, {s(t2)}, 2560")
    k(f"s_add_u32 {s(sWD)}, {s(sWD)}, {s(t1)}")
    k(f"s_add_u32 {s(sWD)}, {s(sWD)}, {WS_WT + 80 * KP}")
    k(f"v_mul_u32_u24 {v(vt[0])}, {KP}, {v(vH)}")
    k(f"v_lshl_add_u32 {v(vWD)}, {v(vI)}, 4, {v(vt[0])}")
    k(f"s_mul_i32 {s(sOA)}, {s(t0)}, {TT_QKV}")
    k(f"s_mul_i32 {s(t1)}, {s(sQG)}, 10240")
    k(f"s_add_u32 {s(sOA)}, {s(sOA)}, {s(t1)}")
    k(f"s_add_u32 {s(sOA2)}, {s(sOA)}, 4096")
    k(f"s_add_u32 {s(sOA3)}, {s(sOA)}, 8192")
    k(f"s_lshl_b32 {s(t1)}, {s(t2)}, 1")
    k(f"s_add_u32 {s(t1)}, {s(t1)}, {s(sKH)}")
    k(f"s_mul_i32 {s(sWO)}, {s(t1)}, 1280")
    k(f"s_mul_i32 {s(t1)}, {s(sQG)}, {20 * KP}")
    k(f"s_add_u32 {s(sWO)}, {s(sWO)}, {s(t1)}")
    k(f"s_add_u32 {s(sWO)}, {s(sWO)}, {WS_WT}")
    k(f"s_lshl_b32 {s(t0)}, {s(t0)}, 3")
    k(f"s_add_u32 {s(t0)}, {s(t0)}, {s(sW)}")
    k(f"s_mul_i32 {s(sBO)}, {s(t0)}, {4 * 1280}")
    k(f"s_mul_i32 {s(t1)}, {s(t2)}, 320")
    k(f"s_add_u32 {s(sBO)}, {s(sBO)}, {s(t1)}")
    k(f"s_lshl_b32 {s(sKO2)}, {s(t0)}, 4")
    k(f"s_add_u32 {s(sKO2)}, {s(sKO2)}, {WS_G}")
    srd(k, SOUT, 6, S_ * D_ * 2)

    def wd_load(i):
        if i >= 60:
            return
        t, ks = divmod(i, 12)
        k(f"s_add_u32 {s(sWDc)}, {s(sWD)}, {ks * 2 * KP}")
        vq.issue(f"wd{i}", f"buffer_load_dwordx4 {v(WDF[i % 6], 4)}, {v(vWD)}, {s(SW_, 4)}, {s(sWDc)} offen offset:{512 * t}")

    def h_load(j):
        if j % 4 == 0 and j:
            k(f"s_add_u32 {s(sHO)}, {s(sHO)}, 4096")
        vq.issue(f"h{j}", f"buffer_load_dwordx4 {v(HF[j], 4)}, {v(vL16)}, {s(SW_, 4)}, {s(sHO)} offen offset:{1024 * (j % 4)}")
    gl = []
    for j in range(12):
        gl.append(lambda j=j: h_load(j))
        if j < 6:
            gl.append(lambda j=j: wd_load(j))
    assert len(GLD) == 18 and GLD == sorted(GLD)
    glpos = {}
    for pos, f in zip(GLD, gl):
        glpos.setdefault(pos, []).append(f)
    if C1 is not None:
        for pos, f in zip(C1, dma_chunk(1)):
            glpos.setdefault(pos, []).insert(0, f)
    for f in glpos.pop(-1, []):
        f()
    k(f"s_mul_i32 {s(t3)}, {s(sKH)}, {4 * NRING * TS}")
    k(f"s_lshl_b32 {s(t0)}, {s(sODD)}, 9")
    k(f"s_add_u32 {s(t0)}, {s(t0)}, {s(t3)}")
    k(f"v_add_u32 {v(vK1)}, {s(t0)}, {v(vL16)}")
    k(f"v_cmp_eq_u32 {s(sMASK, 2)}, 1, {v(vH)}")
    k(f"v_mov_b32 {v(vt[1])}, 3072")
    k(f"v_cndmask_b32 {v(vK2)}, {v(vQ2)}, {v(vt[1])}, {s(sMASK, 2)}")
    k(f"v_add_u32 {v(vK2)}, {s(t3)}, {v(vK2)}")
    k(f"v_and_b32 {v(vt[0])}, 1, {v(vL)}")
    k(f"v_add_u32 {v(vt[0])}, {s(sODD)}, {v(vt[0])}")
    k(f"v_bfe_u32 {v(vt[1])}, {v(vL)}, 1, 1")
    k(f"v_bfe_u32 {v(vt[2])}, {v(vL)}, 4, 1")
    k(f"v_cmp_eq_u32 vcc, 1, {v(vt[2])}")
    k(f"s_lshl_b32 {s(t0)}, {s(sODD)}, 1")
    k(f"s_sub_u32 {s(t0)}, 2, {s(t0)}")
    k(f"v_mov_b32 {v(vt[3])}, {s(t0)}")
    k(f"v_cndmask_b32 {v(vt[0])}, {v(vt[0])}, {v(vt[3])}, vcc")
    k(f"v_mov_b32 {v(vt[3])}, {s(sODD)}")
    k(f"v_cndmask_b32 {v(vt[1])}, {v(vt[1])}, {v(vt[3])}, vcc")
    k(f"v_bfe_u32 {v(vt[3])}, {v(vL)}, 2, 2")
    k(f"v_lshl_add_u32 {v(vt[3])}, {v(vH)}, 2, {v(vt[3])}")
    k(f"v_lshlrev_b32 {v(vt[4])}, 2, {v(vt[0])}")
    k(f"v_xor_b32 {v(vt[3])}, {v(vt[3])}, {v(vt[4])}")
    k(f"v_lshlrev_b32 {v(vt[3])}, 4, {v(vt[3])}")
    k(f"v_lshl_add_u32 {v(vt[3])}, {v(vt[1])}, 3, {v(vt[3])}")
    k(f"v_lshl_add_u32 {v(vt[3])}, {v(vt[0])}, 9, {v(vt[3])}")
    k(f"v_and_b32 {v(vt[4])}, 19, {v(vL)}")
    k(f"v_cmp_lt_u32 vcc, 16, {v(vt[4])}")
    if ZPAD:
        k(f"v_and_b32 {v(vt[5])}, 2, {v(vL)}")
        k(f"v_mad_i32_i24 {v(vt[5])}, {v(vt[5])}, -4, {v(vt[2])}")
        k(f"v_add_u32 {v(vt[5])}, {3072 - 1536 + 15}, {v(vt[5])}")
    else:
        k(f"v_mov_b32 {v(vt[5])}, {3072 - 1536}")
    k(f"s_add_u32 {s(t0)}, {s(t3)}, 1536")
    for q in range(4):
        k(f"v_xor_b32 {v(vt[4])}, {128 * q}, {v(vt[3])}")
        k(f"v_cndmask_b32 {v(vt[4])}, {v(vt[4])}, {v(vt[5])}, vcc")
        k(f"v_add_u32 {v(vV[q])}, {s(t0)}, {v(vt[4])}")
    k(f"v_min_u32 {v(vt[0])}, {8 * NRING - 1}, {v(vL)}")
    k(f"v_mul_u32_u24 {v(vt[0])}, {TS}, {v(vt[0])}")
    k(f"v_mov_b32 {v(RT)}, 0x3f803f80")
    k(f"v_mov_b32 {v(RT + 1)}, 0x3f803f80")
    k(f"v_mov_b32 {v(RT + 2)}, 0x3c00")
    k(f"v_mov_b32 {v(RT + 6)}, {BIAS}")
    for r in range(3, 6):
        k(f"v_mov_b32 {v(RT + r)}, 0")
    lq.issue("one", f"ds_write_b128 {v(vt[0])}, {v(RT, 4)} offset:3072")
    lq.issue("one", f"ds_write_b64 {v(vt[0])}, {v(RT + 4, 2)} offset:3088")
    k(f"v_lshlrev_b32 {v(vt[0])}, 5, {v(vH)}")
    k(f"v_xor_b32 {v(vt[0])}, {v(vt[0])}, {v(vL16)}")
    k(f"s_lshl_b32 {s(t0)}, {s(sW)}, 12")
    k(f"s_add_u32 {s(t0)}, {s(t0)}, {STG}")
    k(f"v_add_u32 {v(vSW)}, {s(t0)}, {v(vt[0])}")
    k(f"v_lshrrev_b32 {v(vt[0])}, 4, {v(vL)}")
    k(f"s_lshl_b32 {s(t0)}, {s(sW)}, 2")
    k(f"v_add_u32 {v(vt[1])}, {s(t0)}, {v(vt[0])}")
    k(f"v_and_b32 {v(vt[2])}, 14, {v(vL)}")
    k(f"v_xor_b32 {v(vt[1])}, {v(vt[1])}, {v(vt[2])}")
    k(f"v_lshlrev_b32 {v(vt[1])}, 4, {v(vt[1])}")
    k(f"v_lshl_add_u32 {v(vt[1])}, {v(vt[2])}, 8, {v(vt[1])}")
    k(f"v_and_b32 {v(vt[2])}, 1, {v(vL)}")
    k(f"v_lshl_add_u32 {v(vt[1])}, {v(vt[2])}, 3, {v(vt[1])}")
    k(f"v_add_u32 {v(vSR)}, {STG}, {v(vt[1])}")
    k(f"v_mul_u32_u24 {v(vt[0])}, 1280, {v(vt[0])}")
    k(f"v_and_b32 {v(vt[2])}, 15, {v(vL)}")
    k(f"v_lshl_add_u32 {v(vBS)}, {v(vt[2])}, 2, {v(vt[0])}")
    k(f"s_lshl_b32 {s(t0)}, {s(sW)}, 12")
    k(f"s_add_u32 {s(t0)}, {s(t0)}, {XCH}")
    k(f"v_add_u32 {v(vXW)}, {s(t0)}, {v(vL16)}")
    k(f"s_xor_b32 {s(t0)}, {s(sW)}, 4")
    k(f"s_lshl_b32 {s(t0)}, {s(t0)}, 12")
    k(f"s_add_u32 {s(t0)}, {s(t0)}, {XCH}")
    k(f"v_add_u32 {v(vXR)}, {s(t0)}, {v(vL16)}")
    for g in range(1, 4):
        k(f"v_xor_b32 {v(vt[g])}, {64 * g}, {v(vSW)}")
    if PRIO == 2:
        k("s_setprio 3")
    if PRIO == 1:
        k(f"s_setprio 0")
        k(f"s_cmp_eq_u32 {s(sKH)}, 0")
        k("s_cbranch_scc1 L_k2_np")
        k(f"s_setprio {PRIO}")
        k.label("L_k2_np")
    stamp(k, 1, lq)
    waits(k, lg=lq.all(), vm=vq.need("q", "c0"))
    for qt in range(2):
        for r in range(2):
            k(f"v_cndmask_b32 {v(Q2[qt] + r)}, {v(Q2[qt] + r)}, {v(RT + 6 - r)}, {s(sMASK, 2)}")
    k("s_barrier")
    stamp(k, 2, lq)

    def toff(n):
        c, j = divmod(n, 4)
        return ((c % NRING) * 4 + j) * TS

    def kread(n):
        lq.issue("k", f"ds_read_b128 {v(KF1, 4)}, {v(vK1)} offset:{toff(n)}")
        lq.issue("k", f"ds_read_b64 {v(KF2, 2)}, {v(vK2)} offset:{toff(n)}")

    def vread(n):
        for q in range(4):
            lq.issue(f"v{q // 2}", f"ds_read_b64_tr_b16 {v(VF[q // 2] + 2 * (q % 2), 2)}, {v(vV[q])} offset:{toff(n)}")

    def qk(qt):
        if "q" in XS:
            return ["s_nop 0", "s_nop 0"]
        return [f"{MF32} {v(SS[qt], 16)}, {v(KF1, 4)}, {v(Q1[qt], 4)}, 0",
                f"v_mfma_f32_32x32x8_bf16 {v(SS[qt], 16)}, {v(KF2, 2)}, {v(Q2[qt], 2)}, {v(SS[qt], 16)}"]

    def pv(qt, first=False, mf=MH32):
        if "p" in XS and not first:
            return ["s_nop 0", "s_nop 0"]
        return [f"{mf} {v(O[qt], 16)}, {v(VF[t], 4)}, {v(P[qt] + 4 * t, 4)}, " + ("0" if first and t == 0 else v(O[qt], 16))
                for t in range(2)]

    def softmax_ops(qt):
        ops = []
        S = SS[qt]
        for i in range(10):
            if i < 8:
                ops.append(f"v_cvt_pknorm_u16_f32 {v(S + 2 * i)}, {v(S + 2 * i)}, {v(S + 2 * i + 1)}")
            if 1 <= i < 9:
                c = i - 1
                ops.append(f"v_pk_add_u16 {v(S + 2 * c + 1)}, {v(S + 2 * c)}, {s(sKA)} clamp")
            if i >= 2:
                c = i - 2
                ops.append(f"v_pk_fma_f16 {v(P[qt] + c)}, {v(S + 2 * c + 1)}, {s(sKC)}, {v(S + 2 * c)}")
        return ops

    def phase(valu, ins):
        for i, t in enumerate(valu):
            for x in ins.get(i, []):
                if callable(x):
                    x()
                else:
                    k(x)
            k(t)

    def gm(i):
        t, ks = divmod(i, 12)

        def f():
            waits(k, vm=vq.need(f"wd{i}", f"h{ks}"), lg=(lq.need("sw") if ks == 0 else None))
            if "m" not in XS:
                k(f"{MF32} {v(BA, 16)}, {v(WDF[i % 6], 4)}, {v(HF[ks], 4)}, " + ("0" if ks == 0 else v(BA, 16)))
            if "d" not in XS:
                wd_load(i + 6)
        return f

    def stg_write(t, g):
        def f():
            if "w" not in XS:
                lq.issue("sw", f"ds_write_b128 {v(vt[g] if g else vSW)}, {v(BA + 4 * g, 4)} offset:{(t % 2) * 32768 + 1024 * g}")
        return f

    def stg_read(t, p):
        def f():
            if "r" not in XS:
                lq.issue(f"sr{p}", f"ds_read_b64 {v(RT + 2 * p, 2)}, {v(vSR)} offset:{(t % 2) * 32768 + 4096 * p}")
        return f

    def stg_sum(t, p):
        def f():
            if "a" in XS:
                return
            if p < 7:
                lq.wait(f"sr{p + 1}")
                for r in range(2):
                    k(f"v_add_f32 {v(RT + r)}, {v(RT + r)}, {v(RT + 2 * p + 2 + r)}")
            else:
                k(f"v_cvt_pk_bf16_f32 {v(BK[t])}, {v(RT)}, {v(RT + 1)}")
        return f

    WOF = HF + [WDF[i % 6] for i in range(54, 60)] + [BA + 4 * i for i in range(4)] + [RT + 4 * i for i in range(3)]

    def wo_setup():
        k(f"v_lshrrev_b32 {v(vt[0])}, 4, {v(vL)}")
        k(f"v_and_b32 {v(vt[4])}, 15, {v(vL)}")
        k(f"v_mul_u32_u24 {v(vt[5])}, {KP}, {v(vt[0])}")
        k(f"v_lshl_add_u32 {v(vWO)}, {v(vt[4])}, 4, {v(vt[5])}")
        k(f"v_lshlrev_b32 {v(vt[0])}, 2, {v(vt[0])}")
        vq.issue("g", f"buffer_load_dword {v(vG)}, {v(vt[0])}, {s(SW_, 4)}, {s(sKO2)} offen")

    def wo_load(f):
        ks, ct = divmod(f, 5)
        k(f"s_add_u32 {s(sWDc)}, {s(sWO)}, {4 * ks * KP}")
        vq.issue("wo", f"buffer_load_dwordx4 {v(WOF[f], 4)}, {v(vWO)}, {s(SW_, 4)}, {s(sWDc)} offen offset:{256 * ct}")

    kread(0)
    lq.wait("k")
    for t in qk(0):
        k(t)
    NT = 32
    X = {}

    def put(n, ph, idx, f):
        X.setdefault((n, ph), {}).setdefault(idx, []).append(f)
    for (n_, p_, s_), fs in sorted(glpos.items()):
        for f in fs:
            put(n_, p_, SLOT[s_], f)
    for tg in range(5):
        for i, (j, ph, idx) in enumerate(GM_POS):
            put(4 * (tg + 1) + j, ph, idx, gm(12 * tg + i))
        for g, (j, ph, idx) in enumerate(SW_POS):
            put(4 * (tg + 2) + j, ph, idx, stg_write(tg, g))
        for p_, (j, ph, idx) in enumerate(SR_POS):
            put(4 * (tg + 3) + j, ph, idx, stg_read(tg, p_))
        for p_, (j, ph, idx) in enumerate(SA_POS):
            put(4 * (tg + 3) + j, ph, idx, stg_sum(tg, p_))
    for c in range(2, 8):
        for f, (j, ph, idx) in zip(dma_chunk(c), DM_POS):
            put(4 * (c - 2) + j, ph, idx, f)
    put(9, 1, 23, wo_setup)
    for f, (n_, p_, i_) in enumerate(WO_POS):
        put(n_, p_, i_, lambda f=f: wo_load(f))
    if PRIO == 2:
        for n in range(NT):
            if n % 4 == 3:
                if n < 31:
                    put(n, 0, BASE[3], "s_setprio 3")
            else:
                put(n + PRP[0], PRP[1], PRP[2], f"s_setprio {2 - n % 4}")

    def merge(base, extra):
        out = {i: list(l) for i, l in base.items()}
        for i, l in extra.items():
            out.setdefault(i, []).extend(l)
        return out
    for n in range(NT):
        it, j = divmod(n, 4)
        q = qk(1)
        p = pv(1, n == 1) if n > 0 else [None, None]
        kr = []
        if n + 1 < NT:
            if j == 3:
                kr.append(lambda it=it: waits(k, lg=(lq.all() if NRING == 2 else lq.need("sw")), vm=vq.need(f"c{it + 1}")))
                kr.append("s_barrier")
            kr.append(lambda n=n: kread(n + 1))
        s0 = [p[0]] if p[0] else []
        s1 = ([p[1]] if p[1] else []) + [lambda n=n: vread(n)]
        phase(softmax_ops(0), merge(dict(zip(BASE, [s0, s1, [q[0]], [q[1]] + kr])), X.get((n, 0), {})))
        p = pv(0, n == 0)
        q = qk(0)
        sq = [[lambda: lq.wait("k"), q[0]], [q[1]]] if n + 1 < NT else [[], []]
        phase(softmax_ops(1), merge(dict(zip(BASE, [[lambda: lq.wait("v0"), p[0]], [lambda: lq.wait("v1"), p[1]]] + sq)), X.get((n, 1), {})))
        if DIAG and n in STN:
            stamp(k, (3, 4, 5, 7, 8, 9)[STN.index(n)], lq)
    p = pv(1)
    k(p[0])
    for r in range(3):
        lq.issue("x", f"ds_write_b128 {v(vXW)}, {v(O[0] + 4 * r, 4)} offset:{1024 * r}")
    lq.issue("x", f"ds_write_b32 {v(vXW)}, {v(O[0] + 12)} offset:3072")
    k(p[1])
    stamp(k, 6, lq)
    k.label("L_k2_mg")
    k(f"s_mov_b32 {s(t2)}, {f32(2.0 ** 60)}")
    k(f"s_mov_b32 {s(t3)}, {f32(2.0 ** -16)}")
    k("s_waitcnt lgkmcnt(0)")
    k("s_barrier")
    k(f"ds_read_b32 {v(SS[0] + 12)}, {v(vXR)} offset:3072")
    for r in range(3):
        k(f"ds_read_b128 {v(SS[0] + 4 * r, 4)}, {v(vXR)} offset:{1024 * r}")
    X = O[1]
    PL = P[0] + 4
    k("s_waitcnt lgkmcnt(3)")
    k(f"v_add_f32 {v(X + 12)}, {v(X + 12)}, {v(SS[0] + 12)}")
    k(f"v_rcp_f32 {v(vt[1])}, {v(X + 12)}")
    k(f"v_cmp_nle_f32 {s(sTMP, 2)}, {f32(64.0)}, {v(X + 12)}" if False else f"v_cmp_nle_f32 vcc, {f32(64.0)}, {v(X + 12)}")
    k(f"s_mov_b64 {s(sTMP, 2)}, vcc")
    for g in range(3):
        k(f"s_waitcnt lgkmcnt({2 - g})")
        for r in range(4 * g, 4 * g + 4):
            k(f"v_add_f32 {v(X + r)}, {v(X + r)}, {v(SS[0] + r)}")
        for r in range(4 * g, 4 * g + 4):
            k(f"v_mul_f32 {v(X + r)}, {v(X + r)}, {v(vt[1])}")
        for c in range(2 * g, 2 * g + 2):
            k(f"v_cvt_pk_bf16_f32 {v(P[0] + c)}, {v(X + 2 * c)}, {v(X + 2 * c + 1)}")
        k(f"v_or_b32 {v(P[0] + 2 * g)}, 1, {v(P[0] + 2 * g)}")
        r = 4 * g
        if g == 0:
            k(f"v_maximum3_f32 {v(X + 13)}, |{v(X)}|, |{v(X + 1)}|, |{v(X + 2)}|")
            k(f"v_maximum3_f32 {v(X + 13)}, |{v(X + 3)}|, |{v(X + 3)}|, {v(X + 13)}")
        else:
            k(f"v_maximum3_f32 {v(X + 13)}, |{v(X + r)}|, |{v(X + r + 1)}|, {v(X + 13)}")
            k(f"v_maximum3_f32 {v(X + 13)}, |{v(X + r + 2)}|, |{v(X + r + 3)}|, {v(X + 13)}")
    k(f"v_cmp_nle_f32 vcc, {v(X + 13)}, {s(t2)}")
    k(f"s_or_b64 {s(sTMP, 2)}, vcc, {s(sTMP, 2)}")
    k(f"v_cmp_nge_f32 vcc, {v(X + 13)}, {s(t3)}")
    k(f"s_or_b64 vcc, vcc, {s(sTMP, 2)}")
    k(f"s_cselect_b32 {s(t0)}, 1, 0")
    k(f"s_andn2_b32 {s(t0)}, {s(t0)}, {s(sPASS)}")
    k("s_cbranch_scc1 L_k2_ns")
    k(f"buffer_store_dwordx4 {v(P[0], 4)}, {v(vL16)}, {s(SW_, 4)}, {s(sOO)} offen{STO}")
    k("s_mov_b64 exec, 0xffffffff")
    k(f"buffer_store_dwordx2 {v(PL, 2)}, {v(vQ2)}, {s(SW_, 4)}, {s(sQO)} offen{STO}")
    k("s_mov_b64 exec, -1")
    k.label("L_k2_ns")
    stamp(k, 7, lq)
    for f in range(len(WO_POS), 25):
        wo_load(f)
    k(f"s_lshl_b32 {s(t1)}, {s(sW)}, 2")
    k(f"s_add_u32 {s(t1)}, {s(t1)}, {FLG}")
    k(f"v_mov_b32 {v(vt[0])}, {s(t0)}")
    k(f"v_mov_b32 {v(vt[1])}, {s(t1)}")
    k(f"ds_write_b32 {v(vt[1])}, {v(vt[0])}")
    k(f"v_and_b32 {v(vt[4])}, 7, {v(vL)}")
    k(f"v_lshlrev_b32 {v(vt[4])}, 2, {v(vt[4])}")
    k(f"v_add_u32 {v(vt[4])}, {FLG}, {v(vt[4])}")
    k("s_waitcnt lgkmcnt(0)")
    k("s_barrier")
    k(f"ds_read_b32 {v(vt[0])}, {v(vt[4])}")
    k("s_waitcnt lgkmcnt(0)")
    k(f"v_cmp_ne_u32 vcc, 0, {v(vt[0])}")
    k("s_cbranch_vccnz L_k2_fb")
    vOA, vOL, vPRd = vV[0:3]
    vPW = [vV[3], vK1]
    vEW, vER = vK2, vSW
    OF = [[SS[0] + 4 * f for f in range(5)], [SS[0] + 20, SS[0] + 24, SS[0] + 28, P[1], P[1] + 4]]
    assert SS[1] == SS[0] + 16 and O[1] == O[0] + 16 and VF[1] == VF[0] + 4
    AC = [[O[0] + 20 * th + 4 * ct if th * 5 + ct < 8 else VF[th * 5 + ct - 8] for ct in range(5)] for th in range(2)]
    TB = [Q1[0], Q1[0] + 2, Q1[1], Q1[1] + 2, KF1]
    MK = [12, 14, 16, 18, 20]
    k(f"s_memrealtime {s(sT0, 2)}")
    k(f"v_lshrrev_b32 {v(vt[0])}, 4, {v(vL)}")
    k(f"v_and_b32 {v(vt[1])}, 15, {v(vL)}")
    k(f"s_lshl_b32 {s(t0)}, {s(sKH)}, 4")
    k(f"v_add_u32 {v(vt[4])}, {s(t0)}, {v(vt[1])}")
    k(f"v_lshlrev_b32 {v(vOA)}, 9, {v(vt[0])}")
    k(f"v_lshl_add_u32 {v(vOA)}, {v(vt[4])}, 4, {v(vOA)}")

    def o_loads(masked):
        for f in range(5):
            if masked:
                k(f"s_mov_b64 exec, {s(MK[f], 2)}")
            k(f"buffer_load_dwordx4 {v(OF[0][f], 4)}, {v(vOA)}, {s(SW_, 4)}, {s((sOA, sOA2, sOA3)[f // 2])} offen offset:{2048 * (f % 2)} sc1")
        if masked:
            k("s_mov_b64 exec, -1")
    k(f"s_mul_i32 {s(t0)}, {s(sQG)}, {32 * PRS}")
    k(f"s_mul_i32 {s(t1)}, {s(sKH)}, 320")
    k(f"s_add_u32 {s(t0)}, {s(t0)}, {s(t1)}")
    k(f"v_mul_u32_u24 {v(vPW[0])}, {PRS}, {v(vt[4])}")
    k(f"v_lshl_add_u32 {v(vPW[0])}, {v(vt[0])}, 4, {v(vPW[0])}")
    k(f"v_add_u32 {v(vPW[0])}, {s(t0)}, {v(vPW[0])}")
    k(f"s_mul_i32 {s(t1)}, {s(sKH)}, {-32 * PRS}")
    k(f"s_add_u32 {s(t1)}, {s(t1)}, {16 * PRS}")
    k(f"v_add_u32 {v(vPW[1])}, {s(t1)}, {v(vPW[0])}")
    k(f"s_mul_i32 {s(t0)}, {s(sW)}, {4 * PRS}")
    k(f"v_mul_u32_u24 {v(vPRd)}, {PRS}, {v(vt[0])}")
    k(f"v_lshl_add_u32 {v(vPRd)}, {v(vt[1])}, 3, {v(vPRd)}")
    k(f"v_add_u32 {v(vPRd)}, {s(t0)}, {v(vPRd)}")
    k(f"s_mul_i32 {s(t0)}, {s(sW)}, 5120")
    k(f"s_add_u32 {s(t0)}, {s(t0)}, {XCH}")
    k(f"v_add_u32 {v(vEW)}, {s(t0)}, {v(vL16)}")
    k(f"s_xor_b32 {s(t0)}, {s(sW)}, 4")
    k(f"s_mul_i32 {s(t0)}, {s(t0)}, 5120")
    k(f"s_add_u32 {s(t0)}, {s(t0)}, {XCH}")
    k(f"v_add_u32 {v(vER)}, {s(t0)}, {v(vL16)}")
    k(f"v_sub_f32 {v(vt[3])}, 1.0, {v(vG)}")
    for t_ in range(5):
        k(f"v_lshlrev_b32 {v(TB[t_])}, 16, {v(BK[t_])}")
        k(f"v_and_b32 {v(TB[t_] + 1)}, 0xffff0000, {v(BK[t_])}")
    for t_ in range(5):
        for r in range(2):
            k(f"v_mul_f32 {v(TB[t_] + r)}, {v(TB[t_] + r)}, {v(vt[3])}")
    k("s_waitcnt lgkmcnt(0)")
    k(f"s_add_u32 {s(sT0)}, {s(sT0)}, 200000")
    if DLY is None:
        k("s_waitcnt vmcnt(0)")
    elif DLY:
        k(f"s_sleep {DLY}")
    stamp(k, 8, lq)
    o_loads(False)
    k.label("L_k2_pw")
    k(f"s_memrealtime {s(sTMP, 2)}")
    mx = []
    for f in range(5):
        mx += [f"v_bitop3_b32 {v(vt[f])}, {v(OF[0][f])}, {v(OF[0][f] + 2)}, 1 bitop3:0x80"]
    for f in range(5):
        mx += [f"v_cmp_eq_u32 {s(MK[f], 2)}, 0, {v(vt[f])}"]
    k("s_waitcnt vmcnt(0) lgkmcnt(0)")
    k(f"s_sub_u32 {s(sTMP)}, {s(sTMP)}, {s(sT0)}")

    def pw(th, ct):
        k(f"ds_write_b128 {v(vPW[th])}, {v(AC[th][ct], 4)} offset:{64 * ct}")
    for th in range(2):
        for ks in range(5):
            for ct in range(5):
                if th == 1 and ct == 0:
                    k(f"s_waitcnt lgkmcnt({(4, 3, 7, 6, 5)[ks]})")
                k(f"v_mfma_f32_16x16x32_bf16 {v(AC[th][ct], 4)}, {v(WOF[5 * ks + ct], 4)}, {v(OF[th][ks], 4)}, " + ("0" if ks == 0 else v(AC[th][ct], 4)))
                for _ in range(2):
                    if mx:
                        k(mx.pop(0))
                if th == 0 and ks == 0 and ct == 4:
                    assert not mx
                    k(f"s_or_b64 vcc, {s(MK[0], 2)}, {s(MK[1], 2)}")
                    k(f"s_or_b64 vcc, vcc, {s(MK[2], 2)}")
                    k(f"s_or_b64 vcc, vcc, {s(MK[3], 2)}")
                    k(f"s_or_b64 vcc, vcc, {s(MK[4], 2)}")
                    k("s_cbranch_scc0 L_k2_ok")
                    k(f"s_cmp_ge_i32 {s(sTMP)}, 0")
                    k("s_cbranch_scc1 L_k2_ok")
                    if PSL:
                        k(f"s_sleep {PSL}")
                    o_loads(True)
                    k("s_branch L_k2_pw")
                    k.label("L_k2_ok")
                    stamp(k, 9, lq)
                if th == 0 and ks == 1:
                    k(f"ds_write_b128 {v(vEW)}, {v(OF[0][ct], 4)} offset:{1024 * ct}")
                if th == 0 and (ks, ct) == XB_POS:
                    k("s_waitcnt lgkmcnt(0)")
                    k("s_barrier")
                    for f in range(5):
                        k(f"ds_read_b128 {v(OF[1][f], 4)}, {v(vER)} offset:{1024 * f}")
                if th == 1 and ks == 1:
                    pw(0, ct)
    for ct in range(5):
        pw(1, ct)
    k("s_waitcnt lgkmcnt(0)")
    k("s_barrier")
    stamp(k, 10, lq)
    R = lambda t_, q: SS[0] + 8 * t_ + 2 * q if t_ < 4 else P[1] + 2 * q
    lq.q = []
    for t_ in range(5):
        for q in range(4):
            lq.issue(f"r{t_}", f"ds_read_b64 {v(R(t_, q), 2)}, {v(vPRd)} offset:{q * 32 * PRS + 128 * t_}")
    for t_ in range(5):
        lq.wait(f"r{t_}")
        k(f"v_pk_add_f32 {v(R(t_, 0), 2)}, {v(R(t_, 0), 2)}, {v(R(t_, 1), 2)}")
        k(f"v_pk_add_f32 {v(R(t_, 2), 2)}, {v(R(t_, 2), 2)}, {v(R(t_, 3), 2)}")
        k(f"v_pk_add_f32 {v(R(t_, 0), 2)}, {v(R(t_, 0), 2)}, {v(R(t_, 2), 2)}")
        for r in range(2):
            k(f"v_fmac_f32 {v(TB[t_] + r)}, {v(R(t_, 0) + r)}, {v(vG)}")
        k(f"v_cvt_pk_bf16_f32 {v(TB[t_])}, {v(TB[t_])}, {v(TB[t_] + 1)}")
        k(f"buffer_store_dword {v(TB[t_])}, {v(vBS)}, {s(SOUT, 4)}, {s(sBO)} offen offset:{64 * t_}{STOUT}")
    endpgm(k, 1, 8)

    k.label("L_k2_fb")
    MX = [RT + 12, RT + 13]
    k("s_waitcnt vmcnt(0) lgkmcnt(0)")
    k(f"s_mov_b32 {s(sPASS)}, 1")
    for qt in range(2):
        k(f"v_mov_b32 {v(MX[qt])}, 0xff800000")
    k(f"s_mov_b32 {s(t1)}, 0x108")
    k(f"s_mov_b32 {s(t0)}, {f32(65535.0 / 1024.0)}")

    def sweep(lab, body):
        k(f"s_mov_b32 {s(sCNT)}, 0")
        k(f"s_mov_b32 {s(sKO)}, 0")
        k.label(lab)
        k("s_waitcnt lgkmcnt(0)")
        k("s_barrier")
        k(f"s_mov_b32 m0, {s(sM0)}")
        for j in range(3):
            k(f"buffer_load_dwordx4 {v(vD[j])}, {s(SW_, 4)}, {s(sKO)} offen offset:{1024 * j} lds")
        if body is bexp:
            k(f"s_add_u32 m0, {s(sM0)}, {4 * TS}")
            k(f"s_add_u32 {s(t2)}, {s(sKO)}, {VDELTA}")
            for j in (1, 2):
                k(f"buffer_load_dwordx4 {v(vD[j])}, {s(SW_, 4)}, {s(t2)} offen offset:{1024 * j} lds")
        k(f"s_add_u32 {s(sKO)}, {s(sKO)}, {8 * TT_QKV}")
        k("s_waitcnt vmcnt(0)")
        k("s_barrier")
        for j in range(4):
            kread(j)
            if body is bexp:
                vread(j)
                for q in range(4):
                    k(f"ds_read_b64_tr_b16 {v(P[0] + 2 * q, 2)}, {v(vV[q])} offset:{toff(4 + j)}")
            k("s_waitcnt lgkmcnt(0)")
            if body is bexp:
                for r in range(8):
                    A, B = VF[0] + r, P[0] + r
                    k(f"v_cvt_f32_f16 {v(vt[0])}, {v(A)}")
                    k(f"v_lshlrev_b32 {v(vt[1])}, 16, {v(B)}")
                    k(f"v_cmp_class_f16 vcc, {v(A)}, {s(t1)}")
                    k(f"v_cndmask_b32 {v(vt[0])}, {v(vt[1])}, {v(vt[0])}, vcc")
                    k(f"v_lshrrev_b32 {v(A)}, 16, {v(A)}")
                    k(f"v_cvt_f32_f16 {v(vt[2])}, {v(A)}")
                    k(f"v_and_b32 {v(vt[1])}, 0xffff0000, {v(B)}")
                    k(f"v_cmp_class_f16 vcc, {v(A)}, {s(t1)}")
                    k(f"v_cndmask_b32 {v(vt[2])}, {v(vt[1])}, {v(vt[2])}, vcc")
                    k(f"v_cvt_pk_bf16_f32 {v(A)}, {v(vt[0])}, {v(vt[2])}")
            for qt in range(2):
                for t in qk(qt):
                    k(t)
            for qt in range(2):
                body(qt)
        k(f"s_add_u32 {s(sCNT)}, {s(sCNT)}, 1")
        k(f"s_cmp_lt_u32 {s(sCNT)}, 8")
        k(f"s_cbranch_scc1 {lab}")

    def bmax(qt):
        for r in range(0, 16, 2):
            k(f"v_max3_f32 {v(MX[qt])}, {v(MX[qt])}, {v(SS[qt] + r)}, {v(SS[qt] + r + 1)}")

    def bexp(qt):
        for r in range(16):
            k(f"v_sub_f32 {v(SS[qt] + r)}, {v(SS[qt] + r)}, {v(MX[qt])}")
        for r in range(16):
            k(f"v_mul_f32 {v(SS[qt] + r)}, {s(t0)}, {v(SS[qt] + r)}")
        for r in range(16):
            k(f"v_exp_f32 {v(SS[qt] + r)}, {v(SS[qt] + r)}")
        for c in range(8):
            k(f"v_cvt_pk_bf16_f32 {v(P[qt] + c)}, {v(SS[qt] + 2 * c)}, {v(SS[qt] + 2 * c + 1)}")
        for t in pv(qt, False, MF32):
            k(t)
    sweep("L_k2_mx", bmax)
    k(f"ds_write_b32 {v(vXW)}, {v(MX[1])}")
    k(f"ds_write_b32 {v(vXW)}, {v(MX[0])} offset:4")
    k("s_waitcnt lgkmcnt(0)")
    k("s_barrier")
    k(f"ds_read_b64 {v(KF2, 2)}, {v(vXR)}")
    for qt in range(2):
        for r in range(16):
            k(f"v_mov_b32 {v(O[qt] + r)}, 0")
    k("s_waitcnt lgkmcnt(0)")
    for qt in range(2):
        m = MX[qt]
        k(f"v_max_f32 {v(m)}, {v(m)}, {v(KF2 + qt)}")
        k(f"v_mov_b32 {v(vt[0])}, {v(m)}")
        k(f"v_permlane32_swap_b32 {v(vt[0])}, {v(m)}")
        k(f"v_max_f32 {v(m)}, {v(m)}, {v(vt[0])}")
    sweep("L_k2_ex", bexp)
    for r in range(3):
        k(f"ds_write_b128 {v(vXW)}, {v(O[0] + 4 * r, 4)} offset:{1024 * r}")
    k(f"ds_write_b32 {v(vXW)}, {v(O[0] + 12)} offset:3072")
    k("s_branch L_k2_mg")
    k.label("L_k2_end")
    k("s_endpgm")
    return name, va.hi, 52
```

```python
from common import *
from k1v8 import gen_k1
from k2v5 import gen_k2, LDS2
if __name__ == "__main__":
    launches = [
        "; @launch kernel=k1_kernel grid=(256,1,1) block=(768,1,1) lds=163840",
        f"; @launch kernel=k2_kernel grid=(256,1,1) block=(512,1,1) lds={LDS2}",
    ]
    write(sys.argv[1] if len(sys.argv) > 1 else f"cdna_kernels/{NAME}.s", launches, (gen_k1, gen_k2))
```

```python
import re

TRANS = ("v_exp_f32", "v_log_f32", "v_rcp_f32", "v_rsq_f32", "v_sqrt_f32", "v_sin_f32", "v_cos_f32",
         "v_exp_f16", "v_rcp_f16", "v_rcp_iflag_f32")

_REG = re.compile(r"^(-|\|)?(abs\()?([vas])(?:(\d+)|\[(\d+):(\d+)\])\)?\|?$")


def regs_of(tok):
    tok = tok.strip()
    if tok in ("vcc", "vcc_lo", "vcc_hi"):
        return {("s", 106), ("s", 107)}
    if tok in ("exec", "exec_lo", "exec_hi"):
        return {("s", 126), ("s", 127)}
    if tok == "m0":
        return {("s", 124)}
    m = _REG.match(tok)
    if not m:
        return set()
    f = m.group(3)
    if m.group(4) is not None:
        return {(f, int(m.group(4)))}
    return {(f, i) for i in range(int(m.group(5)), int(m.group(6)) + 1)}


def split_ops(s):
    out, depth, cur = [], 0, ""
    for ch in s:
        if ch in "[(":
            depth += 1
        if ch in "])":
            depth -= 1
        if ch == "," and depth == 0:
            out.append(cur.strip())
            cur = ""
        else:
            cur += ch
    if cur.strip():
        out.append(cur.strip())
    return out


class Ins:
    __slots__ = ("text", "mn", "ops", "mods", "defs", "uses", "cls", "passes", "a", "b", "c", "ws", "label",
                 "target", "data", "dpp", "sdwa", "lds")

    def __init__(self, text):
        self.text = text
        self.label = None
        self.target = None
        code = text.split(";")[0].strip()
        self.defs, self.uses = set(), set()
        self.cls = None
        self.passes = 0
        self.a = self.b = self.c = set()
        self.data = set()
        self.ws = 1
        self.dpp = self.sdwa = self.lds = False
        if not code or code.startswith("."):
            self.cls = "none"
            self.ws = 0
            self.mn = ""
            return
        if code.endswith(":"):
            self.cls = "label"
            self.label = code[:-1]
            self.ws = 0
            self.mn = ""
            return
        parts = code.split(None, 1)
        mn = parts[0]
        self.mn = mn
        rest = parts[1] if len(parts) > 1 else ""
        ops = split_ops(rest)
        mods = []
        if ops:
            last = ops[-1].split()
            ops[-1] = last[0]
            mods = last[1:]
        self.ops, self.mods = ops, mods
        R = [regs_of(o) for o in ops]
        allr = lambda rs: set().union(*rs) if rs else set()
        if mn.startswith("v_mfma"):
            self.cls = "mfma"
            self.passes = 8 if "32x32" in mn else 4
            self.defs = R[0]
            self.a, self.b, self.c = R[1], R[2], R[3]
            self.uses = R[1] | R[2] | R[3]
        elif mn.startswith("v_"):
            self.cls = "valu"
            base = mn.replace("_e32", "").replace("_e64", "")
            self.dpp = "_dpp" in mn or any(m.startswith(("row_", "quad_perm", "wave_")) for m in mods)
            self.sdwa = "_sdwa" in mn or any(m.startswith("op_sel:") for m in mods)
            if base.startswith(("v_permlane", "v_swap")):
                self.defs = R[0] | R[1]
                self.uses = R[0] | R[1]
            elif base.startswith(("v_add_co", "v_sub_co", "v_subrev_co", "v_addc_co", "v_subb_co", "v_div_scale",
                                  "v_mad_u64_u32")):
                self.defs = R[0] | R[1]
                self.uses = allr(R[2:])
            else:
                self.defs = R[0]
                self.uses = allr(R[1:])
                if base.startswith(("v_fmac", "v_pk_fmac", "v_dot2c", "v_writelane")) or self.sdwa or self.dpp:
                    self.uses |= R[0]
                if base.startswith("v_cmpx"):
                    self.defs |= regs_of("exec")
            if base.split("_dpp")[0].split("_sdwa")[0] in TRANS:
                self.cls = "trans"
        elif mn.startswith("ds_"):
            self.cls = "ds"
            if mn.startswith(("ds_read", "ds_bpermute", "ds_permute", "ds_swizzle")) or "_rtn" in mn:
                self.defs = R[0]
                self.uses = allr(R[1:])
            else:
                self.uses = allr(R)
        elif mn.startswith(("buffer_", "global_", "flat_")):
            self.cls = "vmem"
            self.lds = "lds" in mods or "_lds_" in mn
            if self.lds:
                self.uses = allr(R) | regs_of("m0")
            elif "_load" in mn:
                self.defs = R[0]
                self.uses = allr(R[1:])
            elif "_store" in mn or "atomic" in mn:
                self.uses = allr(R)
                d = R[0] if mn.startswith("buffer_") else R[1]
                if "x3" in mn or "x4" in mn:
                    self.data = d
                if "atomic" in mn and "sc0" in mods:
                    self.defs = R[0]
            else:
                self.uses = allr(R)
        elif mn.startswith("s_"):
            self.cls = "salu"
            if mn == "s_nop":
                self.ws = int(ops[0], 0) + 1
            elif "; warm" in text:
                pass
            elif mn.startswith(("s_branch", "s_cbranch")):
                self.cls = "branch"
                self.target = ops[0]
            elif mn.startswith(("s_cmp", "s_waitcnt", "s_barrier", "s_endpgm", "s_setprio", "s_sleep", "s_bitcmp")):
                self.uses = allr(R)
            else:
                self.defs = R[0] if R else set()
                self.uses = allr(R[1:])
                if "saveexec" in mn:
                    self.defs |= regs_of("exec")
        else:
            raise ValueError("unknown instruction: " + text)


def vg(s):
    return {r for r in s if r[0] in "va"}


def sg(s):
    return {r for r in s if r[0] == "s"}


def need(p, c):
    n = 0
    pv = p.cls in ("valu", "trans")
    cv = c.cls in ("valu", "trans")
    if pv:
        d = vg(p.defs)
        if c.cls == "mfma" and d & c.uses:
            n = max(n, 2)
        if p.cls == "trans" and c.cls == "valu" and d & c.uses:
            n = max(n, 1)
        if cv and c.dpp and d & c.uses:
            n = max(n, 2)
        if cv and c.mn.startswith("v_permlane") and d & c.uses:
            n = max(n, 2)
        if cv and c.mn.startswith(("v_readlane", "v_readfirstlane")) and d & c.uses:
            n = max(n, 1)
        if p.sdwa and cv and d & (c.uses | c.defs):
            n = max(n, 1)
        if p.mn.startswith("v_dot") and (cv or c.cls in ("mfma", "vmem", "ds")) and d & (c.uses | c.defs):
            if not (c.mn == p.mn and not (d & (c.uses - c.defs))):
                n = max(n, 3)
        ds_ = sg(p.defs)
        if ds_:
            if cv and ds_ & c.uses:
                n = max(n, 4 if c.mn.startswith(("v_readlane", "v_writelane")) else 2)
            if c.cls == "vmem" and ds_ & c.uses:
                n = max(n, 5)
            if c.cls in ("salu", "branch") and ds_ & c.uses:
                n = max(n, 1)
            if ds_ & regs_of("exec"):
                if c.cls == "mfma" or (cv and (c.dpp or c.mn.startswith(("v_readlane", "v_readfirst", "v_permlane")))):
                    n = max(n, 5)
            if ds_ & regs_of("vcc") and c.mn.startswith("v_div_fmas"):
                n = max(n, 4)
            if ds_ & regs_of("vcc") and c.mn.startswith("s_cbranch_vcc"):
                n = max(n, 1)
    if p.cls == "mfma":
        big = {4: 8, 8: 12}[p.passes]
        d = p.defs
        if c.cls == "mfma":
            if d & (c.a | c.b):
                n = max(n, big)
            if d & c.c:
                if not (c.c == d and c.passes == p.passes):
                    n = max(n, p.passes + 2)
            if d & c.defs and not (c.c == d):
                n = max(n, p.passes + 2)
        elif cv or c.cls in ("vmem", "ds"):
            if d & (c.uses | c.defs):
                n = max(n, big)
        if cv and p.c & c.defs:
            n = max(n, {4: 3, 8: 7}[p.passes])
        if c.cls in ("ds", "vmem") and (p.c & c.defs):
            n = max(n, {4: 3, 8: 7}[p.passes])
    if p.cls == "salu" and regs_of("m0") & p.defs and c.cls == "vmem" and c.lds:
        n = max(n, 1)
    if p.cls == "vmem" and p.data:
        if cv and p.data & c.defs:
            n = max(n, 2)
        elif p.data & c.defs:
            n = max(n, 1)
    return n


WINDOW = 14


class Asm:
    def __init__(self):
        self.lines = []

    wn = 0
    wc = 0
    wi = 0

    def stub(self):
        self.lines.append(f"L_warm{self.wi}:")
        self.lines.append(f"s_cbranch_execz L_warm{self.wi + 1} ; warm")
        self.wi += 1
        self.wc = 0

    def __call__(self, text):
        for t in text.split("\n"):
            t = t.strip()
            if t:
                self.lines.append(t)
                if self.wn:
                    self.wc += 1
                    if self.wc >= self.wn:
                        self.stub()

    def label(self, name):
        self.lines.append(name + ":")

    def comment(self, s):
        self.lines.append("; " + s)

    def finalize(self):
        ins = [Ins(t) for t in self.lines]
        for _ in range(20):
            changed = False
            labels = {x.label: i for i, x in enumerate(ins) if x.cls == "label"}
            preds = {}
            for i, x in enumerate(ins):
                if x.cls == "branch" and x.target in labels:
                    preds.setdefault(labels[x.target], []).append(i)

            def back(i, dist, acc, seen):
                j = i - 1
                while j >= 0 and dist <= WINDOW:
                    x = ins[j]
                    if x.cls == "label":
                        for b in preds.get(j, []):
                            if (b, dist) not in seen:
                                seen.add((b, dist))
                                acc.append((ins[b], dist))
                                back(b, dist + 1, acc, seen)
                    elif x.cls == "none":
                        pass
                    else:
                        if x.mn in ("s_branch", "s_endpgm", "s_setpc_b64"):
                            return
                        acc.append((x, dist))
                        dist += x.ws
                    j -= 1

            i = 0
            while i < len(ins):
                c = ins[i]
                if c.cls in ("none", "label"):
                    i += 1
                    continue
                acc = []
                back(i, 0, acc, set())
                pad = 0
                for p, dist in acc:
                    n = need(p, c)
                    if n > dist:
                        pad = max(pad, n - dist)
                if pad:
                    ins.insert(i, Ins(f"s_nop {pad - 1} ; hz"))
                    changed = True
                    labels = {x.label: k for k, x in enumerate(ins) if x.cls == "label"}
                    preds = {}
                    for k, x in enumerate(ins):
                        if x.cls == "branch" and x.target in labels:
                            preds.setdefault(labels[x.target], []).append(k)
                    i += 1
                i += 1
            if not changed:
                break
        out = []
        for x in ins:
            if x.cls == "label" or x.text.startswith("."):
                out.append(x.text)
            else:
                out.append("    " + x.text)
        return "\n".join(out) + "\n"


def v(i, n=1):
    return f"v{i}" if n == 1 else f"v[{i}:{i + n - 1}]"


def a(i, n=1):
    return f"a{i}" if n == 1 else f"a[{i}:{i + n - 1}]"


def s(i, n=1):
    return f"s{i}" if n == 1 else f"s[{i}:{i + n - 1}]"


class Alloc:
    def __init__(self, start, limit):
        self.cur, self.limit = start, limit
        self.hi = start

    def __call__(self, n=1, align=None):
        if align is None:
            align = 1 if n == 1 else (2 if n < 4 else 4)
        self.cur = (self.cur + align - 1) // align * align
        r = self.cur
        self.cur += n
        assert self.cur <= self.limit, f"register overflow {self.cur} > {self.limit}"
        self.hi = max(self.hi, self.cur)
        return r
```

```python
import sys, struct, math, os
sys.path.insert(0, "gen")
from asmgen import Asm, Alloc, v, s, a

NAME = "gated_mix__mha_block__geglu_ffn__prompt"
S_, D_, H_, DH, F_ = 2048, 640, 32, 20, 1536
KA_X, KA_WQKV, KA_WO, KA_BX, KA_WG, KA_WU, KA_WD, KA_GW, KA_OUT, KA_DBG, KA_WS = [8 * i for i in range(11)]
DIAG = int(os.environ.get("DIAG", "0"))
DIAG_BASE = 0x2000000
NST = 12
LOG2E = math.log2(math.e)
QSCALE = LOG2E / math.sqrt(DH)
OOB = 0x40000000


def f32(x):
    return "0x%08x" % struct.unpack("<I", struct.pack("<f", x))[0]


class Q:
    def __init__(self, k, cnt, cap):
        self.k, self.cnt, self.cap = k, cnt, cap
        self.q = []

    def issue(self, tag, text):
        self.k(text)
        self.q.append(tag)

    def need(self, *tags):
        idx = -1
        for i, t in enumerate(self.q):
            if t in tags:
                idx = i
        if idx < 0:
            return None
        n = len(self.q) - 1 - idx
        if n > self.cap:
            idx += n - self.cap
            n = self.cap
        self.q = self.q[idx + 1:]
        return n

    def wait(self, *tags):
        n = self.need(*tags)
        if n is not None:
            self.k(f"s_waitcnt {self.cnt}({n})")

    def all(self):
        n = 0 if self.q else None
        self.q = []
        return n


def waits(k, lg=None, vm=None):
    parts = []
    if vm is not None:
        parts.append(f"vmcnt({vm})")
    if lg is not None:
        parts.append(f"lgkmcnt({lg})")
    if parts:
        k("s_waitcnt " + " ".join(parts))


def srd(k, d, base, size):
    k(f"s_mov_b32 {s(d)}, {s(base)}")
    k(f"s_and_b32 {s(d + 1)}, {s(base + 1)}, 0xffff")
    k(f"s_mov_b32 {s(d + 2)}, {size}")
    k(f"s_mov_b32 {s(d + 3)}, 0x00020000")


TICKET = int(os.environ.get("TICKET", "0"))


def ticket(k, nm, ka, base, stride, size, lds):
    if not TICKET:
        return
    k(f"s_load_dwordx2 s[40:41], s[0:1], {ka}")
    k("s_getreg_b32 s42, hwreg(HW_REG_XCC_ID)")
    k("v_cmp_eq_u32 vcc, 0, v0")
    k(f"v_mov_b32 v1, {lds}")
    k(f"s_cbranch_vccz L_{nm}_tw")
    k("s_and_b32 s42, s42, 7")
    k("s_lshl_b32 s42, s42, 2")
    k("s_lshr_b32 s43, s2, 6")
    k("s_add_u32 s42, s42, s43")
    k("s_mov_b32 s43, 0")
    k("s_mov_b64 exec, 1")
    k("s_waitcnt lgkmcnt(0)")
    srd(k, 44, 40, size)
    k.label(f"L_{nm}_tl")
    k(f"s_mul_i32 s48, s42, {stride}")
    if base:
        k(f"s_add_u32 s48, s48, {base}")
    k("v_mov_b32 v2, 1")
    k("buffer_atomic_add v2, off, s[44:47], s48 sc0")
    k("s_lshr_b32 s48, s42, 2")
    k("s_and_b32 s41, s42, 3")
    k("s_lshl_b32 s41, s41, 6")
    k("s_add_u32 s48, s48, s41")
    k("s_add_u32 s42, s42, 1")
    k("s_and_b32 s42, s42, 31")
    k("s_add_u32 s43, s43, 1")
    k("s_waitcnt vmcnt(0)")
    k("v_readfirstlane_b32 s49, v2")
    k("v_lshl_add_u32 v2, v2, 3, s48")
    k("s_cmp_lt_u32 s49, 8")
    k(f"s_cbranch_scc1 L_{nm}_tp")
    k("s_cmp_lt_u32 s43, 32")
    k(f"s_cbranch_scc1 L_{nm}_tl")
    k("v_mov_b32 v2, s2")
    k.label(f"L_{nm}_tp")
    k("ds_write_b32 v1, v2")
    k("s_mov_b64 exec, -1")
    k("s_waitcnt lgkmcnt(0)")
    k.label(f"L_{nm}_tw")
    k("s_barrier")
    k("ds_read_b32 v2, v1")
    k("s_waitcnt lgkmcnt(0)")
    k("v_readfirstlane_b32 s2, v2")


def diag_begin(k):
    if not DIAG:
        return
    k(f"s_load_dwordx2 s[88:89], s[0:1], {KA_WS}")
    k("s_memrealtime s[86:87]")
    k("s_memtime s[60:61]")
    for i in range(1, NST):
        k(f"s_mov_b32 s{60 + 2 * i}, 0")
    k("s_waitcnt lgkmcnt(0)")
    k("s_memtime s[80:81]")
    k("s_mov_b32 s92, s88")
    k("s_and_b32 s93, s89, 0xffff")
    k("s_mov_b32 s94, 0x4000000")
    k("s_mov_b32 s95, 0x00020000")
    k("v_lshrrev_b32 v1, 6, v0")
    k("s_nop 1")
    k("v_readfirstlane_b32 s85, v1")


def stamp(k, i, lq=None):
    if not DIAG:
        return
    k(f"{'s_memrealtime' if DIAG == 2 else 's_memtime'} s[{60 + 2 * i}:{61 + 2 * i}]")
    k("s_waitcnt lgkmcnt(0)")
    if lq is not None:
        lq.q = []


def endpgm(k, kid, wpw, slp=0):
    if DIAG:
        k("s_waitcnt vmcnt(0)")
        k(f"s_memtime s[{60 + 2 * (NST - 1)}:{61 + 2 * (NST - 1)}]")
        k("s_memrealtime s[88:89]")
        k("s_getreg_b32 s90, hwreg(HW_REG_HW_ID)")
        k("s_getreg_b32 s91, hwreg(HW_REG_XCC_ID)")
        k("s_waitcnt lgkmcnt(0)")
        for _ in range(slp):
            k("s_sleep 127")
        k("s_mov_b64 exec, 1")
        k(f"s_mul_i32 s84, s2, {wpw}")
        k("s_add_u32 s84, s84, s85")
        k("s_lshl_b32 s84, s84, 6")
        k(f"s_add_u32 s84, s84, {DIAG_BASE + kid * 0x80000}")
        k("v_mov_b32 v1, 0")
        for i in range(NST):
            k(f"v_mov_b32 v{4 + i}, s{60 + 2 * i}")
        k("v_mov_b32 v16, s86")
        k("v_mov_b32 v17, s88")
        k("v_mov_b32 v18, s90")
        k("v_mov_b32 v19, s91")
        for j in range(4):
            k(f"buffer_store_dwordx4 v[{4 + 4 * j}:{7 + 4 * j}], v1, s[92:95], s84 offen offset:{16 * j}")
    k("s_endpgm")


def kernel_head(k, name):
    k(".text")
    k(f".globl {name}")
    k(".p2align 8")
    k(f".type {name},@function")
    k.label(name)


def kernel_desc(name, nv, ns, accum=None):
    if accum is None:
        accum = (nv + 3) // 4 * 4
    if DIAG:
        ns = max(ns, 100)
    return f""".section .rodata,"a"
.p2align 6
.amdhsa_kernel {name}
  .amdhsa_next_free_vgpr {nv}
  .amdhsa_next_free_sgpr {ns}
  .amdhsa_accum_offset {accum}
  .amdhsa_group_segment_fixed_size 0
  .amdhsa_kernarg_size 88
  .amdhsa_user_sgpr_count 2
  .amdhsa_user_sgpr_kernarg_segment_ptr 1
  .amdhsa_system_sgpr_workgroup_id_x 1
.end_amdhsa_kernel
"""


def write(out, launches, gens):
    hdr = open(f"cdna_kernels/{NAME}.s.ref").read().split("\n")
    hdr = [l for l in hdr if l.startswith(";") and "@launch" not in l and "Override launch" not in l
           and "grid=ceil" not in l]
    text = "\n".join(hdr + launches) + "\n" + '.amdgcn_target "amdgcn-amd-amdhsa--gfx950"\n'
    descs = ""
    for g in gens:
        k = Asm()
        name, nv, ns = g(k)
        t = k.finalize()
        text += t
        descs += kernel_desc(name, nv, ns)
        print(name, "vgprs", nv, "lines", t.count("\n"), "nops", t.count("; hz"))
    open(out, "w").write(text + descs)
```

```python
from common import *
from gen3 import WS_QKV, TT_QKV, WS_H, TT_H, WS_G, WS_SIZE, MF32, GK1, GK2, VDELTA
QS16 = QSCALE * 1024.0 / 65535.0
E = lambda n, d: eval(os.environ.get(n, d))
ST = " sc1"
TAG = (0, 2)
LAG = E("LAG", "12")
T_ = 20 + LAG
UB = E("UB", "T_ - 4")
BARS = sorted(set(E("BARS", "range(-1, UB + 1)")) | {-1, UB})
PUB = E("PUB", "26")
CKU = E("CKU", "22")
KVB = E("KVB", "UB")
X3B = E("X3B", "20")
LEADC = E("LEADC", "2800")
MAXB = E("MAXB", "{-2: 40, -1: 28, 0: 24, 1: 36}")
MAXD = E("MAXD", "44")
NWF = E("NWF", "10")
NW2 = E("NW2", "6")
DIST = E("DIST", "99")
QP = E("QP", "(1, 3, 5)")
GSP = E("GSP", "10")
GWU = E("GWU", "2")
GXU = E("GXU", "14")
GCU = E("GCU", "17")
ROT = E("ROT", "1")
RTAB = E("RTAB", "None")
P1ST = E("P1ST", "[]")
PK = E("PK", "1")
AT0 = E("AT0", "4")
ATN = E("ATN", "14")
DLY = E("DLY", "0")
PF = E("PF", "0")
PFL = E("PFL", "[-8, -12, -1, 0, 1, 2, 3]")
PFG = E("PFG", "range(0, 10)")
if E("P2ST", "0"):
    def stamp(*a):
        pass
sWID = 96
WS_MB = 0x1540000
XSL = [13, 17, 21, 25]
assert LAG % 2 == 0 and PUB in BARS and CKU in BARS and CKU < PUB <= UB


def tiles(s_):
    return ([0, 1] if s_ >= LAG else []) + ([2, 3, 4] if s_ < 20 else [])


def pub(s_):
    return max(u for u in BARS if u <= s_ - 1)


def freeb(s_):
    return min([u for u in BARS if u >= s_ + 1] + [999])


BLK = E("BLK", "(3, 3, 4)")
CAPK = E("CAPK", "44")
LATC = E("LATC", "1200")
LATW = E("LATW", "400")
BWC = E("BWC", "88")
BWW = E("BWW", "54")
MRGW = E("MRGW", "100")
MRGC = E("MRGC", "400")
X3W = E("X3W", "8")
BLK = tuple(BLK) + tuple(E("BLK2", "(LAG // 2,)"))
BST = [sum(BLK[:i]) for i in range(len(BLK))]
assert sum(BLK) == T_ // 2 <= 16 and 10 in BST and LAG // 2 in BST


def plan():
    tm = [0]
    for s_ in range(T_):
        tm.append(tm[-1] + 128 * len(tiles(s_)))
    tb = lambda u: tm[max(u, 0)]
    free = {b: -2 for b in range(40)}
    lim = {b: 999 for b in range(40)}
    for b in range(33, 40):
        lim[b] = KVB
    for b in range(25, 29):
        lim[b] = X3B
    for b in range(0, 3):
        lim[b] = UB
    wpool = list(range(0, 13)) + list(range(25, 40))
    xs = [("x", c) for c in range(T_ // 2)]
    ws = []
    for s_ in range(T_):
        ws += ([("b", s_)] if s_ >= LAG else []) + ([("a", s_)] if s_ < 20 else [])
    stage = lambda it: 2 * it[1] if it[0] == "x" else it[1]
    last = lambda it: 2 * it[1] + 1 if it[0] == "x" else it[1]
    size = lambda it: {"x": 4, "a": 3, "b": 2}[it[0]]
    cold = lambda it: stage(it) // 2 in BST and (it[0] == "b" or stage(it) < 20)
    sched, where, land = {}, {}, {}
    pend, order = [], []
    bl = []
    now, tbar = 0, {}
    US = [-2] + BARS
    for iu, u in enumerate(US):
        tbar[u] = now
        nxt = US[iu + 1] if iu + 1 < len(US) else 999
        pend = [it for it in pend if pub(stage(it)) > u]
        ok = {"x": True, "w": True}
        tn = lambda: max([tbar[u] + tb(min(nxt, T_)) - tb(u)] + [land[p] for p in order if pub(stage(p)) <= nxt])
        while True:
            c = [l[0] for l, t in ((xs, "x"), (ws, "w")) if l and ok[t]]
            if not c:
                break
            it = min(c, key=lambda it: (stage(it), it[0] != "x"))
            t = "x" if it[0] == "x" else "w"
            must = nxt >= pub(stage(it))
            nb, ti = list(bl), now
            risk = 0
            lastreq = max([_i for _i, x in enumerate(bl) if pub(stage(x[1])) <= nxt] + [-1])
            for _ in range(size(it)):
                o = len(nb) - CAPK // 4
                if o >= 0:
                    ti = max(ti, nb[o][0])
                    if o > lastreq:
                        risk = max(risk, nb[o][0] + (MRGC if nb[o][2] > lastreq else MRGW))
                ti += 30
                l0, l1 = ti + (LATC if cold(it) else LATW), (nb[-1][0] if nb else 0) + (BWC if cold(it) else BWW)
                nb.append((max(l0, l1), it, len(nb) if cold(it) else (-1 if l0 >= l1 else nb[-1][2])))
            blk = None
            if max(ti, risk) > tn() and not must:
                break
            if (tm[stage(it)] - tb(u) <= LEADC and 2 * sum(size(p) for p in pend + [it]) <= 60) or must:
                if t == "x":
                    f = [b for b in XSL if all(free[b + i] <= u for i in range(4)) and (b != 25 or u >= X3B or freeb(last(it)) <= X3W)]
                    if f:
                        blk = [f[-1 if u < X3W else 0] + i for i in range(4)]
                else:
                    f = [b for b in wpool if free[b] <= u and freeb(last(it)) <= lim[b] and (u >= X3W or not 25 <= b < 29)]
                    f.sort(key=lambda b: (lim[b], -b))
                    if len(f) >= size(it):
                        blk = f[:size(it)]
            if blk is None:
                assert not must, (u, it)
                ok[t] = False
                continue
            for b in blk:
                free[b] = freeb(last(it))
            where[it] = blk
            bl, now = nb, ti
            land[it] = nb[-1][0]
            order.append(it)
            sched.setdefault(u, []).append(it)
            pend.append(it)
            (xs if t == "x" else ws).pop(0)
        now = max(now, tn())
    assert not xs and not ws, (xs, ws)
    assert all(free[b] <= UB for b in (0, 1, 2)) and all(free[b] <= KVB for b in range(33, 40))
    if os.environ.get("SHOW"):
        for u in US:
            print(u, tbar[u], " ".join(f"{a}{b}{'*' * cold((a, b))}@{where[(a, b)][0]}({tbar[pub(stage((a, b)))] - land[(a, b)]})" for a, b in sched.get(u, [])))
    return sched, where


def gelu_ops(G, U, Z, sK2, vK1):
    ops = []
    for b in range(0, 8, 4):
        R, R2 = range(b, b + 4), range(b, b + 4, 2)
        if PK:
            ops += [f"v_pk_mul_f32 {v(Z + r, 2)}, {v(G + r, 2)}, {v(G + r, 2)}" for r in R2]
            ops += [f"v_pk_fma_f32 {v(Z + r, 2)}, {v(Z + r, 2)}, {s(sK2, 2)}, {v(vK1, 2)} op_sel_hi:[1,0,0]" for r in R2]
            ops += [f"v_pk_mul_f32 {v(Z + r, 2)}, {v(Z + r, 2)}, {v(G + r, 2)}" for r in R2]
            ops += [f"v_exp_f32 {v(Z + r)}, {v(Z + r)}" for r in R]
            ops += [f"v_pk_mul_f32 {v(G + r, 2)}, {v(G + r, 2)}, {v(U + r, 2)}" for r in R2]
            ops += [f"v_pk_add_f32 {v(Z + r, 2)}, {v(Z + r, 2)}, 1.0 op_sel_hi:[1,0]" for r in R2]
            ops += [f"v_rcp_f32 {v(Z + r)}, {v(Z + r)}" for r in R]
            ops += [f"v_pk_mul_f32 {v(G + r, 2)}, {v(G + r, 2)}, {v(Z + r, 2)}" for r in R2]
        else:
            ops += [f"v_mul_f32 {v(Z + r)}, {v(G + r)}, {v(G + r)}" for r in R]
            ops += [f"v_fma_f32 {v(Z + r)}, {v(Z + r)}, {s(sK2)}, {v(vK1)}" for r in R]
            ops += [f"v_mul_f32 {v(Z + r)}, {v(Z + r)}, {v(G + r)}" for r in R]
            ops += [f"v_exp_f32 {v(Z + r)}, {v(Z + r)}" for r in R]
            ops += [f"v_mul_f32 {v(G + r)}, {v(G + r)}, {v(U + r)}" for r in R]
            ops += [f"v_add_f32 {v(Z + r)}, 1.0, {v(Z + r)}" for r in R]
            ops += [f"v_rcp_f32 {v(Z + r)}, {v(Z + r)}" for r in R]
            ops += [f"v_mul_f32 {v(G + r)}, {v(G + r)}, {v(Z + r)}" for r in R]
    return ops


pA, pB, pWS = 4, 8, 18
sRB, sCG, sCP = 21, 22, 23
t0, t1, t2, t3 = 24, 25, 26, 27
SW_ = 32
vL = 1
vt = [2 + i for i in range(6)]


def head(k, name):
    kernel_head(k, name)
    k("s_cmp_ge_u32 s2, 256")
    k("s_cbranch_scc1 L_end")
    diag_begin(k)
    k(f"s_load_dwordx4 {s(pA, 4)}, s[0:1], {KA_X}")
    k(f"s_load_dwordx8 {s(pB, 8)}, s[0:1], {KA_WG}")
    k(f"s_load_dwordx2 {s(pWS, 2)}, s[0:1], {KA_WS}")
    k(f"v_lshrrev_b32 {v(vt[0])}, 6, v0")
    k(f"v_and_b32 {v(vL)}, 63, v0")
    k(f"v_readfirstlane_b32 {s(sWID)}, {v(vt[0])}")
    k(f"s_bfe_u32 {s(t0)}, s2, 0x10002")
    k(f"s_lshl_b32 {s(t0)}, {s(t0)}, 3")
    k(f"s_bfe_u32 {s(t1)}, s2, 0x30003")
    k(f"s_add_u32 {s(sRB)}, {s(t0)}, {s(t1)}")
    k(f"s_and_b32 {s(t0)}, s2, 3")
    k(f"s_lshl_b32 {s(t0)}, {s(t0)}, 2")
    k(f"s_lshr_b32 {s(t1)}, s2, 6")
    k(f"s_add_u32 {s(sCG)}, {s(t0)}, {s(t1)}")
    k(f"s_lshr_b32 {s(sCP)}, {s(sCG)}, 1")
    k(f"s_cmp_ge_u32 {s(sWID)}, 8")
    k("s_cbranch_scc1 L_aux")


def subtile_cols(k, sC):
    k(f"s_mul_i32 {s(t0)}, {s(sCP)}, 384")
    k(f"s_lshl_b32 {s(t1)}, {s(sCP)}, 9")
    k(f"s_add_u32 {s(t2)}, {s(t0)}, 256")
    k(f"s_add_u32 {s(t3)}, {s(t0)}, 128")
    k(f"s_add_u32 {s(sC[2])}, {s(t1)}, 128")
    k(f"s_add_u32 {s(sC[3])}, {s(t1)}, 256")
    k(f"s_add_u32 {s(sC[4])}, {s(t1)}, 384")
    k(f"s_bitcmp1_b32 {s(sCG)}, 0")
    k(f"s_cselect_b32 {s(sC[0])}, {s(t2)}, {s(t0)}")
    k(f"s_cselect_b32 {s(sC[2])}, {s(sC[2])}, {s(t3)}")
    k(f"s_cselect_b32 {s(sC[3])}, {s(sC[3])}, {s(t3)}")
    k(f"s_cselect_b32 {s(sC[4])}, {s(sC[4])}, {s(t1)}")


def subtile_oob(k, sC):
    k(f"s_cmp_eq_u32 {s(sCG)}, 15")
    k(f"s_cselect_b32 {s(sC[3])}, {OOB}, {s(sC[3])}")
    k(f"s_cselect_b32 {s(sC[4])}, {OOB}, {s(sC[4])}")


sRG, sCH = 28, 29
vL16 = 8
P1V = dict(vK1=28, vW=[30, 31], vX=[32, 33, 34, 35])


def compute(k, where, setup2):
    lq = Q(k, "lgkmcnt", 12)
    sC = [36, 36, 38, 39, 40]
    sSC = [41, 42, 43]
    sK2 = 44
    sTG = [45, 46, 47]
    sLO, sHI = 48, 49
    vK1, vW, vX = P1V["vK1"], P1V["vW"], P1V["vX"]
    WF = [36 + 4 * i for i in range(10)]
    XF = [76 + 4 * i for i in range(3)]
    ACC = [88 + 16 * j for j in range(5)]
    TMP = WF[NW2]
    vI, vH = XF[0], XF[0] + 1
    k(f"s_and_b32 {s(sRG)}, {s(sWID)}, 3")
    k(f"s_lshr_b32 {s(sCH)}, {s(sWID)}, 2")
    k(f"v_and_b32 {v(vI)}, 31, v0")
    k(f"v_bfe_u32 {v(vH)}, v0, 5, 1")
    k(f"v_lshlrev_b32 {v(vL16)}, 4, {v(vL)}")
    k(f"s_lshl_b32 {s(t0)}, {s(sRG)}, 12")
    k(f"s_add_u32 {s(t0)}, {s(t0)}, {XSL[0] * 4096}")
    k(f"v_lshlrev_b32 {v(vt[0])}, 7, {v(vI)}")
    k(f"v_bfe_u32 {v(vt[1])}, {v(vI)}, 1, 3")
    k(f"v_xor_b32 {v(vt[1])}, {v(vt[1])}, {v(vH)}")
    k(f"v_lshlrev_b32 {v(vt[1])}, 4, {v(vt[1])}")
    k(f"v_add3_u32 {v(vX[0])}, {v(vt[0])}, {v(vt[1])}, {s(t0)}")
    for ks in range(1, 4):
        k(f"v_xor_b32 {v(vX[ks])}, {32 * ks}, {v(vX[0])}")
    k(f"v_bfe_u32 {v(vt[0])}, {v(vL)}, 2, 2")
    k(f"v_lshl_add_u32 {v(vt[1])}, {v(vH)}, 3, {v(vt[0])}")
    k(f"v_bfe_u32 {v(vt[2])}, {v(vL)}, 4, 1")
    k(f"v_and_b32 {v(vt[3])}, 1, {v(vL)}")
    k(f"v_bfe_u32 {v(vt[4])}, {v(vL)}, 1, 1")
    k(f"v_lshlrev_b32 {v(vt[4])}, 3, {v(vt[4])}")
    k(f"v_lshl_add_u32 {v(vt[2])}, {v(vt[2])}, 1, {v(vt[3])}")
    k(f"v_bfe_u32 {v(vt[3])}, {v(vL)}, 3, 1")
    k(f"v_xor_b32 {v(vt[3])}, {s(sCH)}, {v(vt[3])}")
    k(f"v_lshl_add_u32 {v(vt[3])}, {v(vt[3])}, 2, {v(vt[2])}")
    k(f"v_lshl_add_u32 {v(vt[3])}, {v(vt[3])}, 4, {v(vt[4])}")
    k(f"v_lshl_add_u32 {v(vW[0])}, {v(vt[1])}, 7, {v(vt[3])}")
    k(f"v_add_u32 {v(vW[1])}, {24 * 4096}, {v(vW[0])}")
    k(f"v_mov_b32 {v(vK1)}, {f32(GK1)}")
    k(f"s_mov_b32 {s(sK2)}, {f32(GK2)}")
    k(f"s_mov_b32 {s(sLO)}, {f32(2.0 ** -13)}")
    k(f"s_mov_b32 {s(sHI)}, {f32(65000.0)}")
    subtile_cols(k, sC)
    for j in (2, 3, 4):
        k(f"s_cmp_lt_u32 {s(sC[j])}, 1280")
        k(f"s_cselect_b32 {s(sSC[j - 2])}, {f32(QS16)}, 1.0")
        k(f"s_cselect_b32 {s(sTG[j - 2])}, -2, -1")
        k(f"s_cmp_ge_u32 {s(sC[j])}, 2560")
        k(f"s_cselect_b32 {s(sSC[j - 2])}, 0, {s(sSC[j - 2])}")
    for j in (0, 2, 3, 4):
        k(f"s_lshl_b32 {s(sC[j])}, {s(sC[j])}, 5")
    k(f"s_lshl_b32 {s(t0)}, {s(sRB)}, 2")
    k(f"s_add_u32 {s(t0)}, {s(t0)}, {s(sRG)}")
    k(f"s_lshl_b32 {s(t3)}, {s(sCH)}, 11")
    k(f"s_mul_i32 {s(t1)}, {s(t0)}, {TT_QKV}")
    k(f"s_add_u32 {s(t1)}, {s(t1)}, {s(t3)}")
    k(f"s_mul_i32 {s(t2)}, {s(t0)}, {TT_H}")
    k(f"s_add_u32 {s(t2)}, {s(t2)}, {s(t3)}")
    k(f"s_add_u32 {s(t2)}, {s(t2)}, {WS_H}")
    k(f"s_add_u32 {s(sC[0])}, {s(sC[0])}, {s(t2)}")
    k(f"s_bitcmp1_b32 {s(sCG)}, 0")
    k(f"s_cselect_b32 {s(t2)}, {s(t1)}, {s(t2)}")
    k(f"s_add_u32 {s(sC[2])}, {s(sC[2])}, {s(t2)}")
    k(f"s_add_u32 {s(sC[3])}, {s(sC[3])}, {s(t1)}")
    k(f"s_add_u32 {s(sC[4])}, {s(sC[4])}, {s(t1)}")
    subtile_oob(k, sC)
    k("s_waitcnt lgkmcnt(0)")
    srd(k, SW_, pWS, WS_SIZE)
    setup2(vI, vH)

    NS = 2 * T_
    seq = [(n, j) for n in range(NS) for j in tiles(n // 2)]
    first = {}
    for i, (n, j) in enumerate(seq):
        first.setdefault(n, i)
    lastof = {n: i for i, (n, j) in enumerate(seq)}
    slot, user, p = [], {}, 0
    att = {}
    e_ = -1
    for i, (n, j) in enumerate(seq):
        nsl = NWF if n < 40 else NW2
        p = p % nsl if p >= nsl else p
        if p >= nsl:
            p = 0
        slot.append(p)
        u = pub(n // 2)
        lo = max(-1 if u < 0 else first[2 * u], i - DIST)
        if i == first[n]:
            e_ = max(e_, lo, lastof.get(n - 3, -2) + 1)
            b = where[("x", n // 4)][0]
            att.setdefault(e_, []).append((f"x{n}", f"ds_read_b128 {v(XF[n % 3], 4)}, {v(vX[n % 4])} offset:{(b - XSL[0]) * 4096}"))
        e_ = max(e_, lo, user.get(p, -2) + 1)
        assert e_ < i
        user[p] = i
        b = where[("b" if j < 2 else "a", n // 2)][j % 3 if j >= 2 else j]
        hi = b >= 24
        for e in range(2):
            a_ = (b - 24 * hi) * 4096 + (n % 2) * 2048 + e * 512
            att.setdefault(e_, []).append((f"w{i}", f"ds_read_b64_tr_b16 {v(WF[p] + 2 * e, 2)}, {v(vW[hi])} offset:{a_}"))
        p = (p + 1) % nsl

    def gelu_tile(jg, ju, Z, so):
        ge = []
        for hf in range(2):
            G, U = ACC[jg] + 8 * hf, ACC[ju] + 8 * hf
            ge += gelu_ops(G, U, Z + 8 * hf, sK2, vK1)
            ge += [f"v_cvt_pk_bf16_f32 {v(G + c)}, {v(G + 2 * c)}, {v(G + 2 * c + 1)}" for c in range(4)]
            ge.append(f"buffer_store_dwordx4 {v(G, 4)}, {v(vL16)}, {s(SW_, 4)}, {s(so)} offen offset:{1024 * hf}{ST}")
        return ge

    def qkv_tile(j):
        ep = []
        for hf in range(2):
            A = ACC[j] + 8 * hf
            ep += [f"v_mul_f32 {v(A + r)}, {s(sSC[j - 2])}, {v(A + r)}" for r in range(8)]
            ep += [f"v_cvt_pk_bf16_f32 {v(A + c)}, {v(A + 2 * c)}, {v(A + 2 * c + 1)}" for c in range(4)]
            ep += [f"v_and_b32 {v(A + c)}, {s(sTG[j - 2])}, {v(A + c)}" for c in TAG]
            ep.append(f"buffer_store_dwordx4 {v(A, 4)}, {v(vL16)}, {s(SW_, 4)}, {s(sC[j])} offen offset:{1024 * hf}{ST}")
        return ep

    def v_tile(j, tag):
        ep = [f"s_add_u32 {s(sSC[j - 2])}, {s(sC[j])}, {VDELTA}"]
        for hf in range(2):
            A, T = ACC[j] + 8 * hf, TMP + 8 * (j % 2) + 4 * hf
            ep += [f"v_cvt_pk_f16_f32 {v(T + c)}, {v(A + 2 * c)}, {v(A + 2 * c + 1)}" for c in range(4)]
            ep.append(f"buffer_store_dwordx4 {v(T, 4)}, {v(vL16)}, {s(SW_, 4)}, {s(sC[j])} offen offset:{1024 * hf}{ST}")
        A, M = ACC[j], vt[0]
        for op, m in (("v_minimum3_f32", M), ("v_maximum3_f32", M + 1)):
            ep.append(f"{op} {v(m)}, |{v(A)}|, |{v(A + 1)}|, |{v(A + 1)}|")
        for r in range(2, 16, 2):
            for op, m in (("v_minimum3_f32", M), ("v_maximum3_f32", M + 1)):
                ep.append(f"{op} {v(m)}, |{v(A + r)}|, |{v(A + r + 1)}|, {v(m)}")
        ep.append(f"v_cmp_nge_f32 vcc, {v(M)}, {s(sLO)}")
        ep.append(f"v_cmp_nle_f32 {s(50, 2)}, {v(M + 1)}, {s(sHI)}")
        ep.append(f"s_or_b64 vcc, vcc, {s(50, 2)}")
        ep.append(f"s_cbranch_scc0 L_k1_w{tag}")
        for hf in range(2):
            A = ACC[j] + 8 * hf
            ep += [f"v_cvt_pk_bf16_f32 {v(A + c)}, {v(A + 2 * c)}, {v(A + 2 * c + 1)}" for c in range(4)]
            ep.append(f"buffer_store_dwordx4 {v(A, 4)}, {v(vL16)}, {s(SW_, 4)}, {s(sSC[j - 2])} offen offset:{1024 * hf}{ST}")
        return ep

    def qkv_any(j, tag):
        k(f"s_cmp_eq_u32 {s(sSC[j - 2])}, 0")
        k(f"s_cbranch_scc1 L_k1_v{tag}")
        for t in qkv_tile(j):
            k(t)
        k(f"s_branch L_k1_w{tag}")
        k.label(f"L_k1_v{tag}")
        for t in v_tile(j, tag):
            k(t)
        k.label(f"L_k1_w{tag}")

    k("s_barrier")
    stamp(k, 1)
    for r in att[-1]:
        lq.issue(*r)
    nst = [0]

    def mstep(i):
        n, j = seq[i]
        lq.wait(f"w{i}", f"x{n}")
        z = n == (0 if j >= 2 else 2 * LAG)
        k(f"{MF32} {v(ACC[j], 16)}, {v(WF[slot[i]], 4)}, {v(XF[n % 3], 4)}, " + ("0" if z else v(ACC[j], 16)))
        if i == first[n] and n % 2 == 0 and n // 2 in BARS:
            if n // 2 == PUB:
                k(f"s_waitcnt vmcnt({nst[0]})")
            k("s_barrier")
            if n // 2 in P1ST:
                stamp(k, 4 + P1ST.index(n // 2), lq)
        for r in att.get(i, []):
            lq.issue(*r)
    for i in range(first[40]):
        mstep(i)
    rj = max(max(QP) + 1, 2 + GSP)
    rj = min(max(rj, first[2 * PUB] - first[40] + 1), len(seq) - first[40])
    k(f"s_bitcmp1_b32 {s(sCG)}, 0")
    k("s_cbranch_scc1 L_k1_odd")
    q0 = list(lq.q)
    assert first[2 * PUB] - first[40] > max(QP)
    for odd in range(2):
        lq.q = list(q0)
        nst[0] = 0
        if odd:
            k.label("L_k1_odd")
        fq = [] if odd else gelu_tile(2, 3, TMP, sC[2])
        fn = (len(fq) + GSP - 1) // GSP
        for r in range(rj):
            mstep(first[40] + r)
            if odd and r in QP:
                qkv_any(2 + QP.index(r), f"o{r}")
            if not odd and r == 1:
                qkv_any(4, "e")
            if r >= 2:
                for _ in range(fn):
                    if fq:
                        nst[0] += fq[0].startswith("buffer_store")
                        k(fq.pop(0))
        assert not fq
        if not odd:
            k("s_branch L_k1_j")
    k.label("L_k1_j")
    for i in range(first[40] + rj, len(seq)):
        mstep(i)
    if P1ST:
        stamp(k, 10, lq)
    for x in gelu_tile(0, 1, TMP, sC[0]):
        k(x)
    stamp(k, 2)


def aux(k, sched, where, setup_a):
    vq = Q(k, "vmcnt", 63)
    k.label("L_aux")
    k("s_setprio 3")
    k(f"s_cmp_ge_u32 {s(sWID)}, 10")
    k("s_cbranch_scc1 L_aux2")
    SR = [28, 36, 40, 44, 48]
    SX = 52
    sC = [97, 97, 98, 99, 100]
    sST, sXO, sLW, sXL, sKX, sKA, sKB = 3, 20, 56, 57, 58, 59, 101
    subtile_cols(k, sC)
    subtile_oob(k, sC)
    oX = [10, 11, 12, 13]
    oF = [14, 15]
    oQ = [16, 17]
    oM = [18, 19]
    k(f"s_and_b32 {s(sLW)}, {s(sWID)}, 1")
    k(f"v_lshrrev_b32 {v(vt[0])}, 3, {v(vL)}")
    k(f"v_and_b32 {v(vt[1])}, 7, {v(vL)}")
    k(f"v_lshrrev_b32 {v(vt[2])}, 4, {v(vL)}")
    k(f"s_lshl_b32 {s(t0)}, {s(sRB)}, 1")
    k(f"s_add_u32 {s(t0)}, {s(t0)}, {s(sLW)}")
    k(f"s_mul_i32 {s(sXO)}, {s(t0)}, {64 * 1280}")
    k(f"v_mul_u32_u24 {v(vt[3])}, 1280, {v(vt[0])}")
    k(f"v_xor_b32 {v(vt[4])}, {v(vt[1])}, {v(vt[2])}")
    k(f"v_lshl_add_u32 {v(oX[0])}, {v(vt[4])}, 4, {v(vt[3])}")
    k(f"v_xor_b32 {v(oX[1])}, 64, {v(oX[0])}")
    k(f"v_add_u32 {v(oX[1])}, {8 * 1280 - 1024}, {v(oX[1])}")
    k(f"v_add_u32 {v(oX[2])}, {16 * 1280 - 2048}, {v(oX[0])}")
    k(f"v_add_u32 {v(oX[3])}, {16 * 1280 - 2048}, {v(oX[1])}")
    k(f"v_and_b32 {v(vt[2])}, 1, {v(vt[2])}")
    k(f"v_lshlrev_b32 {v(vt[2])}, 2, {v(vt[2])}")
    k(f"v_xor_b32 {v(vt[2])}, {v(vt[2])}, {v(vt[1])}")
    k(f"v_lshlrev_b32 {v(vt[2])}, 4, {v(vt[2])}")
    k(f"s_lshl_b32 {s(t0)}, {s(sLW)}, 4")
    k(f"v_add_u32 {v(vt[3])}, {s(t0)}, {v(vt[0])}")
    k(f"v_mul_u32_u24 {v(vt[4])}, 3072, {v(vt[3])}")
    k(f"v_add_u32 {v(oF[0])}, {v(vt[4])}, {v(vt[2])}")
    k(f"v_add_u32 {v(oF[1])}, {8 * 3072 - 1024}, {v(oF[0])}")
    k(f"v_mul_u32_u24 {v(vt[4])}, 3840, {v(vt[3])}")
    k(f"v_add_u32 {v(oQ[0])}, {v(vt[4])}, {v(vt[2])}")
    k(f"v_add_u32 {v(oQ[1])}, {8 * 3840 - 1024}, {v(oQ[0])}")
    k(f"s_bitcmp1_b32 {s(sCG)}, 0")
    k("s_cselect_b64 vcc, -1, 0")
    for q in range(2):
        k(f"v_cndmask_b32 {v(oM[q])}, {v(oF[q])}, {v(oQ[q])}, vcc")
    k(f"s_lshl_b32 {s(sXL)}, {s(sLW)}, 13")
    k(f"s_lshl_b32 {s(sLW)}, {s(sLW)}, 11")
    sTAB, sK = sKX, sKB
    assert sKA == sKX + 1
    def tabidx():
        k(f"s_and_b32 {s(t0)}, {s(sCG)}, 3")
        k(f"s_and_b32 {s(sK)}, {s(sRB)}, 7")
        k(f"s_add_u32 {s(t0)}, {s(t0)}, {s(sK)}")
        k(f"s_lshl_b32 {s(t0)}, {s(t0)}, 1")
        k(f"s_lshl_b32 {s(sK)}, {s(sK)}, 2")
    tabidx()
    tabs = {z: [sum((s0 % 10 + (j + g) % z) << (4 * (s0 + j)) for s0, zz in zip(BST, BLK) if zz == z for j in range(z)) for g in range(z)] for z in set(BLK)}
    base = sum(tabs[z][0] for z in tabs)
    for h in range(2):
        k(f"s_mov_b32 {s(sTAB + h)}, {(base >> (32 * h)) & 0xffffffff}")

    def mktab(z):
        if z > 4:
            k(f"s_lshr_b32 {s(t1)}, {sum((i % z) << (4 * i) for i in range(8))}, {s(sK)}")
            k(f"s_and_b32 {s(t1)}, {s(t1)}, 15")
        elif z > 1:
            k(f"s_lshr_b32 {s(t1)}, {sum((i % z) << (2 * i) for i in range(11))}, {s(t0)}")
            k(f"s_and_b32 {s(t1)}, {s(t1)}, 3")
        for g in range(1, z):
            k(f"s_cmp_eq_u32 {s(t1)}, {g}")
            for h in range(2):
                d = ((tabs[z][g] ^ tabs[z][0]) >> (32 * h)) & 0xffffffff
                if d:
                    k(f"s_cselect_b32 {s(t2 + h)}, {d}, 0")
            for h in range(2):
                d = ((tabs[z][g] ^ tabs[z][0]) >> (32 * h)) & 0xffffffff
                if d:
                    k(f"s_xor_b32 {s(sTAB + h)}, {s(sTAB + h)}, {s(t2 + h)}")
    mktab(BLK[0])
    k("s_waitcnt lgkmcnt(0)")
    srd(k, SX, pA, S_ * D_ * 2)
    srd(k, SR[0], pB, D_ * F_ * 2)
    srd(k, SR[1], pB + 2, D_ * F_ * 2)
    srd(k, SR[4], pA + 2, D_ * 3 * D_ * 2)
    k(f"s_bitcmp1_b32 {s(sCG)}, 0")
    for j in (2, 3):
        for r in range(3):
            k(f"s_cselect_b32 {s(SR[j] + r)}, {s(SR[4] + r)}, {s(SR[j - 2] + r)}")
        k(f"s_mov_b32 {s(SR[j] + 3)}, 0x00020000")
    k(f"s_cselect_b32 {s(sST)}, 768, 0")
    k(f"s_add_u32 {s(sST)}, {s(sST)}, 3072")

    OFF = [oF, oF, oM, oM, oQ]

    def fill(it):
        blk = where[it]
        p = it[1] if it[0] == "x" else it[1] // 2
        k(f"s_bfe_u32 {s(sK)}, {s(sTAB + p // 8)}, {0x40000 + 4 * (p % 8)}")
        if it[0] == "x":
            k(f"s_lshl_b32 {s(sK)}, {s(sK)}, 7")
            k(f"s_add_u32 {s(t0)}, {s(sXO)}, {s(sK)}")
            for hq in range(2):
                k(f"s_add_u32 m0, {s(sXL)}, {blk[0] * 4096 + hq * 4096}")
                if hq:
                    k(f"s_add_u32 {s(t0)}, {s(t0)}, {32 * 1280}")
                for q in range(4):
                    vq.issue(it, f"buffer_load_dwordx4 {v(oX[q])}, {s(SX, 4)}, {s(t0)} offen offset:{1024 * q} lds")
        else:
            k(f"s_lshl_b32 {s(sK)}, {s(sK)}, 6")
            if it[1] % 2:
                k(f"s_add_u32 {s(sK)}, {s(sK)}, 32")
            for j in ((0, 1) if it[0] == "b" else (2, 3, 4)):
                k(f"s_add_u32 m0, {s(sLW)}, {blk[j % 3 if j >= 2 else j] * 4096}")
                st = {0: "3072", 1: None, 2: s(sST), 3: s(sST), 4: "3840"}[j]
                if st:
                    k(f"s_mul_i32 {s(t0)}, {s(sK)}, {st}")
                    k(f"s_add_u32 {s(t0)}, {s(t0)}, {s(sC[j])}")
                for q in range(2):
                    vq.issue(it, f"buffer_load_dwordx4 {v(OFF[j][q])}, {s(SR[j], 4)}, {s(t0)} offen offset:{1024 * q} lds")
    stage = lambda it: 2 * it[1] if it[0] == "x" else it[1]
    for u in [-2] + BARS:
        if u > -2:
            vq.wait(*[it for it in where if pub(stage(it)) == u])
            k("s_barrier")
        for i, x in enumerate(sched.get(u, [])):
            fill(x)
            if u == -2 and i == 2:
                tabidx()
                for z in sorted(set(tabs) - {BLK[0]}):
                    mktab(z)
                srd(k, SW_, pWS, WS_SIZE)
                setup_a()
    assert not vq.q
    k("s_branch L_g")
    k.label("L_aux2")
    SG, SXG, SD = 36, 40, 44
    k(f"s_load_dwordx2 {s(SD, 2)}, s[0:1], {KA_DBG}")
    SP, sSTP, sOFF, sOF2, vPA, vPB = 52, 56, 57, 58, 102, 103
    pfn = [0]

    def pf(u):
        for x in PFL:
            if x == u or (u == -2 and x < -1):
                if x < -2:
                    k(f"s_sleep {-x - 2}")
                k(f"buffer_load_dword v100, {v(vPA)}, {s(SP, 4)}, {s(sOFF)} offen")
                k(f"s_add_u32 {s(sOFF)}, {s(sOFF)}, {s(sSTP)}")
        for x in PFG:
            if x == u:
                c = (LAG // 2 + pfn[0]) % 10
                pfn[0] += 1
                k(f"s_add_u32 {s(t2)}, {s(sOF2)}, {c * 64 * 3072}")
                k(f"buffer_load_dword v100, {v(vPB)}, {s(SP, 4)}, {s(t2)} offen")
                k(f"buffer_load_dword v100, {v(vPB)}, {s(SP, 4)}, {s(t2)} offen offset:256")
    if PF:
        k(f"s_cmp_eq_u32 {s(sWID)}, 10")
        k("s_cbranch_scc0 L_pfx")
        k(f"s_lshr_b32 {s(t0)}, s2, 3")
        k(f"s_and_b32 {s(t1)}, s2, 3")
        k(f"s_bfe_u32 {s(t2)}, s2, 0x10002")
        k(f"s_lshl_b32 {s(t2)}, {s(t2)}, 4")
        k(f"s_add_u32 {s(t2)}, {s(t2)}, {s(t0)}")
        k(f"s_mul_i32 {s(sOFF)}, {s(t2)}, {64 * 1280}")
        k(f"s_lshl_b32 {s(t2)}, {s(t1)}, 3")
        k(f"s_add_u32 {s(t2)}, {s(t2)}, {s(t0)}")
        k(f"s_lshl_b32 {s(t2)}, {s(t2)}, 7")
        k(f"s_sub_u32 {s(t2)}, {s(t2)}, {16 * 128}")
        k(f"s_lshl_b32 {s(t1)}, {s(t1)}, 1")
        k(f"s_and_b32 {s(t3)}, {s(t0)}, 1")
        k(f"s_add_u32 {s(t1)}, {s(t1)}, {s(t3)}")
        k(f"s_mul_i32 {s(sOF2)}, {s(t1)}, 384")
        k(f"s_add_u32 {s(t1)}, {s(sOF2)}, 128")
        k(f"s_cmp_ge_u32 {s(t0)}, 24")
        k(f"s_cselect_b32 {s(t2)}, {s(t1)}, {s(t2)}")
        k(f"s_cselect_b32 {s(t3)}, 0, 768")
        k(f"s_add_u32 {s(t3)}, {s(t3)}, 3072")
        k(f"s_cmp_ge_u32 {s(t0)}, 16")
        k(f"s_cselect_b32 {s(sOFF)}, {s(t2)}, {s(sOFF)}")
        k(f"s_cselect_b32 {s(t3)}, {s(t3)}, 1280")
        k(f"s_mul_i32 {s(sSTP)}, {s(t3)}, 64")
        k(f"s_cselect_b32 {s(sSTP)}, {s(sSTP)}, 128")
        k(f"v_mul_u32_u24 {v(vPA)}, {s(t3)}, {v(vL)}")
        k(f"s_mul_i32 {s(t1)}, {s(t3)}, 640")
        k(f"s_cselect_b32 {s(SP + 2)}, {s(t1)}, {S_ * D_ * 2}")
        k("s_waitcnt lgkmcnt(0)")
        k(f"s_cselect_b64 {s(SP, 2)}, {s(pA + 2, 2)}, {s(pA, 2)}")
        k(f"s_bitcmp1_b32 {s(t0)}, 1")
        k(f"s_cselect_b64 {s(t2, 2)}, {s(pB + 2, 2)}, {s(pB, 2)}")
        k(f"s_cmp_ge_u32 {s(t0)}, 24")
        k(f"s_cselect_b64 {s(SP, 2)}, {s(t2, 2)}, {s(SP, 2)}")
        k(f"s_and_b32 {s(SP + 1)}, {s(SP + 1)}, 0xffff")
        k(f"s_mov_b32 {s(SP + 3)}, 0x00020000")
        k(f"s_mul_i32 {s(t1)}, {s(sSTP)}, {10 - len(PFL)}")
        k(f"s_add_u32 {s(sOFF)}, {s(sOFF)}, {s(t1)}")
        k(f"s_cmp_ge_u32 {s(t0)}, 28")
        k(f"s_cselect_b32 {s(t0)}, 0, {OOB}")
        k(f"s_cselect_b32 {s(t1)}, {OOB}, 0")
        k(f"v_add_u32 {v(vPB)}, {s(t0)}, {v(vPA)}")
        k(f"v_add_u32 {v(vPA)}, {s(t1)}, {v(vPA)}")
        pf(-2)
        k("s_branch L_pfy")
        k.label("L_pfx")
    k("s_waitcnt lgkmcnt(0)")
    if not PF:
        srd(k, SG, pB + 6, D_ * 2)
        srd(k, SXG, pA, S_ * D_ * 2)
    srd(k, SD, SD, 256)
    srd(k, SW_, pWS, WS_SIZE)
    sT0 = setup_a()
    if not PF:
        k(f"s_cmp_eq_u32 {s(sWID)}, 10")
        k("s_cbranch_scc1 L_k1_job")

    k.label("L_k1_mb")
    sME, sFL = [48, 50, 52], 54
    vZ, vONE, vMA, vF, vF2, vA4 = 10, 11, 12, 13, 14, 15
    k(f"v_lshlrev_b32 {v(vA4)}, 2, {v(vL)}")
    k(f"v_mov_b32 {v(vZ)}, 0")
    k(f"v_mov_b32 {v(vONE)}, 1")
    k(f"s_lshl_b32 {s(t0)}, s2, 8")
    k(f"s_add_u32 {s(t0)}, {s(t0)}, {WS_MB}")
    k(f"buffer_store_dword {v(vZ)}, {v(vA4)}, {s(SW_, 4)}, {s(t0)} offen sc1")
    k(f"v_lshrrev_b32 {v(vF)}, 2, {v(vL)}")
    k(f"v_mul_u32_u24 {v(vF)}, 5, {v(vF)}")
    k(f"v_and_b32 {v(vMA)}, 2, {v(vL)}")
    k(f"v_add_u32 {v(vF)}, {v(vF)}, {v(vMA)}")
    k(f"v_and_b32 {v(vMA)}, 1, {v(vL)}")
    k(f"v_lshl_add_u32 {v(vF)}, {v(vMA)}, 1, {v(vF)}")
    for t in range(3):
        k(f"v_and_b32 {v(vF2)}, 24, {v(vF)}")
        k(f"v_min_u32 {v(vF2)}, 1, {v(vF2)}")
        k(f"v_lshrrev_b32 {v(vA4)}, 5, {v(vF)}")
        k(f"v_lshl_add_u32 {v(vF2)}, {v(vA4)}, 1, {v(vF2)}")
        k(f"v_cmp_eq_u32 {s(sME[t], 2)}, {s(sCG)}, {v(vF2)}")
        k(f"v_add_u32 {v(vF)}, 80, {v(vF)}")
    k(f"v_lshrrev_b32 {v(vF)}, 1, {v(vL)}")
    k(f"v_lshlrev_b32 {v(vMA)}, 2, {v(vMA)}")
    k(f"v_lshl_add_u32 {v(vMA)}, {v(vF)}, 11, {v(vMA)}")
    k(f"s_lshr_b32 {s(t2)}, {s(sRB)}, 1")
    k(f"s_lshl_b32 {s(t2)}, {s(t2)}, 8")
    k(f"s_and_b32 {s(t3)}, {s(sRB)}, 1")
    k(f"s_lshl_b32 {s(t3)}, {s(t3)}, 5")
    k(f"s_add_u32 {s(sFL)}, {s(t2)}, {s(t3)}")
    k(f"s_add_u32 {s(sFL)}, {s(sFL)}, {WS_MB}")
    k("s_mov_b64 exec, 1")
    sSL = 55
    k(f"s_mul_i32 {s(sSL)}, s2, {ATN}")
    k(f"s_lshr_b32 {s(sSL)}, {s(sSL)}, 8")
    assert all(u in BARS for u in range(AT0, AT0 + ATN)) and AT0 + ATN <= CKU
    for u in BARS:
        if AT0 <= u < AT0 + ATN:
            k(f"s_cmp_eq_u32 {s(sSL)}, {u - AT0}")
            k(f"s_cbranch_scc0 L_k1_at{u}")
            k("s_waitcnt vmcnt(0)")
            k(f"buffer_atomic_add {v(vONE)}, off, {s(SD, 4)}, 0 sc1")
            k.label(f"L_k1_at{u}")
        if u == CKU:
            k.label("L_k1_ck")
            k(f"s_memrealtime {s(t2, 2)}")
            k("s_waitcnt vmcnt(0) lgkmcnt(0)")
            k(f"v_readfirstlane_b32 {s(t0)}, {v(vZ)}")
            k(f"s_cmp_ge_u32 {s(t0)}, 256")
            k("s_cbranch_scc1 L_k1_ckx")
            k(f"s_sub_u32 {s(t2)}, {s(t2)}, {s(sT0)}")
            k(f"s_cmp_ge_i32 {s(t2)}, 0")
            k("s_cbranch_scc1 L_k1_ckx")
            k("s_sleep 32")
            k(f"buffer_load_dword {v(vZ)}, off, {s(SD, 4)}, 0 sc1")
            k("s_branch L_k1_ck")
            k.label("L_k1_ckx")
        k("s_barrier")
        if u == BARS[BARS.index(CKU) - 4]:
            k(f"buffer_load_dword {v(vZ)}, off, {s(SD, 4)}, 0 sc1")
        if u == PUB:
            for t in range(3):
                k(f"s_and_b64 exec, {s(sME[t], 2)}, -1")
                k(f"s_cbranch_scc0 L_k1_mk{t}")
                k(f"buffer_store_dword {v(vONE)}, {v(vMA)}, {s(SW_, 4)}, {s(sFL)} offen offset:{8 * t} sc1")
                k.label(f"L_k1_mk{t}")
            k("s_mov_b64 exec, -1")
    k("s_branch L_g")

    if PF:
        k.label("L_pfy")
        srd(k, SG, pB + 6, D_ * 2)
        srd(k, SXG, pA, S_ * D_ * 2)
        srd(k, SW_, pWS, WS_SIZE)
        setup_a()
    k.label("L_k1_job")
    GW, XG = 8, 48
    vG, vGO, vJ = vt[3], vt[4], vt[5]
    sGX = 48
    k(f"v_lshrrev_b32 {v(vt[0])}, 3, {v(vL)}")
    k(f"v_and_b32 {v(vt[1])}, 7, {v(vL)}")
    k(f"v_mul_u32_u24 {v(vt[2])}, 1280, {v(vt[0])}")
    k(f"v_lshl_add_u32 {v(vJ)}, {v(vt[1])}, 4, {v(vt[2])}")
    k(f"s_lshl_b32 {s(t0)}, {s(sRB)}, 4")
    k(f"s_add_u32 {s(t0)}, {s(t0)}, {s(sCG)}")
    k(f"s_mul_i32 {s(sGX)}, {s(t0)}, {8 * 1280}")
    k(f"s_lshl_b32 {s(t0)}, {s(t0)}, 5")
    k(f"s_add_u32 {s(t0)}, {s(t0)}, {WS_G}")
    k(f"v_lshlrev_b32 {v(vt[2])}, 4, {v(vt[1])}")
    k(f"v_lshlrev_b32 {v(vGO)}, 2, {v(vt[0])}")
    k(f"v_lshl_add_u32 {v(vGO)}, {v(vt[1])}, 27, {v(vGO)}")
    k(f"v_mov_b32 {v(vG)}, 0")
    k(f"s_mov_b32 {s(t1)}, {f32(-LOG2E)}")
    assert GWU in [-2] + BARS and GXU in BARS and GCU in BARS and max(GWU, GXU) < GCU < UB
    for u in [-2] + BARS:
        if u == UB:
            k("s_waitcnt vmcnt(0)")
        if u > -2:
            k("s_barrier")
            if PF:
                pf(u)
        if u == GWU:
            for c in range(10):
                k(f"buffer_load_dwordx4 {v(GW + 4 * c, 4)}, {v(vt[2])}, {s(SG, 4)}, 0 offen offset:{128 * c}")
        if u == GXU:
            for c in range(10):
                k(f"buffer_load_dwordx4 {v(XG + 4 * c, 4)}, {v(vJ)}, {s(SXG, 4)}, {s(sGX)} offen offset:{128 * c}")
        if u == GCU:
            g = vG
            k("s_waitcnt vmcnt(0)")
            for c in range(40):
                k(f"v_dot2c_f32_bf16 {v(g)}, {v(XG + c)}, {v(GW + c)}")
            k(f"v_add_f32_dpp {v(g)}, {v(g)}, {v(g)} quad_perm:[1,0,3,2] row_mask:0xf bank_mask:0xf")
            k(f"v_add_f32_dpp {v(g)}, {v(g)}, {v(g)} quad_perm:[2,3,0,1] row_mask:0xf bank_mask:0xf")
            k(f"v_add_f32_dpp {v(g)}, {v(g)}, {v(g)} row_half_mirror row_mask:0xf bank_mask:0xf")
            k(f"v_cvt_pk_bf16_f32 {v(g)}, {v(g)}, {v(g)}")
            k(f"v_lshlrev_b32 {v(g)}, 16, {v(g)}")
            k(f"v_mul_f32 {v(g)}, {s(t1)}, {v(g)}")
            k(f"v_exp_f32 {v(g)}, {v(g)}")
            k(f"v_add_f32 {v(g)}, 1.0, {v(g)}")
            k(f"v_rcp_f32 {v(g)}, {v(g)}")
            k(f"v_cvt_pk_bf16_f32 {v(g)}, {v(g)}, {v(g)}")
            k(f"v_lshlrev_b32 {v(g)}, 16, {v(g)}")
            k(f"buffer_store_dword {v(g)}, {v(vGO)}, {s(SW_, 4)}, {s(t0)} offen{ST}")
```

```python
from common import *
from gen3 import WS_QKV, TT_QKV, WS_H, TT_H, WS_G, WS_SIZE, MF32, VDELTA
import f2a
from f2a import E, sWID, WS_MB, SW_, sRB, sCG, t0, t1, t2, t3, vL, vt, vL16, sRG, sCH
MH32 = "v_mfma_f32_32x32x16_f16"
M16 = "v_mfma_f32_16x16x32_bf16"
BIAS = 0x3e50
PSL = E("K2_PSL", "0")
STOUT = os.environ.get("K2_STOUT", "")
PRIO = E("K2_PRIO", "2")
GPRIO = E("K2_GPRIO", "3")
BASE = E("K2_BASE", "(0, 5, 9, 13)")
PRP = E("K2_PRP", "(0, 0, 14)")
QUOTA = E("K2_QUOTA", "[0, 0, 0, 40, 70, 88, 42, 0]")
WDP = E("K2_WDP", "{1: 5}")
PACE = E("K2_PACE", "0")
GD = E("K2_GD", "0")
SC = " sc1"
PSL0 = E("K2_PSL0", "4")
GATE = E("K2_GATE", "2")
PSLA = E("K2_PSLA", "8")
HMB = E("K2_HMB", "1")
KROT = E("K2_KROT", "{1: (1, 4), 2: (5, 3)}")
GROT = E("K2_GROT", "0")
PFW = E("K2_PFW", "{0: 'a', 1: 'b'}")
SEQ = E("K2_SEQ", "{0: 'a', 1: 'dddd', 2: 'dGhlll', 3: 'llllb', 5: 'c'}")
TS = 3136
WA = 25600
RB = 110592
TRIG = E("K2_TRIG", "(31, 0, 2)")
RST = DIAG and E("K2_RST", "0")
TRIG2 = E("K2_TRIG2", "(31, 0, 2)")
DT = E("K2_DT", "245")
TAU = E("K2_TAU", "10")
FSL = E("K2_FSL", "2")
DO = E("K2_DO", "5")
TSL = E("K2_TSL", "4")
VSL = E("K2_VSL", "1")
KF = E("K2_KF", "0")
CAP1 = E("K2_CAP1", "0")
LX = RB + 16 * TS
FLG = LX + 2048
NW = 12
P2ST = E("P2ST", "0")
stamp2 = stamp if P2ST else (lambda *a: None)
if f2a.P1ST or P2ST:
    def stamp(*a):
        pass

sM0, sPASS, sQO, sOO, sKA, sKC, sBLK, sKO, sCNT = 4, 5, 6, 7, 8, 9, 10, 11, 12
sTMP = 14
sHEAD, sQB, sODD = 16, 17, 13
sKH, sQG = sCH, sRG
vK1, vK2 = 9, 10
vV = [11, 12, 13, 14]
vQ2, vXW, vXR, vLW, vLR, vFW, vFR = 15, 16, 17, 18, 19, 20, 21
vQA = [22, 23, 24, 25]


def ids(k):
    k(f"s_and_b32 {s(t0)}, s2, 7")
    k(f"s_lshl_b32 {s(t0)}, {s(t0)}, 2")
    k(f"s_lshr_b32 {s(t1)}, s2, 6")
    k(f"s_add_u32 {s(sHEAD)}, {s(t0)}, {s(t1)}")
    k(f"s_bfe_u32 {s(sQB)}, s2, 0x30003")
    k(f"s_and_b32 {s(sODD)}, {s(sHEAD)}, 1")
    k(f"s_lshr_b32 {s(t2)}, {s(sHEAD)}, 1")
    k(f"s_mul_i32 {s(t2)}, {s(t2)}, 5")
    k(f"s_lshl_b32 {s(t3)}, {s(sODD)}, 1")
    k(f"s_add_u32 {s(t2)}, {s(t2)}, {s(t3)}")
    k(f"s_lshl_b32 {s(sBLK)}, {s(t2)}, 9")


def dma_addr(k, vD, st, l16, ta, tb, tc):
    k(f"s_mul_i32 {s(t0)}, {s(st)}, {TT_QKV}")
    k(f"s_add_u32 {s(t0)}, {s(t0)}, {s(sBLK)}")
    k(f"v_add_u32 {v(vD[0])}, {s(t0)}, {v(l16)}")
    k(f"v_and_b32 {v(ta)}, 511, {v(l16)}")
    k(f"v_lshrrev_b32 {v(tc)}, 9, {v(l16)}")
    k(f"v_mul_u32_u24 {v(tb)}, {80 * 512 - 1024}, {v(tc)}")
    k(f"v_add3_u32 {v(vD[1])}, {v(ta)}, {v(tb)}, {s(t0)}")
    k(f"v_lshlrev_b32 {v(tb)}, 6, {v(tc)}")
    k(f"v_add_u32 {v(tb)}, 64, {v(tb)}")
    k(f"v_xor_b32 {v(tb)}, {v(tb)}, {v(l16)}")
    k(f"s_add_u32 {s(t0)}, {s(t0)}, {80 * 512 + 512 - 2048}")
    k(f"v_add_u32 {v(vD[2])}, {s(t0)}, {v(tb)}")


def setup2(k, vI, vH):
    sTT, sMASK = sKO, sTMP
    vQ1 = vFR
    ids(k)
    k(f"s_lshl_b32 {s(t0)}, {s(sQB)}, 3")
    k(f"s_lshl_b32 {s(t1)}, {s(sQG)}, 1")
    k(f"s_add_u32 {s(t0)}, {s(t0)}, {s(t1)}")
    k(f"s_add_u32 {s(sTT)}, {s(t0)}, {s(sKH)}")
    k(f"s_mul_i32 {s(sQO)}, {s(sTT)}, {TT_QKV}")
    k(f"s_add_u32 {s(sQO)}, {s(sQO)}, {s(sBLK)}")
    k(f"s_lshl_b32 {s(t0)}, {s(sODD)}, 9")
    k(f"s_add_u32 {s(sOO)}, {s(sQO)}, {s(t0)}")
    k(f"v_add_u32 {v(vQ1)}, {s(t0)}, {v(vL16)}")
    k(f"s_cmp_eq_u32 {s(sODD)}, 1")
    k(f"s_cselect_b32 {s(t1)}, 8, 1024")
    k(f"v_lshlrev_b32 {v(vt[0])}, 4, {v(vI)}")
    k(f"v_add_u32 {v(vQ2)}, {s(t1)}, {v(vt[0])}")
    k(f"v_cmp_eq_u32 {s(sMASK, 2)}, 1, {v(vH)}")
    k(f"v_mov_b32 {v(vt[1])}, {RB + 8 * TS + 3096}")
    for qt in range(2):
        k(f"s_and_b32 {s(t0)}, {s(sTT)}, 7")
        if qt == 0:
            k(f"s_xor_b32 {s(t0)}, {s(t0)}, 1")
        k(f"s_mul_i32 {s(t0)}, {s(t0)}, 1536")
        k(f"v_add_u32 {v(vQA[2 * qt])}, {s(t0)}, {v(vQ1)}")
        k(f"v_add_u32 {v(vQA[2 * qt + 1])}, {s(t0)}, {v(vQ2)}")
        k(f"v_cndmask_b32 {v(vQA[2 * qt + 1])}, {v(vQA[2 * qt + 1])}, {v(vt[1])}, {s(sMASK, 2)}")
    k(f"s_and_b32 {s(t0)}, {s(sWID)}, 1")
    k(f"s_lshl_b32 {s(t0)}, {s(t0)}, 2")
    k(f"s_lshr_b32 {s(t1)}, {s(sWID)}, 1")
    k(f"s_add_u32 {s(t0)}, {s(t0)}, {s(t1)}")
    k(f"s_mul_i32 {s(sM0)}, {s(t0)}, {TS}")
    k(f"s_add_u32 {s(sM0)}, {s(sM0)}, {RB + 8 * TS}")
    k(f"s_mov_b32 {s(sPASS)}, 0")
    k(f"s_mov_b32 {s(sKA)}, 0x82008200")
    k(f"s_mov_b32 {s(sKC)}, 0xb9a4b9a4")
    k(f"s_mul_i32 {s(t3)}, {s(sKH)}, {4 * TS}")
    k(f"s_add_u32 {s(t3)}, {s(t3)}, {RB}")
    k(f"v_add_u32 {v(vK1)}, {s(t3)}, {v(vQ1)}")
    k(f"v_mov_b32 {v(vt[1])}, 3072")
    k(f"v_cndmask_b32 {v(vK2)}, {v(vQ2)}, {v(vt[1])}, {s(sMASK, 2)}")
    k(f"v_add_u32 {v(vK2)}, {s(t3)}, {v(vK2)}")
    k(f"v_and_b32 {v(vt[0])}, 1, {v(vL)}")
    k(f"v_add_u32 {v(vt[0])}, {s(sODD)}, {v(vt[0])}")
    k(f"v_bfe_u32 {v(vt[1])}, {v(vL)}, 1, 1")
    k(f"v_bfe_u32 {v(vt[2])}, {v(vL)}, 4, 1")
    k(f"v_cmp_eq_u32 vcc, 1, {v(vt[2])}")
    k(f"s_lshl_b32 {s(t0)}, {s(sODD)}, 1")
    k(f"s_sub_u32 {s(t0)}, 2, {s(t0)}")
    k(f"v_mov_b32 {v(vt[3])}, {s(t0)}")
    k(f"v_cndmask_b32 {v(vt[0])}, {v(vt[0])}, {v(vt[3])}, vcc")
    k(f"v_mov_b32 {v(vt[3])}, {s(sODD)}")
    k(f"v_cndmask_b32 {v(vt[1])}, {v(vt[1])}, {v(vt[3])}, vcc")
    k(f"v_bfe_u32 {v(vt[3])}, {v(vL)}, 2, 2")
    k(f"v_lshl_add_u32 {v(vt[3])}, {v(vH)}, 2, {v(vt[3])}")
    k(f"v_lshlrev_b32 {v(vt[4])}, 2, {v(vt[0])}")
    k(f"v_xor_b32 {v(vt[3])}, {v(vt[3])}, {v(vt[4])}")
    k(f"v_lshlrev_b32 {v(vt[3])}, 4, {v(vt[3])}")
    k(f"v_lshl_add_u32 {v(vt[3])}, {v(vt[1])}, 3, {v(vt[3])}")
    k(f"v_lshl_add_u32 {v(vt[3])}, {v(vt[0])}, 9, {v(vt[3])}")
    k(f"v_and_b32 {v(vt[4])}, 19, {v(vL)}")
    k(f"v_cmp_lt_u32 vcc, 16, {v(vt[4])}")
    k(f"v_and_b32 {v(vt[5])}, 2, {v(vL)}")
    k(f"v_mad_i32_i24 {v(vt[5])}, {v(vt[5])}, -4, {v(vt[2])}")
    k(f"v_add_u32 {v(vt[5])}, {3072 - 1536 + 15}, {v(vt[5])}")
    k(f"s_add_u32 {s(t0)}, {s(t3)}, 1536")
    for q in range(4):
        k(f"v_xor_b32 {v(vt[4])}, {128 * q}, {v(vt[3])}")
        k(f"v_cndmask_b32 {v(vt[4])}, {v(vt[4])}, {v(vt[5])}, vcc")
        k(f"v_add_u32 {v(vV[q])}, {s(t0)}, {v(vt[4])}")
    k(f"v_add_u32 {v(vXW)}, {s(sM0)}, {v(vL16)}")
    k(f"s_mul_i32 {s(t0)}, {s(sKH)}, {-4 * TS}")
    k(f"s_add_u32 {s(t0)}, {s(t0)}, {2 * TS}")
    k(f"v_add_u32 {v(vXR)}, {s(t0)}, {v(vXW)}")
    k(f"s_lshl_b32 {s(t0)}, {s(sWID)}, 8")
    k(f"s_add_u32 {s(t0)}, {s(t0)}, {LX}")
    k(f"v_lshl_add_u32 {v(vLW)}, {v(vL)}, 2, {s(t0)}")
    k(f"s_mul_i32 {s(t0)}, {s(sKH)}, -2048")
    k(f"s_add_u32 {s(t0)}, {s(t0)}, 1024")
    k(f"v_add_u32 {v(vLR)}, {s(t0)}, {v(vLW)}")
    k(f"s_lshl_b32 {s(t1)}, {s(sWID)}, 2")
    k(f"s_add_u32 {s(t1)}, {s(t1)}, {FLG}")
    k(f"v_mov_b32 {v(vFW)}, {s(t1)}")
    k(f"v_and_b32 {v(vFR)}, 7, {v(vL)}")
    k(f"v_lshlrev_b32 {v(vFR)}, 2, {v(vFR)}")
    k(f"v_add_u32 {v(vFR)}, {FLG}, {v(vFR)}")


def toff(n):
    c, j = divmod(n, 4)
    return (((c + 1) % 2) * 8 + j) * TS


def flag_read(k, ta, tb, lab, vm=False):
    k("s_waitcnt vmcnt(0) lgkmcnt(0)" if vm else "s_waitcnt lgkmcnt(0)")
    k("s_barrier")
    k(f"ds_read_b32 {v(tb)}, {v(ta)}")
    k("s_waitcnt lgkmcnt(0)")
    k(f"v_cmp_ne_u32 vcc, 0, {v(tb)}")
    k(f"s_cbranch_vccnz {lab}")


NFB = [0]


def attention(k):
    va = Alloc(26, 168)
    MX = [va(), va()]
    vD = [va() for _ in range(3)]
    Q1 = [va(4) for _ in range(2)]
    Q2 = [va(2) for _ in range(2)]
    KF1 = va(4); KF2 = va(2)
    VF = [va(4) for _ in range(2)]
    va.cur = 120
    P = [va(8, 4) for _ in range(2)]
    SS = [va(16, 4) for _ in range(2)]
    O = [64, 80]
    lq = Q(k, "lgkmcnt", 15)
    if PRIO == 2:
        k("s_setprio 3")
    stamp2(k, 1, lq)
    k("s_barrier")
    stamp(k, 4, lq)

    def kread(n):
        lq.issue("k", f"ds_read_b128 {v(KF1, 4)}, {v(vK1)} offset:{toff(n)}")
        lq.issue("k", f"ds_read_b64 {v(KF2, 2)}, {v(vK2)} offset:{toff(n)}")

    def vread(n):
        for q in range(4):
            lq.issue(f"v{q // 2}", f"ds_read_b64_tr_b16 {v(VF[q // 2] + 2 * (q % 2), 2)}, {v(vV[q])} offset:{toff(n)}")

    def qk(qt):
        return [f"{MF32} {v(SS[qt], 16)}, {v(KF1, 4)}, {v(Q1[qt], 4)}, 0",
                f"v_mfma_f32_32x32x8_bf16 {v(SS[qt], 16)}, {v(KF2, 2)}, {v(Q2[qt], 2)}, {v(SS[qt], 16)}"]

    def pv(qt, first=False, mf=MH32):
        return [f"{mf} {v(O[qt], 16)}, {v(VF[t], 4)}, {v(P[qt] + 4 * t, 4)}, " + ("0" if first and t == 0 else v(O[qt], 16))
                for t in range(2)]

    def softmax_ops(qt):
        ops = []
        S = SS[qt]
        for i in range(10):
            if i < 8:
                ops.append(f"v_cvt_pknorm_u16_f32 {v(S + 2 * i)}, {v(S + 2 * i)}, {v(S + 2 * i + 1)}")
            if 1 <= i < 9:
                c = i - 1
                ops.append(f"v_pk_add_u16 {v(S + 2 * c + 1)}, {v(S + 2 * c)}, {s(sKA)} clamp")
            if i >= 2:
                c = i - 2
                ops.append(f"v_pk_fma_f16 {v(P[qt] + c)}, {v(S + 2 * c + 1)}, {s(sKC)}, {v(S + 2 * c)}")
        return ops

    def emit(x):
        if callable(x):
            x()
        else:
            k(x)

    def phase(valu, ins):
        for i, t in enumerate(valu):
            for x in ins.get(i, []):
                emit(x)
            k(t)

    for qt in range(2):
        lq.issue("k" if qt == 0 else "q", f"ds_read_b128 {v(Q1[qt], 4)}, {v(vQA[2 * qt])}")
        lq.issue("k" if qt == 0 else "q", f"ds_read_b64 {v(Q2[qt], 2)}, {v(vQA[2 * qt + 1])}")
        if qt == 0:
            kread(0)
    lq.wait("k")
    for t in qk(0):
        k(t)
    lq.wait("q")
    NT = 32
    X = {}

    def put(n, ph, idx, f):
        X.setdefault((n, ph), {}).setdefault(idx, []).append(f)

    if PRIO == 2:
        for n in range(NT):
            if n % 4 == 3:
                if n < 31:
                    put(n, 0, BASE[3], "s_setprio 3")
            else:
                put(n + PRP[0], PRP[1], PRP[2], f"s_setprio {max(2 - n % 4, E('K2_PMIN', '0'))}")

    if CAP1:
        put(*TRIG2, lambda: lq.issue("t", f"ds_write_b32 {v(vFW)}, {v(vFW)} offset:128"))

    def merge(base, extra):
        out = {i: list(l) for i, l in base.items()}
        for i, l in extra.items():
            out.setdefault(i, []).extend(l)
        return out

    def step(n):
        it, j = divmod(n, 4)
        q = qk(1)
        p = pv(1, n == 1) if n > 0 else [None, None]
        kr = []
        if n + 1 < NT:
            if j == 3:
                kr.append(lambda: waits(k, lg=lq.all(), vm=0 if it + 1 == HMB else None))
                kr.append(lambda: stamp2(k, 2 + it, lq))
                kr.append("s_barrier")
            kr.append(lambda n=n: kread(n + 1))
        s0 = [p[0]] if p[0] else []
        s1 = ([p[1]] if p[1] else []) + [lambda n=n: vread(n)]
        phase(softmax_ops(0), merge(dict(zip(BASE, [s0, s1, [q[0]], [q[1]] + kr])), X.get((n, 0), {})))
        p = pv(0, n == 0)
        q = qk(0)
        sq = [[lambda: lq.wait("k"), q[0]], [q[1]]] if n + 1 < NT else [[], []]
        phase(softmax_ops(1), merge(dict(zip(BASE, [[lambda: lq.wait("v0"), p[0]], [lambda: lq.wait("v1"), p[1]]] + sq)), X.get((n, 1), {})))
        if DIAG and n == 7:
            stamp(k, 5, lq)
    for n in range(NT):
        step(n)

    def hand_over():
        for r in range(3):
            k(f"ds_write_b128 {v(vXW)}, {v(O[0] + 4 * r, 4)} offset:{1024 * r}")
        k(f"v_or_b32 {v(O[0] + 12)}, 1, {v(O[0] + 12)}")
        k(f"ds_write_b32 {v(vLW)}, {v(O[0] + 12)}")
    p = pv(1)
    k(p[0])
    hand_over()
    k(p[1])
    stamp(k, 6, lq)
    stamp2(k, 9, lq)
    k.label("L_k2_mg")
    k(f"ds_read_b32 {v(SS[0] + 12)}, {v(vLR)}")
    for r in range(3):
        k(f"ds_read_b128 {v(SS[0] + 4 * r, 4)}, {v(vXR)} offset:{1024 * r}")
    X = O[1]
    PL = P[0] + 4
    k("s_waitcnt lgkmcnt(3)")
    k(f"v_cmp_eq_u32 vcc, 0, {v(SS[0] + 12)}")
    k("s_cbranch_vccnz L_k2_ms")
    k(f"v_add_f32 {v(X + 12)}, {v(X + 12)}, {v(SS[0] + 12)}")
    k(f"v_rcp_f32 {v(vt[0])}, {v(X + 12)}")
    k(f"v_cmp_nle_f32 vcc, {f32(64.0)}, {v(X + 12)}")
    k(f"s_mov_b64 {s(sTMP, 2)}, vcc")
    for g in range(3):
        k(f"s_waitcnt lgkmcnt({2 - g})")
        for r in range(4 * g, 4 * g + 4, 2):
            k(f"v_pk_add_f32 {v(X + r, 2)}, {v(X + r, 2)}, {v(SS[0] + r, 2)}")
        for r in range(4 * g, 4 * g + 4, 2):
            k(f"v_pk_mul_f32 {v(X + r, 2)}, {v(X + r, 2)}, {v(vt[0], 2)} op_sel_hi:[1,0]")
        for c in range(2 * g, 2 * g + 2):
            k(f"v_cvt_pk_bf16_f32 {v(P[0] + c)}, {v(X + 2 * c)}, {v(X + 2 * c + 1)}")
        k(f"v_or_b32 {v(P[0] + 2 * g)}, 1, {v(P[0] + 2 * g)}")
        r = 4 * g
        if g == 0:
            k(f"v_maximum3_f32 {v(X + 13)}, |{v(X)}|, |{v(X + 1)}|, |{v(X + 2)}|")
            k(f"v_maximum3_f32 {v(X + 13)}, |{v(X + 3)}|, |{v(X + 3)}|, {v(X + 13)}")
        else:
            k(f"v_maximum3_f32 {v(X + 13)}, |{v(X + r)}|, |{v(X + r + 1)}|, {v(X + 13)}")
            k(f"v_maximum3_f32 {v(X + 13)}, |{v(X + r + 2)}|, |{v(X + r + 3)}|, {v(X + 13)}")
    k(f"v_cmp_nge_f32 vcc, {f32(2.0 ** 60)}, {v(X + 13)}")
    k(f"s_or_b64 {s(sTMP, 2)}, vcc, {s(sTMP, 2)}")
    k(f"v_cmp_nle_f32 vcc, {f32(2.0 ** -16)}, {v(X + 13)}")
    k(f"s_or_b64 vcc, vcc, {s(sTMP, 2)}")
    k(f"s_cselect_b32 {s(t0)}, 1, 0")
    k(f"s_andn2_b32 {s(t0)}, {s(t0)}, {s(sPASS)}")
    k("s_cbranch_scc1 L_k2_ns")
    k(f"buffer_store_dwordx4 {v(P[0], 4)}, {v(vL16)}, {s(SW_, 4)}, {s(sOO)} offen sc1")
    k("s_mov_b64 exec, 0xffffffff")
    k(f"buffer_store_dwordx2 {v(PL, 2)}, {v(vQ2)}, {s(SW_, 4)}, {s(sQO)} offen sc1")
    k("s_mov_b64 exec, -1")
    k.label("L_k2_ns")
    k(f"v_add_u32 {v(vt[0])}, {s(t0)}, 1")
    k(f"ds_write_b32 {v(vFW)}, {v(vt[0])}")
    stamp(k, 7, lq)
    stamp2(k, 10, lq)
    k("s_setprio 0")
    k(f"s_cmp_eq_u32 {s(sPASS)}, 1")
    k("s_cbranch_scc1 L_k2_ae")
    k.label("L_k2_av")
    k("s_sleep 2")
    k(f"ds_read_b32 {v(vt[0])}, {v(vFR)}")
    k("s_waitcnt lgkmcnt(0)")
    k(f"v_cmp_eq_u32 vcc, 0, {v(vt[0])}")
    k("s_cbranch_vccnz L_k2_av")
    k(f"v_cmp_eq_u32 vcc, 2, {v(vt[0])}")
    k("s_cbranch_vccnz L_k2_fb")
    k.label("L_k2_ae")
    endpgm(k, 0, NW, 2)

    k.label("L_k2_ms")
    k("s_sleep 1")
    k(f"ds_read_b32 {v(SS[0] + 12)}, {v(vLR)}")
    k("s_waitcnt lgkmcnt(0)")
    k(f"v_cmp_eq_u32 vcc, 0, {v(SS[0] + 12)}")
    k("s_cbranch_vccnz L_k2_ms")
    k("s_branch L_k2_mg")
    k.label("L_k2_fb")
    k("s_waitcnt vmcnt(0) lgkmcnt(0)")
    k(f"s_mov_b32 {s(sPASS)}, 1")
    k(f"v_mov_b32 {v(vt[0])}, 0")
    k(f"ds_write_b32 {v(vLW)}, {v(vt[0])}")
    dma_addr(k, vD, sWID, vL16, vt[0], vt[1], vt[2])
    for qt in range(2):
        k(f"v_mov_b32 {v(MX[qt])}, 0xff800000")
    k(f"s_mov_b32 {s(t1)}, 0x108")
    k(f"s_mov_b32 {s(t0)}, {f32(65535.0 / 1024.0)}")

    def fbar(n=1):
        k("s_barrier")
        NFB[0] += n

    def sweep(lab, body):
        k(f"s_mov_b32 {s(sCNT)}, 0")
        k(f"s_mov_b32 {s(sKO)}, {80 * 512}")
        k.label(lab)
        k("s_waitcnt lgkmcnt(0)")
        fbar(8)
        k(f"s_mov_b32 m0, {s(sM0)}")
        for j in range(3):
            k(f"buffer_load_dwordx4 {v(vD[j])}, {s(SW_, 4)}, {s(sKO)} offen offset:{1024 * j}{SC} lds")
        if body is bexp:
            k(f"s_sub_u32 m0, {s(sM0)}, {8 * TS}")
            k(f"s_add_u32 {s(t2)}, {s(sKO)}, {VDELTA}")
            for j in (1, 2):
                k(f"buffer_load_dwordx4 {v(vD[j])}, {s(SW_, 4)}, {s(t2)} offen offset:{1024 * j}{SC} lds")
        k(f"s_add_u32 {s(sKO)}, {s(sKO)}, {8 * TT_QKV}")
        k("s_waitcnt vmcnt(0)")
        fbar(8)
        for j in range(4):
            kread(j)
            if body is bexp:
                vread(j)
                for q in range(4):
                    k(f"ds_read_b64_tr_b16 {v(P[0] + 2 * q, 2)}, {v(vV[q])} offset:{toff(4 + j)}")
            k("s_waitcnt lgkmcnt(0)")
            if body is bexp:
                for r in range(8):
                    A, B = VF[0] + r, P[0] + r
                    k(f"v_cvt_f32_f16 {v(vt[0])}, {v(A)}")
                    k(f"v_lshlrev_b32 {v(vt[1])}, 16, {v(B)}")
                    k(f"v_cmp_class_f16 vcc, {v(A)}, {s(t1)}")
                    k(f"v_cndmask_b32 {v(vt[0])}, {v(vt[1])}, {v(vt[0])}, vcc")
                    k(f"v_lshrrev_b32 {v(A)}, 16, {v(A)}")
                    k(f"v_cvt_f32_f16 {v(vt[2])}, {v(A)}")
                    k(f"v_and_b32 {v(vt[1])}, 0xffff0000, {v(B)}")
                    k(f"v_cmp_class_f16 vcc, {v(A)}, {s(t1)}")
                    k(f"v_cndmask_b32 {v(vt[2])}, {v(vt[1])}, {v(vt[2])}, vcc")
                    k(f"v_cvt_pk_bf16_f32 {v(A)}, {v(vt[0])}, {v(vt[2])}")
            for qt in range(2):
                for t in qk(qt):
                    k(t)
            for qt in range(2):
                body(qt)
        k(f"s_add_u32 {s(sCNT)}, {s(sCNT)}, 1")
        k(f"s_cmp_lt_u32 {s(sCNT)}, 8")
        k(f"s_cbranch_scc1 {lab}")
        fbar()

    def bmax(qt):
        for r in range(0, 16, 2):
            k(f"v_max3_f32 {v(MX[qt])}, {v(MX[qt])}, {v(SS[qt] + r)}, {v(SS[qt] + r + 1)}")

    def bexp(qt):
        for r in range(16):
            k(f"v_sub_f32 {v(SS[qt] + r)}, {v(SS[qt] + r)}, {v(MX[qt])}")
        for r in range(16):
            k(f"v_mul_f32 {v(SS[qt] + r)}, {s(t0)}, {v(SS[qt] + r)}")
        for r in range(16):
            k(f"v_exp_f32 {v(SS[qt] + r)}, {v(SS[qt] + r)}")
        for c in range(8):
            k(f"v_cvt_pk_bf16_f32 {v(P[qt] + c)}, {v(SS[qt] + 2 * c)}, {v(SS[qt] + 2 * c + 1)}")
        for t in pv(qt, False, MF32):
            k(t)
    assert VF[1] == VF[0] + 4 and P[1] == P[0] + 8
    sweep("L_k2_mx", bmax)
    k(f"ds_write_b32 {v(vXW)}, {v(MX[1])}")
    k(f"ds_write_b32 {v(vXW)}, {v(MX[0])} offset:4")
    k("s_waitcnt lgkmcnt(0)")
    fbar()
    k(f"ds_read_b64 {v(KF2, 2)}, {v(vXR)}")
    for qt in range(2):
        for r in range(16):
            k(f"v_mov_b32 {v(O[qt] + r)}, 0")
    k("s_waitcnt lgkmcnt(0)")
    for qt in range(2):
        m = MX[qt]
        k(f"v_max_f32 {v(m)}, {v(m)}, {v(KF2 + qt)}")
        k(f"v_mov_b32 {v(vt[0])}, {v(m)}")
        k(f"v_permlane32_swap_b32 {v(vt[0])}, {v(m)}")
        k(f"v_max_f32 {v(m)}, {v(m)}, {v(vt[0])}")
    sweep("L_k2_ex", bexp)
    hand_over()
    k("s_branch L_k2_mg")


gM0, gMB, gMQ, gB1, gT0, gQS, gQL, gKQ = 4, 5, 6, 8, 14, 11, 12, 19
gQ8 = 13
gD = [88, 89, 90]
gWD = [91 + i for i in range(5)]
gF, gFA, gMA, gF2, gPA = 164, 165, 166, 167, 163
gPAD = 152


def setup_a(k):
    ids(k)
    k(f"s_memrealtime {s(gT0, 2)}")
    k(f"s_and_b32 {s(gKQ)}, {s(sWID)}, 3")
    k(f"s_lshl_b32 {s(t1)}, {s(gKQ)}, 1")
    k(f"v_lshlrev_b32 {v(gF)}, 4, {v(vL)}")
    dma_addr(k, gD, t1, gF, gFA, gMA, gF2)
    k(f"s_mul_i32 {s(gM0)}, {s(gKQ)}, {TS}")
    k(f"s_add_u32 {s(gM0)}, {s(gM0)}, {RB}")
    k(f"s_mov_b32 {s(gB1)}, 0x01010101")
    k(f"s_mov_b32 {s(gB1 + 1)}, 0x01010101")
    k(f"v_lshrrev_b32 {v(gF)}, 3, {v(vL)}")
    k(f"v_and_b32 {v(gFA)}, 7, {v(vL)}")
    k(f"v_lshlrev_b32 {v(gFA)}, 2, {v(gFA)}")
    k(f"v_lshl_add_u32 {v(gFA)}, {v(gF)}, 8, {v(gFA)}")
    k(f"s_lshr_b32 {s(t0)}, {s(gKQ)}, 1")
    k(f"s_lshl_b32 {s(t0)}, {s(t0)}, 5")
    k(f"s_lshl_b32 {s(gMB)}, {s(sHEAD)}, 11")
    k(f"s_add_u32 {s(gMB)}, {s(gMB)}, {s(t0)}")
    k(f"s_add_u32 {s(gMB)}, {s(gMB)}, {WS_MB}")
    k(f"s_lshl_b32 {s(gQ8)}, {s(sQB)}, 3")
    k(f"s_lshl_b64 {s(gMQ, 2)}, 3, {s(gQ8)}")
    k(f"s_lshr_b32 {s(gQ8)}, {s(gQ8)}, 1")
    k(f"s_mul_i32 {s(gQS)}, {s(sQB)}, {8 * TT_QKV}")
    k(f"s_mul_i32 {s(gQL)}, {s(gKQ)}, 3072")
    k(f"v_min_u32 {v(gPA)}, 7, {v(vL)}")
    k(f"v_mul_u32_u24 {v(gPA)}, {TS}, {v(gPA)}")
    k(f"v_add_u32 {v(gPA)}, {RB}, {v(gPA)}")
    for r, x in enumerate(["0x3f803f80", "0x3f803f80", "0x3c00", 0, 0, 0, BIAS, 0]):
        k(f"v_mov_b32 {v(gPAD + r)}, {x}")
    k("s_waitcnt lgkmcnt(0)")
    k(f"s_add_u32 {s(gT0)}, {s(gT0)}, 200000")
    return gT0


def gwaves(k):
    lq = Q(k, "lgkmcnt", 15)
    vq = Q(k, "vmcnt", 63)
    SWD, SWO, SOUT = 36, 40, 44
    sNR, sDN, sAV, sTMP = 28, 30, 48, 50
    sH = [52, 53, 54, 55]
    sKO, sWc, sWD, sWO, sOA, sGO, sBO, sLA, sHB, sFL, sCNT, sPND = 3, 20, 56, 57, 58, 59, 97, 98, 99, 100, 101, 10
    sPW = [6, 7, 12]
    sHM = 16
    vHB, vAR, vAR1, vOUT, vG, vT, vLL = 0, 2, 3, 6, 4, 7, 1
    ACC = lambda j, ct: 8 + 20 * j + 4 * ct
    AF = [96 + 4 * i for i in range(4)]
    HF = [112 + 4 * i for i in range(14)]
    OF = [88 + 4 * i for i in range(20)]
    k.label("L_g")
    stamp(k, 1)
    k(f"buffer_load_dword {v(gF)}, {v(gFA)}, {s(SW_, 4)}, {s(gMB)} offen sc1")
    k(f"s_load_dwordx2 {s(SWD, 2)}, s[0:1], {KA_WD}")
    k(f"s_load_dwordx2 {s(SWO, 2)}, s[0:1], {KA_WO}")
    k(f"s_load_dwordx2 {s(SOUT, 2)}, s[0:1], {KA_OUT}")
    k(f"s_mov_b64 {s(sDN, 2)}, 0")

    def pads(par):
        k(f"ds_write_b128 {v(gPA)}, {v(gPAD, 4)} offset:{8 * TS * (1 - par) + 3072}")
        k(f"ds_write_b128 {v(gPA)}, {v(gPAD + 4, 4)} offset:{8 * TS * (1 - par) + 3088}")
    pads(0)

    def late():
        k(f"s_memrealtime {s(sTMP, 2)}")
        k("s_waitcnt vmcnt(0) lgkmcnt(0)")
        k(f"s_sub_u32 {s(sTMP)}, {s(gT0)}, {s(sTMP)}")
        k(f"s_ashr_i32 {s(sTMP)}, {s(sTMP)}, 31")
        k(f"v_or_b32 {v(gF)}, {s(sTMP)}, {v(gF)}")

    def poll(lab, first):
        if not first:
            t_kv()
            k(f"s_cbranch_scc1 {lab}x")
        else:
            k(f"s_branch {lab}y")
        k.label(lab)
        k(f"buffer_load_dword {v(gF)}, {v(gFA)}, {s(SW_, 4)}, {s(gMB)} offen sc1")
        k.label(lab + "y")
        late()
        k(f"v_cmp_eq_u32 vcc, 0, {v(gF)}")
        k(f"s_lshr_b64 {s(sNR, 2)}, vcc, 2")
        for sh in (1, 2):
            k(f"s_lshr_b64 {s(sTMP, 2)}, {s(sNR, 2)}, {sh}")
            k(f"s_or_b64 {s(sNR, 2)}, {s(sNR, 2)}, {s(sTMP, 2)}")
        if first:
            k(f"s_and_b64 vcc, vcc, {s(gMQ, 2)}")
            k(f"s_cselect_b64 {s(sTMP, 2)}, -1, 0")
            k(f"s_or_b64 {s(sAV, 2)}, {s(sNR, 2)}, {s(sTMP, 2)}")
            k(f"s_andn2_b64 {s(sAV, 2)}, {s(gB1, 2)}, {s(sAV, 2)}")
        else:
            t_kv()
        k(f"s_cbranch_scc1 {lab}x")
        k(f"s_sleep {PSL0}")
        k(f"s_branch {lab}")
        k.label(lab + "x")

    def gate(lab, kv, mask):
        k.label(lab)
        k(f"buffer_load_dword {v(vT)}, {v(vG)}, {s(SW_, 4)}, {s(sHB)} offen sc1")
        if kv:
            k(f"buffer_load_dword {v(gF)}, {v(gFA)}, {s(SW_, 4)}, {s(gMB)} offen offset:8 sc1")
        k(f"s_memrealtime {s(sTMP, 2)}")
        k("s_waitcnt vmcnt(0) lgkmcnt(0)")
        k(f"v_cmp_eq_u32 vcc, 0, {v(vT)}")
        k(f"s_and_b64 {s(sNR, 2)}, vcc, {mask}")
        if kv:
            k(f"v_cmp_eq_u32 vcc, 0, {v(gF)}")
            k(f"s_or_b64 {s(sNR, 2)}, {s(sNR, 2)}, vcc")
        k(f"s_cbranch_scc0 {lab}x")
        k(f"s_sub_u32 {s(sTMP)}, {s(sTMP)}, {s(gT0)}")
        k(f"s_cmp_ge_i32 {s(sTMP)}, 0")
        k(f"s_cbranch_scc1 {lab}x")
        k(f"s_sleep {PSLA}")
        k(f"s_branch {lab}")
        k.label(lab + "x")
        k(f"s_mov_b64 {s(sNR, 2)}, 0")
        vq.q, lq.q = [], []

    def t_kv():
        k(f"s_or_b64 {s(sAV, 2)}, {s(sNR, 2)}, {s(sDN, 2)}")
        k(f"s_andn2_b64 {s(sAV, 2)}, {s(gB1, 2)}, {s(sAV, 2)}")

    def dma_chunk(c):
        if c in KROT:
            k(f"s_lshr_b32 {s(t0)}, {sum((KROT[c][0] + q % KROT[c][1]) << (4 * q) for q in range(8))}, {s(gQ8)}")
            k(f"s_lshl_b32 {s(t0)}, {s(t0)}, 3")
            k(f"s_lshl_b64 {s(sTMP, 2)}, -1, {s(t0)}")
            k(f"s_and_b64 {s(sTMP, 2)}, {s(sTMP, 2)}, {s(sAV, 2)}")
            k(f"s_cselect_b64 {s(sAV, 2)}, {s(sTMP, 2)}, {s(sAV, 2)}")
        k(f"s_ff1_i32_b64 {s(t0)}, {s(sAV, 2)}")
        k(f"s_bitset1_b64 {s(sDN, 2)}, {s(t0)}")
        k(f"s_mul_i32 {s(sKO)}, {s(t0)}, {TT_QKV}")
        for e in range(2):
            k(f"s_add_u32 m0, {s(gM0)}, {toff(4 * c) + 4 * e * TS}")
            k(f"s_add_u32 {s(sKO)}, {s(sKO)}, {TT_QKV if e else 80 * 512}")
            for j in range(3):
                vq.issue(f"c{c}", f"buffer_load_dwordx4 {v(gD[j])}, {s(SW_, 4)}, {s(sKO)} offen offset:{1024 * j}{SC} lds")
    poll("L_k2_p0", True)
    stamp(k, 2)
    dma_chunk(0)
    for e in range(2):
        k(f"s_add_u32 m0, {s(gQL)}, {1536 * e}")
        vq.issue("c0", f"buffer_load_dwordx4 {v(gD[0])}, {s(SW_, 4)}, {s(gQS)} offen{SC} lds")
        k("s_mov_b64 exec, 0xffffffff")
        vq.issue("c0", f"buffer_load_dwordx4 {v(gD[1])}, {s(SW_, 4)}, {s(gQS)} offen offset:1024{SC} lds")
        k("s_mov_b64 exec, -1")
        k(f"s_add_u32 {s(gQS)}, {s(gQS)}, {TT_QKV}")

    sPF, sKD, sKHH, vPF = 23, 18, 11, 5

    def pfw(what):
        for x in what:
            k(f"s_lshr_b32 {s(t0)}, s2, 3")
            if x in "ab":
                k(f"s_mul_i32 {s(t1)}, {s(gKQ)}, 60")
                k(f"s_add_u32 {s(t0)}, {s(t0)}, {s(t1)}")
                if x == "b":
                    k(f"s_add_u32 {s(t0)}, {s(t0)}, 30")
            elif x == "c":
                k(f"s_lshl_b32 {s(t0)}, {s(t0)}, 2")
                k(f"s_add_u32 {s(t0)}, {s(t0)}, {s(gKQ)}")
            k(f"s_lshl_b32 {s(t0)}, {s(t0)}, 13")
            sr = {"c": SWO, "h": SW_}.get(x, SWD)
            vq.issue("pf", f"buffer_load_dword {v(vT)}, {v(vPF)}, {s(sr, 4)}, {s(sPF if x == 'h' else t0)} offen" + (SC if x == "h" else ""))

    def adv(r, step, lim):
        k(f"s_add_u32 {s(r)}, {s(r)}, {step}")
        k(f"s_cmp_ge_u32 {s(r)}, {lim}")
        k(f"s_cselect_b32 {s(r)}, 0, {s(r)}")

    def setup_b():
        srd(k, SWD, SWD, F_ * D_ * 2)
        srd(k, SWO, SWO, D_ * D_ * 2)
        srd(k, SOUT, SOUT, S_ * D_ * 2)
        k(f"v_lshlrev_b32 {v(vPF)}, 7, {v(vL)}")
        pfw(PFW.get(-1, ""))
        k(f"s_bfe_u32 {s(t0)}, s2, 0x20003")
        k(f"s_lshl_b32 {s(t0)}, {s(t0)}, 1")
        k(f"s_lshr_b32 {s(t1)}, s2, 5")
        k(f"s_add_u32 {s(t0)}, {s(t0)}, {s(t1)}")
        k(f"s_mul_i32 {s(t0)}, {s(t0)}, 3")
        k(f"s_lshr_b32 {s(t0)}, {s(t0)}, 1")
        k(f"s_cmp_ge_u32 {s(t0)}, 12")
        k(f"s_cselect_b32 {s(t1)}, 12, 0")
        k(f"s_sub_u32 {s(t0)}, {s(t0)}, {s(t1)}")
        if not GROT:
            k(f"s_mov_b32 {s(t0)}, 0")
        k(f"s_mul_i32 {s(sKD)}, {s(t0)}, {32 * 1280}")
        k(f"s_lshl_b32 {s(sKHH)}, {s(t0)}, 11")
        k(f"s_and_b32 {s(t0)}, s2, 7")
        k(f"s_lshl_b32 {s(t0)}, {s(t0)}, 2")
        k(f"s_bfe_u32 {s(t1)}, s2, 0x20003")
        k(f"s_add_u32 {s(t0)}, {s(t0)}, {s(t1)}")
        k(f"s_lshr_b32 {s(t2)}, s2, 5")
        k(f"s_mul_i32 {s(t2)}, {s(t2)}, 160")
        k(f"s_mul_i32 {s(sWD)}, {s(gKQ)}, {384 * 1280}")
        k(f"s_add_u32 {s(sWD)}, {s(sWD)}, {s(t2)}")
        k(f"s_mul_i32 {s(sWO)}, {s(gKQ)}, {160 * 1280}")
        k(f"s_add_u32 {s(sWO)}, {s(sWO)}, {s(t2)}")
        k(f"s_lshl_b32 {s(t1)}, {s(t0)}, 2")
        k(f"s_add_u32 {s(t1)}, {s(t1)}, {s(gKQ)}")
        k(f"s_mul_i32 {s(sBO)}, {s(t1)}, {16 * 1280}")
        k(f"s_add_u32 {s(sBO)}, {s(sBO)}, {s(t2)}")
        k(f"s_lshl_b32 {s(sGO)}, {s(t1)}, 6")
        k(f"s_add_u32 {s(sGO)}, {s(sGO)}, {WS_G}")
        k(f"s_lshr_b32 {s(t2)}, {s(t1)}, 1")
        k(f"s_mul_i32 {s(sOA)}, {s(t2)}, {TT_QKV}")
        k(f"s_lshr_b32 {s(t2)}, {s(t0)}, 1")
        k(f"s_lshl_b32 {s(sHB)}, {s(t2)}, 8")
        k(f"s_add_u32 {s(sHB)}, {s(sHB)}, {WS_MB + 128}")
        k(f"s_lshl_b32 {s(sFL)}, {s(sRB)}, 8")
        k(f"s_lshl_b32 {s(t2)}, {s(sCG)}, 2")
        k(f"s_add_u32 {s(sFL)}, {s(sFL)}, {s(t2)}")
        k(f"s_add_u32 {s(sFL)}, {s(sFL)}, {WS_MB + 128}")
        k(f"s_lshl_b32 {s(t2)}, {s(gKQ)}, 2")
        k(f"s_lshl_b64 {s(sHM, 2)}, 15, {s(t2)}")
        k(f"s_mul_i32 {s(sLA)}, {s(gKQ)}, {WA}")
        k(f"s_mul_i32 {s(t0)}, {s(t0)}, {2 * TT_H}")
        k(f"s_mul_i32 {s(t1)}, {s(gKQ)}, {48 * 512}")
        k(f"s_add_u32 {s(t0)}, {s(t0)}, {s(t1)}")
        k(f"s_add_u32 {s(t0)}, {s(t0)}, {WS_H}")
        k(f"s_lshr_b32 {s(t1)}, s2, 5")
        k(f"s_lshl_b32 {s(sPF)}, {s(t1)}, 13")
        k(f"s_add_u32 {s(sPF)}, {s(sPF)}, {s(t0)}")
        k(f"s_cmp_ge_u32 {s(t1)}, 3")
        k(f"s_cselect_b32 {s(t2)}, {TT_H - 3 * 8192}, 0")
        k(f"s_add_u32 {s(sPF)}, {s(sPF)}, {s(t2)}")
        k(f"s_cmp_ge_u32 {s(t1)}, 6")
        k(f"s_cselect_b32 {s(sPF)}, {OOB}, {s(sPF)}")
        for j in range(4):
            k(f"s_add_u32 {s(t1)}, {s(gKQ)}, {j}")
            k(f"s_and_b32 {s(t1)}, {s(t1)}, 3")
            if j:
                k(f"s_mul_i32 {s(sPW[j - 1])}, {s(t1)}, {WA}")
            k(f"s_lshr_b32 {s(t2)}, {s(t1)}, 1")
            k(f"s_mul_i32 {s(t2)}, {s(t2)}, {TT_H}")
            k(f"s_and_b32 {s(t1)}, {s(t1)}, 1")
            k(f"s_lshl_b32 {s(t1)}, {s(t1)}, 8")
            k(f"s_add_u32 {s(t1)}, {s(t1)}, {s(t2)}")
            k(f"s_add_u32 {s(sH[j])}, {s(t0)}, {s(t1)}")
        ta, tb, tc = 8, 9, 10
        for q in range(5):
            k(f"v_add_u32 {v(ta)}, {64 * q}, {v(vL)}")
            k(f"v_mul_u32_u24 {v(tb)}, 6554, {v(ta)}")
            k(f"v_lshrrev_b32 {v(tb)}, 16, {v(tb)}")
            k(f"v_mad_i32_i24 {v(ta)}, {v(tb)}, -10, {v(ta)}")
            k(f"v_lshrrev_b32 {v(tc)}, 1, {v(tb)}")
            k(f"v_xor_b32 {v(tc)}, {v(tc)}, {v(tb)}")
            k(f"v_and_b32 {v(tc)}, 4, {v(tc)}")
            k(f"v_mul_u32_u24 {v(tc)}, 3, {v(tc)}")
            k(f"v_xor_b32 {v(tb)}, {v(tb)}, {v(tc)}")
            k(f"v_mul_u32_u24 {v(tb)}, 1280, {v(tb)}")
            k(f"v_lshl_add_u32 {v(gWD[q])}, {v(ta)}, 4, {v(tb)}")
            if q % 4:
                k(f"v_subrev_u32 {v(gWD[q])}, {1024 * q}, {v(gWD[q])}")
        k(f"v_lshrrev_b32 {v(ta)}, 5, {v(vL)}")
        k(f"v_bfe_u32 {v(tb)}, {v(vL)}, 2, 3")
        k(f"v_lshl_add_u32 {v(ta)}, {v(ta)}, 4, {v(tb)}")
        k(f"v_mul_u32_u24 {v(ta)}, 160, {v(ta)}")
        k(f"v_and_b32 {v(tb)}, 3, {v(vL)}")
        k(f"v_lshl_add_u32 {v(vAR1)}, {v(tb)}, 3, {v(ta)}")
        k(f"v_add_u32 {v(vAR)}, {s(sLA)}, {v(vAR1)}")
        k(f"v_lshrrev_b32 {v(ta)}, 4, {v(vL)}")
        k(f"v_and_b32 {v(tb)}, 15, {v(vL)}")
        k(f"v_lshlrev_b32 {v(tc)}, 4, {v(tb)}")
        k(f"v_lshl_add_u32 {v(vHB)}, {v(ta)}, 9, {v(tc)}")
        k(f"v_mul_u32_u24 {v(tc)}, 1280, {v(tb)}")
        k(f"v_lshl_add_u32 {v(vOUT)}, {v(ta)}, 3, {v(tc)}")
        k(f"v_lshlrev_b32 {v(vG)}, 2, {v(tb)}")
        k(f"v_mov_b32 {v(gF2)}, 1")
    setup_b()
    vq.wait("c0")
    stamp2(k, 1)
    k("s_barrier")
    stamp(k, 3)

    def w_dma(tag, sr, so, row, blk):
        if sr == SWD:
            k(f"s_add_u32 {s(sWc)}, {s(so)}, {s(sKD)}")
            adv(sKD, 32 * 1280, 384 * 1280)
        else:
            k(f"s_add_u32 {s(sWc)}, {s(so)}, {row * 1280}")
        for q in range(5):
            if q % 4 == 0:
                k(f"s_add_u32 m0, {s(sLA)}, {5120 * blk + 1024 * q}")
            vq.issue(tag, f"buffer_load_dwordx4 {v(gWD[q])}, {s(sr, 4)}, {s(sWc)} offen offset:{1024 * (q % 4)} lds")

    def h_load(i):
        if i >= 48:
            return
        ks, j = divmod(i, 4)
        k(f"s_add_u32 {s(sWc)}, {s(sH[j])}, {s(sKHH)}")
        if j == 3:
            adv(sKHH, 2048, 12 * 2048)
        vq.issue(f"h{i}", f"buffer_load_dwordx4 {v(HF[i % 14], 4)}, {v(vHB)}, {s(SW_, 4)}, {s(sWc)} offen{SC}")

    def a_read(a):
        if a >= 60:
            return
        ks, ct = divmod(a, 5)
        if ct == 0:
            vq.wait(f"d{ks}")
        for e in range(2):
            lq.issue(f"a{a}", f"ds_read_b64_tr_b16 {v(AF[a % 4] + 2 * e, 2)}, {v(vAR)} offset:{5120 * (ks % 5) + 1280 * e + 32 * ct}")
    WOB = [0, 1, 2, 3, 4]

    def b_mfma(i):
        a, j = divmod(i, 4)
        ks, ct = divmod(a, 5)
        waits(k, lg=lq.need(f"a{a}"), vm=vq.need(f"h{4 * ks + j}"))
        k(f"{M16} {v(ACC(j, ct), 4)}, {v(AF[a % 4], 4)}, {v(HF[(4 * ks + j) % 14], 4)}, " + ("0" if ks == 0 else v(ACC(j, ct), 4)))
        if j == 0 and ct == 4:
            if ks + 5 < 12:
                w_dma(f"d{ks + 5}", SWD, sWD, 32 * (ks + 5), ks % 5)
            elif ks >= 10:
                w_dma("wo", SWO, sWO, 32 * (ks - 10), WOB[ks - 10])
        if j == 1 and a >= 1:
            a_read(a + 3)
        if ct == 0 and ks >= 1 and j < 3:
            pass
        if ct == 4 and j >= 1:
            h_load(4 * ks + j - 1 + 14)
        if ct == 0 and j == 0 and ks >= 1:
            h_load(4 * ks - 1 + 14)
    assert sum(QUOTA) == 240 and len(QUOTA) == 8 and not any(QUOTA[:GATE])
    LG = max(i for i in range(8) if QUOTA[i])
    assert QUOTA[LG] <= 40 - 16 or True
    assert LG < 7 and sum(QUOTA[:LG]) >= 196 + 1
    im = nd = nh = 0
    for it in range(8):
        if it == HMB:
            k(f"s_cmp_eq_u32 {s(gKQ)}, 3")
            k(f"s_cbranch_scc0 L_k2_mk")
            k(f"s_mov_b64 exec, 1")
            k(f"buffer_store_dword {v(gF2)}, off, {s(SW_, 4)}, {s(sFL)} sc1")
            k("s_mov_b64 exec, -1")
            k.label(f"L_k2_mk")
        if it < 7:
            if it <= GATE:
                poll(f"L_k2_pc{it}", False)
            else:
                t_kv()
            dma_chunk(it + 1)
        if it == 0:
            pads(1)
            k(f"s_min_u32 {s(t0)}, {s(gKQ)}, 2")
            k(f"s_lshl_b32 {s(t0)}, {s(t0)}, 10")
            k(f"s_add_u32 {s(t0)}, {s(t0)}, {LX}")
            k(f"v_lshl_add_u32 {v(vT)}, {v(vL)}, 3, {s(t0)}")
            for e in range(2):
                k(f"ds_write_b64 {v(vT)}, {v(gPAD + 4, 2)} offset:{512 * e}")
            k("s_waitcnt lgkmcnt(0)")
        k(f"s_setprio {GPRIO}")
        for x in SEQ.get(it, ""):
            if x == "d":
                w_dma(f"d{nd}", SWD, sWD, 32 * nd, nd)
                nd += 1
            elif x == "G":
                assert it == GATE and HMB <= GATE
                k(f"v_and_b32 {v(gFA)}, {0xffff ^ 16}, {v(gFA)}")
                gate("L_k2_pa", True, s(sHM, 2))
                stamp(k, 4)
                stamp2(k, 10)
            elif x == "l":
                for _ in range(2):
                    h_load(nh)
                    nh += 1
            else:
                pfw(x)
        if QUOTA[it] and not im:
            assert nd == 5 and nh == 14
            for a in range(4):
                a_read(a)
        for j in range(QUOTA[it]):
            b_mfma(im)
            im += 1
            if PACE and j % 4 == 3:
                k(f"s_sleep {PACE}" if PACE > 0 else f"s_nop {-PACE - 1}")
        if it == LG:
            k(f"v_lshlrev_b32 {v(vLL)}, 4, {v(vL)}")
            for j in range(1, 4):
                k(f"v_add_u32 {v(vT)}, {s(sPW[j - 1])}, {v(vLL)}")
                for ct in range(5):
                    k(f"ds_write_b128 {v(vT)}, {v(ACC(j, ct), 4)} offset:{5120 * (1 + j) + 1024 * ct}")
            k(f"v_add_u32 {v(vT)}, {s(sLA)}, {v(vLL)}")
            k("s_waitcnt lgkmcnt(0)")
            lq.q = []
        if it == 7:
            k(f"s_cmp_eq_u32 {s(gKQ)}, 3")
            k("s_cbranch_scc0 L_k2_pt")
            k(f"s_memrealtime {s(sTMP, 2)}")
            k(f"s_and_b32 {s(t0)}, s2, 63")
            k(f"s_lshl_b32 {s(t0)}, {s(t0)}, 8")
            k(f"s_lshr_b32 {s(t1)}, s2, 6")
            k(f"s_lshl2_add_u32 {s(t0)}, {s(t1)}, {s(t0)}")
            k(f"s_add_u32 {s(t0)}, {s(t0)}, {WS_MB + 16 * 256 + 128}")
            k("s_waitcnt lgkmcnt(0)")
            k(f"s_add_u32 {s(sTMP)}, {s(sTMP)}, {DT}")
            k(f"s_or_b32 {s(sTMP)}, {s(sTMP)}, 1")
            k(f"v_mov_b32 {v(AF[1])}, {s(sTMP)}")
            k("s_mov_b64 exec, 1")
            k(f"buffer_store_dword {v(AF[1])}, off, {s(SW_, 4)}, {s(t0)} sc1")
            k("s_mov_b64 exec, -1")
            k.label("L_k2_pt")
        if it == LG + 1:
            vq.issue("gm", f"buffer_load_dword {v(AF[0])}, {v(vG)}, {s(SW_, 4)}, {s(sHB)} offen sc1")
            for j in range(1, 4):
                for ct in range(5):
                    lq.issue(f"p{j}", f"ds_read_b128 {v(ACC(j, ct), 4)}, {v(vT)} offset:{5120 * (1 + j) + 1024 * ct}")
            for j in range(1, 4):
                lq.wait(f"p{j}")
                w_dma("wo", SWO, sWO, 32 * (1 + j), WOB[1 + j])
        if DIAG and it == 5:
            stamp(k, 5)
        if it < 7:
            vq.wait(f"c{it + 1}")
            k("s_setprio 3")
            stamp2(k, 2 + it)
            k("s_barrier")
    vq.wait("gm")
    k(f"v_cmp_eq_u32 vcc, 0, {v(AF[0])}")
    k("s_cbranch_vccz L_k2_pgx")
    gate("L_k2_pg", False, -1)
    k(f"buffer_load_dword {v(vG)}, {v(vG)}, {s(SW_, 4)}, {s(sGO)} offen{SC}")
    k(f"v_mov_b32 {v(vAR)}, {v(vAR1)}")
    for j in range(1, 4):
        for r in range(0, 20, 2):
            k(f"v_pk_add_f32 {v(8 + r, 2)}, {v(8 + r, 2)}, {v(8 + 20 * j + r, 2)}")
    vPA, vND, vP, vW, vHS, vTG = vLL, vAR1, vG + 1, vT, 18, 19
    vFA, vFV, ta, tb = 84, 85, 91, 92
    sK = [3, 4, 5, 6, 7, 8, 9, 11, 12, 13]
    sO = [16, 17, 18, 20, 21, 22, 23, 28, 29, 30]
    sN, sUN, sST, SO, sSV, sMP, sML, sM2, sE, sXA, sPB = 48, 52, 53, 36, 54, 40, 41, 42, 43, 56, 57
    AK = lambda ct: 20 + 4 * ct
    AS = lambda ct: 40 + 4 * ct
    WB = lambda a: 60 + 4 * (a % 7)
    OK_ = lambda i: 88 + 8 * i
    OS_ = lambda i: 92 + 8 * i
    k(f"s_add_u32 {s(SO)}, {s(SW_)}, {s(sOA)}")
    k(f"s_addc_u32 {s(SO + 1)}, {s(SW_ + 1)}, 0")
    k(f"s_mov_b32 {s(SO + 2)}, {80 * 512}")
    k(f"s_mov_b32 {s(SO + 3)}, 0x00020000")
    k(f"v_lshrrev_b32 {v(vT)}, 4, {v(vLL)}")
    k(f"v_mul_u32_u24 {v(ta)}, 1639, {v(vT)}")
    k(f"v_add_u32 {v(tb)}, 1587, {v(ta)}")
    k(f"v_lshrrev_b32 {v(ta)}, 10, {v(ta)}")
    k(f"v_lshrrev_b32 {v(tb)}, 10, {v(tb)}")
    k(f"v_lshlrev_b32_e64 {v(ta)}, {v(ta)}, 1")
    k(f"v_lshlrev_b32_e64 {v(tb)}, {v(tb)}, 2")
    k(f"v_sub_u32 {v(vND)}, {v(tb)}, {v(ta)}")
    k(f"v_lshrrev_b32 {v(ta)}, 2, {v(vT)}")
    k(f"v_lshlrev_b32 {v(ta)}, 8, {v(ta)}")
    k(f"v_and_b32 {v(tb)}, 3, {v(vT)}")
    k(f"v_lshl_add_u32 {v(ta)}, {v(tb)}, 2, {v(ta)}")
    k(f"v_lshrrev_b32 {v(tb)}, 5, {v(vT)}")
    k(f"v_lshl_add_u32 {v(vPA)}, {v(tb)}, 30, {v(ta)}")
    k(f"s_and_b32 {s(sPB)}, s2, 7")
    k(f"s_lshl_b32 {s(sPB)}, {s(sPB)}, 11")
    k(f"s_add_u32 {s(sPB)}, {s(sPB)}, {WS_MB + 16 * 256 + 128}")
    k(f"buffer_load_dword {v(vP)}, {v(vPA)}, {s(SW_, 4)}, {s(sPB)} offen sc1")
    k(f"v_min_u32 {v(vFA)}, 11, {v(vT)}")
    k(f"v_lshlrev_b32 {v(vFA)}, 2, {v(vFA)}")
    k(f"v_add_u32 {v(vFA)}, {FLG}, {v(vFA)}")
    k(f"s_lshl_b32 {s(t0)}, {s(gKQ)}, 2")
    k(f"s_add_u32 {s(t0)}, {s(t0)}, {FLG + 32}")
    k(f"v_mov_b32 {v(ta)}, {s(t0)}")
    k(f"s_and_b32 {s(t1)}, {s(gKQ)}, 1")
    k(f"s_lshl_b32 {s(sPND)}, 0x55555, {s(t1)}")
    k(f"s_lshl_b32 {s(t1)}, {s(t1)}, 8")
    k(f"v_add_u32 {v(vHB)}, {s(t1)}, {v(vHB)}")
    k(f"s_lshr_b32 {s(sXA)}, {s(gKQ)}, 1")
    k(f"s_mul_i32 {s(sXA)}, {s(sXA)}, 10240")
    k(f"s_lshl2_add_u32 {s(sXA)}, {s(t1)}, {s(sXA)}")
    k(f"s_add_u32 {s(sXA)}, {s(sXA)}, {RB}")
    for r in range(28, 60):
        k(f"v_mov_b32 {v(r)}, 0")
    k(f"s_mov_b32 {s(sUN)}, -1")
    k(f"s_mov_b32 {s(sE)}, 0")
    k(f"s_mov_b32 {s(sCNT)}, 0")
    k("s_waitcnt vmcnt(0)")
    k(f"ds_write_b32 {v(ta)}, {v(ta)}")
    k(f"v_sub_f32 {v(tb)}, 1.0, {v(vG)}")
    for r in range(0, 20, 2):
        k(f"v_pk_mul_f32 {v(8 + r, 2)}, {v(8 + r, 2)}, {v(tb, 2)} op_sel_hi:[1,0]")
    for c in range(10):
        k(f"v_cvt_pk_bf16_f32 {v(8 + c)}, {v(8 + 2 * c)}, {v(9 + 2 * c)}")
    k(f"v_xor_b32 {v(vHS)}, 256, {v(vHB)}")
    for r in range(20, 28):
        k(f"v_mov_b32 {v(r)}, 0")
    stamp(k, 6)
    stamp2(k, 9)

    npl = [0]

    def o_poll():
        npl[0] += 1
        k(f"s_cmp_eq_u32 {s(sUN)}, 0")
        k(f"s_cbranch_scc1 L_np{npl[0]}")
        k(f"buffer_load_dword {v(vP)}, {v(vPA)}, {s(SW_, 4)}, {s(sPB)} offen sc1")
        k.label(f"L_np{npl[0]}")

    def now():
        k(f"s_memrealtime {s(sTMP, 2)}")
        k(f"v_mov_b32 {v(vTG)}, {s(gT0)}")
        k("s_waitcnt vmcnt(0)")
        k(f"v_cmp_eq_u32 vcc, 0, {v(vP)}")
        k(f"v_cndmask_b32 {v(vP)}, {v(vP)}, {v(vTG)}, vcc")
        k(f"s_mov_b32 {s(sUN)}, vcc_lo")
        k("s_waitcnt lgkmcnt(0)")

    def seen(d):
        k(f"v_sub_u32 {v(vTG)}, {s(sTMP)}, {v(vP)}")
        k(f"v_cmp_le_i32 vcc, 0, {v(vTG)}")
        k(f"v_and_b32 {v(vTG)}, vcc_lo, {v(vND)}")
        k(f"v_cmp_eq_u32 vcc, {v(vTG)}, {v(vND)}")
        k(f"s_and_b32 {s(d)}, vcc_lo, {s(sPND)}")

    def o_load(i):
        k(f"buffer_load_dwordx4 {v(OS_(i), 4)}, {v(vHS)}, {s(SO, 4)}, {s(sO[i])} offen sc1")
        k(f"buffer_load_dwordx4 {v(OK_(i), 4)}, {v(vHB)}, {s(SO, 4)}, {s(sO[i])} offen sc1")

    def w_read(a, es=(0, 1)):
        if a >= 50:
            return
        i, ct = divmod(a, 5)
        if ct == 0 and 0 in es:
            k(f"v_mad_u32_u24 {v(vW)}, {s(sK[i])}, 5, {v(vAR)}")
        for e in es:
            k(f"ds_read_b64_tr_b16 {v(WB(a) + 2 * e, 2)}, {v(vW)} offset:{1280 * e + 32 * ct}")

    def flags(off=0):
        k(f"ds_read_b32 {v(vFV)}, {v(vFA)} offset:{off}")
        k("s_waitcnt lgkmcnt(0)")
        k(f"v_cmp_eq_u32 vcc, 0, {v(vFV)}")
    if RST:
        for i in range(1, 6):
            k(f"s_mov_b32 s{60 + 2 * i}, 0")
    k("s_setprio 0")
    k(f"s_mov_b32 {s(sST)}, 0")
    if CAP1:
        k.label("L_k2_e0")
        k(f"s_sleep {TSL}")
        flags(128)
        k("s_cmp_lg_u32 vcc_lo, -1")
        k("s_cbranch_scc1 L_k2_e1")
        now()
        seen(sN)
        k(f"s_mov_b32 {s(sN + 1)}, 0")
        k(f"s_bcnt1_i32_b32 {s(t0)}, {s(sN)}")
        k(f"s_min_u32 {s(t0)}, {s(t0)}, {CAP1}")
        k(f"s_bfm_b32 {s(sMP)}, {s(t0)}, {s(sE)}")
        k(f"s_mov_b32 {s(sML)}, {s(sMP)}")
        k(f"s_add_u32 {s(sE)}, {s(sE)}, {s(t0)}")
        k(f"s_cmp_lg_u32 {s(t0)}, 0")
        k("s_cbranch_scc1 L_k2_go")
        o_poll()
        k("s_branch L_k2_e0")
        k.label("L_k2_e1")
        k(f"s_cmp_lt_u32 {s(sE)}, 2")
        k("s_cbranch_scc1 L_k2_vd")
        k.label("L_k2_w4")
        flags()
        k("s_and_b32 vcc_lo, vcc_lo, 0xf00")
        k("s_cbranch_scc1 L_k2_w4")
        for a in range(6):
            w_read(a)
    k.label("L_k2_vd")
    if VSL:
        k(f"s_sleep {VSL}")
    flags()
    k("s_cbranch_vccnz L_k2_vd")
    k(f"v_cmp_eq_u32 vcc, 2, {v(vFV)}")
    k("s_cbranch_vccnz L_k2_gf")
    k.label("L_k2_gm")
    k("s_setprio 3")
    k(f"s_mov_b32 {s(sST)}, 1")
    stamp(k, 7)
    if GD:
        k(f"s_sleep {GD}")
    k.label("L_k2_rd")
    now()
    seen(sN)
    k(f"s_sub_u32 {s(t1)}, {s(sTMP)}, {s(gT0)}")
    k(f"s_cmp_ge_i32 {s(t1)}, 0")
    k(f"s_cselect_b32 {s(sCNT)}, 2, 0")
    k(f"s_bcnt1_i32_b32 {s(t0)}, {s(sN)}")
    k(f"s_add_u32 {s(t1)}, {s(t0)}, {s(sE)}")
    k(f"s_cmp_eq_u32 {s(t1)}, 0")
    k("s_cbranch_scc1 L_k2_id")
    k(f"s_max_u32 {s(t1)}, {s(t1)}, {DO}")
    k(f"s_mul_i32 {s(t1)}, {s(t1)}, {TAU}")
    k(f"s_add_u32 {s(sTMP)}, {s(sTMP)}, {s(t1)}")
    k(f"s_sub_u32 {s(sTMP)}, {s(sTMP)}, {TAU * DO - KF}")
    seen(sN + 1)
    k(f"s_andn2_b32 {s(sN + 1)}, {s(sN + 1)}, {s(sN)}")
    k(f"s_min_u32 {s(t0)}, {s(t0)}, {DO}")
    k(f"s_bfm_b32 {s(sML)}, {s(t0)}, {s(sE)}")
    k(f"s_lshl_b32 {s(sMP)}, -1, {s(sE)}")
    k(f"s_andn2_b32 {s(sM2)}, {s(sMP)}, {s(sML)}")
    k(f"s_or_b32 {s(t0)}, {s(sN)}, {s(sN + 1)}")
    TST = E("K2_TST", "{}")
    if TST:
        stamp(k, 1)
    if RST:
        k(f"s_bcnt1_i32_b32 {s(t1)}, {s(t0)}")
        k(f"s_add_u32 {s(t1)}, {s(t1)}, {s(sE)}")
        k(f"s_lshl_b32 s62, s62, 5")
        k(f"s_or_b32 s62, s62, {s(t1)}")
        k(f"s_lshl_b32 s64, s64, 5")
        k(f"s_or_b32 s64, s64, {s(sE)}")
        k(f"s_cmp_lg_u32 s66, 0")
        k(f"s_cbranch_scc1 L_rst")
        stamp(k, 4)
        k.label("L_rst")
        k(f"s_add_u32 s66, s66, 1")
    k.label("L_k2_go")
    k(f"s_mov_b64 {s(sSV, 2)}, {s(sN, 2)}")
    for i in range(10):
        if CAP1:
            k(f"s_bitcmp1_b32 {s(sMP)}, {i}")
            k(f"s_cbranch_scc0 L_c{i}")
        k(f"s_ff1_i32_b64 {s(t0)}, {s(sN, 2)}")
        k(f"s_bitset0_b64 {s(sN, 2)}, {s(t0)}")
        k(f"s_lshl_b32 {s(t0)}, {s(t0)}, 10")
        k(f"s_and_b32 {s(sK[i])}, {s(t0)}, 0x7fff")
        k(f"s_lshl_b32 {s(sO[i])}, {s(sK[i])}, 1")
        if CAP1 and i >= DO:
            k(f"s_bitcmp1_b32 {s(sML)}, {i}")
            k(f"s_cbranch_scc0 L_c{i}")
        if CAP1 or i < DO:
            o_load(i)
        k.label(f"L_c{i}")
    o_poll()
    k(f"s_xor_b64 {s(sSV, 2)}, {s(sSV, 2)}, {s(sN, 2)}")
    k(f"s_or_b32 {s(sSV)}, {s(sSV)}, {s(sSV + 1)}")
    k(f"s_andn2_b32 {s(sPND)}, {s(sPND)}, {s(sSV)}")
    if CAP1:
        k(f"s_cmp_eq_u32 {s(sST)}, 0")
        k("s_cbranch_scc1 L_k2_e0")
    stamp(k, 8)
    if CAP1:
        k(f"s_cmp_ge_u32 {s(sE)}, 2")
        k(f"s_mov_b32 {s(sE)}, 0")
        k("s_cbranch_scc1 L_p0")
    for a in range(6):
        w_read(a)
    for i in range(10):
        k.label(f"L_p{i}")
        if i in TST:
            k("s_waitcnt lgkmcnt(0)")
            stamp(k, TST[i])
        if i + DO < 10:
            if CAP1:
                k(f"s_bitcmp1_b32 {s(sM2)}, {i + DO}")
                k(f"s_cbranch_scc0 L_q{i}")
            o_load(i + DO)
            k.label(f"L_q{i}")
        k(f"s_waitcnt vmcnt({2 * min(DO, 9 - i)})")
        k(f"v_bitop3_b32 {v(vTG)}, {v(OK_(i))}, {v(OK_(i) + 2)}, {v(OS_(i))} bitop3:0x80")
        k(f"v_bitop3_b32 {v(vTG)}, {v(vTG)}, {v(OS_(i) + 2)}, 1 bitop3:0x80")
        k(f"v_cmp_eq_u32 vcc, {s(sCNT)}, {v(vTG)}")
        for ct in range(5):
            a = 5 * i + ct
            k(f"s_waitcnt lgkmcnt({2 * min(5, 49 - a)})")
            if ct == 0:
                k(f"s_cbranch_vccnz L_f{i}")
            k(f"{M16} {v(AS(ct), 4)}, {v(WB(a), 4)}, {v(OS_(i), 4)}, {v(AS(ct), 4)}")
            w_read(a + 6, (0,))
            k(f"{M16} {v(AK(ct), 4)}, {v(WB(a), 4)}, {v(OK_(i), 4)}, {v(AK(ct), 4)}")
            w_read(a + 6, (1,))
    k.label("L_p10")
    k(f"s_cmp_lg_u32 {s(sPND)}, 0")
    k("s_cbranch_scc1 L_k2_nx")
    vXA, vXB, vXF, vXG = vPA, vND, vHS, vTG
    k(f"v_mbcnt_lo_u32_b32 {v(vXA)}, -1, 0")
    k(f"v_mbcnt_hi_u32_b32 {v(vXA)}, -1, {v(vXA)}")
    k(f"v_lshl_add_u32 {v(vXA)}, {v(vXA)}, 4, {s(sXA)}")
    k(f"v_xor_b32 {v(vXB)}, 1024, {v(vXA)}")
    k(f"s_lshl_b32 {s(t0)}, {s(gKQ)}, 2")
    k(f"s_add_u32 {s(t0)}, {s(t0)}, {FLG + 192}")
    k(f"v_mov_b32 {v(vXF)}, {s(t0)}")
    k(f"v_xor_b32 {v(vXG)}, 4, {v(vXF)}")
    k("s_waitcnt lgkmcnt(6)")
    for ct in range(5):
        k(f"ds_write_b128 {v(vXB)}, {v(AS(ct), 4)} offset:{2048 * ct}")
    k(f"ds_write_b32 {v(vXG)}, {v(vXG)}")
    for c in range(10):
        k(f"v_and_b32 {v(vW)}, 0xffff0000, {v(8 + c)}")
        k(f"v_lshlrev_b32 {v(8 + c)}, 16, {v(8 + c)}")
        k(f"v_fma_f32 {v(21 + 2 * c)}, {v(21 + 2 * c)}, {v(vG)}, {v(vW)}")
        k(f"v_fma_f32 {v(20 + 2 * c)}, {v(20 + 2 * c)}, {v(vG)}, {v(8 + c)}")
    k("s_waitcnt lgkmcnt(6)")
    k.label("L_k2_xr")
    k(f"ds_read_b32 {v(vW)}, {v(vXF)}")
    for ct in range(5):
        k(f"ds_read_b128 {v(60 + 4 * ct, 4)}, {v(vXA)} offset:{2048 * ct}")
    k("s_waitcnt lgkmcnt(5)")
    k(f"v_cmp_eq_u32 vcc, 0, {v(vW)}")
    k("s_cbranch_vccnz L_k2_xs")
    stamp(k, 9)
    for ct in range(5):
        A, B = AK(ct), 60 + 4 * ct
        k(f"s_waitcnt lgkmcnt({4 - ct})")
        for r in (0, 2):
            k(f"v_pk_fma_f32 {v(A + r, 2)}, {v(B + r, 2)}, {v(vG, 2)}, {v(A + r, 2)} op_sel_hi:[1,0,1]")
        for r in (0, 1):
            k(f"v_cvt_pk_bf16_f32 {v(A + r)}, {v(A + 2 * r)}, {v(A + 2 * r + 1)}")
        k(f"buffer_store_dwordx2 {v(A, 2)}, {v(vOUT)}, {s(SOUT, 4)}, {s(sBO)} offen offset:{32 * ct}{STOUT}")
    endpgm(k, 0, NW, 1)
    k.label("L_k2_xs")
    k(f"ds_read_b32 {v(vW)}, {v(vXF)}")
    k("s_waitcnt lgkmcnt(0)")
    k(f"v_cmp_eq_u32 vcc, 0, {v(vW)}")
    k("s_cbranch_vccnz L_k2_xs")
    k("s_branch L_k2_xr")
    for i in range(10):
        k.label(f"L_f{i}")
        k(f"s_lshr_b32 {s(t0)}, {s(sK[i])}, 10")
        k(f"s_cmp_ge_u32 {s(t0)}, 20")
        k("s_cbranch_scc1 L_p10")
        k(f"s_bitset1_b32 {s(sPND)}, {s(t0)}")
        if RST:
            k("s_add_u32 s70, s70, 1")
        for a in range(5 * i, min(5 * i + 5, 44)):
            k("s_waitcnt lgkmcnt(10)")
            w_read(a + 6)
        k(f"s_branch L_p{i + 1}")
    k.label("L_k2_id")
    o_poll()
    k.label("L_k2_nx")
    if PSL:
        k(f"s_sleep {PSL}")
    k("s_branch L_k2_rd")
    k.label("L_k2_gf")
    k(f"s_mov_b32 {s(t0)}, 0")
    k.label("L_k2_gl")
    k("s_barrier")
    k(f"s_add_u32 {s(t0)}, {s(t0)}, 1")
    k(f"s_cmp_lt_u32 {s(t0)}, {NFB[0]}")
    k("s_cbranch_scc1 L_k2_gl")
    k("s_branch L_k2_gm")
    k.label("L_end")
    k("s_endpgm")
```

```python
from common import *
import f2a, f2b
def gen(k):
    name = "k1_kernel"
    sched, where = f2a.plan()
    f2a.head(k, name)
    f2a.compute(k, where, lambda vI, vH: f2b.setup2(k, vI, vH))
    f2b.attention(k)
    f2a.aux(k, sched, where, lambda: f2b.setup_a(k))
    f2b.gwaves(k)
    return name, 168, 102
if __name__ == "__main__":
    launches = ["; @launch kernel=k1_kernel grid=(256,1,1) block=(768,1,1) lds=163840"]
    write(sys.argv[1] if len(sys.argv) > 1 else f"cdna_kernels/{NAME}.s", launches, (gen,))
```
